```python
import torch

def _softmax(x, axis=-1):
    return torch.softmax(x, dim=axis)
def _gelu(x):
    return torch.nn.functional.gelu(x, approximate="tanh")
def _silu(x):
    return torch.nn.functional.silu(x)
def _sigmoid(x):
    return torch.sigmoid(x)
def _layernorm(x, axis=-1, eps=1e-5):
    m = x.mean(dim=axis, keepdim=True)
    v = x.var(dim=axis, keepdim=True, unbiased=False)
    return (x - m) / torch.sqrt(v + eps)
def _scatter_add(tgt, idx, src, axis=0):
    return tgt.clone().index_add_(axis, idx, src)
def _segment_sum(src, seg, n):
    out = torch.zeros((n,) + src.shape[1:], dtype=src.dtype)
    return out.index_add_(0, seg, src)
def _pad(x, pw):
    flat = tuple(v for pair in reversed(pw) for v in pair)
    return torch.nn.functional.pad(x, flat)

kernel_name = 'concat_heads__linear_attn_block__sliding_block__prompt'

def setup_inputs():

    _w = (lambda a: (lambda t: t.to(torch.bfloat16) if t.is_floating_point() else t)(torch.as_tensor(a)))
    def _A_setup():
        B, S, D = 1, 2048, 640
        return {
            "x": _w((lambda *s: torch.randn(*s, dtype=torch.bfloat16) * 0.05)(B, S, D)),
            "wqkv": _w((lambda *s: torch.randn(*s, dtype=torch.bfloat16) * 1.6)(D, 3 * D)),
            "wo": _w((lambda *s: torch.randn(*s, dtype=torch.bfloat16) * 0.8)(D, D)),
        }
    _A_in = _A_setup()

    def _B_setup():
        B, S, D = 1, 2048, 640
        return {
            "x": _w((lambda *s: torch.randn(*s, dtype=torch.bfloat16) * 0.2)(B, S, D)),
            "wqkv": _w((lambda *s: torch.randn(*s, dtype=torch.bfloat16) * 0.2)(D, 3 * D)),
            "wo": _w((lambda *s: torch.randn(*s, dtype=torch.bfloat16) * 0.05)(D, D)),
        }
    _B_in = _B_setup()

    return {
        "A_x": _A_in["x"],
        "A_wqkv": _A_in["wqkv"],
        "A_wo": _A_in["wo"],
        "B_x": _B_in["x"],
        "B_wqkv": _B_in["wqkv"],
        "B_wo": _B_in["wo"],
    }

def reference(A_x, A_wqkv, A_wo, B_x, B_wqkv, B_wo):
    def _A_ref(x, wqkv, wo):
        B, S, D = x.shape
        H = 32; Dh = D // H
        qkv = (lambda x, *d: x.permute(*d))((x @ wqkv).reshape(B, S, 3, H, Dh), 2, 0, 3, 1, 4)
        q, k, v = qkv[0], qkv[1], qkv[2]
        phi = lambda t: torch.where(t > 0, t + 1, torch.exp(t)) + 1e-6
        pq, pk = phi(q), phi(k)
        kv = torch.einsum("bhsd,bhse->bhde", pk, v)
        z = torch.einsum("bhsd->bhd", pk)
        num = torch.einsum("bhqd,bhde->bhqe", pq, kv)
        den = torch.einsum("bhqd,bhd->bhq", pq, z)[..., None] + 1e-6
        o = num / den
        return (lambda x, *d: x.permute(*d))(o, 0, 2, 1, 3).reshape(B, S, D) @ wo

    def _B_ref(x, wqkv, wo):
        B, S, D = x.shape
        H = 32; Dh = D // H; W = 256
        qkv = (lambda x, *d: x.permute(*d))((x @ wqkv).reshape(B, S, 3, H, Dh), 2, 0, 3, 1, 4)
        q, k, v = qkv[0], qkv[1], qkv[2]
        scores = torch.einsum("bhqd,bhkd->bhqk", q, k) * (Dh ** -0.5)
        idx = torch.arange(S)
        mask = (idx[:, None] - idx[None, :] >= 0) & (idx[:, None] - idx[None, :] < W)
        scores = torch.where(mask[None, None], scores, -1e9)
        p = _softmax(scores, axis=-1)
        o = torch.einsum("bhqk,bhkd->bhqd", p, v)
        return (lambda x, *d: x.permute(*d))(o, 0, 2, 1, 3).reshape(B, S, D) @ wo

    a = _A_ref(A_x, A_wqkv, A_wo)
    b = _B_ref(B_x, B_wqkv, B_wo)
    return torch.concatenate([a, b], axis=-1)
```

```python
import re

def v(n, c=1):
    return f"v{n}" if c == 1 else f"v[{n}:{n+c-1}]"
def s(n, c=1):
    return f"s{n}" if c == 1 else f"s[{n}:{n+c-1}]"

_REG = re.compile(r"(?<![\w.])(-?\|?)([vs])(\d+|\[(\d+):(\d+)\])")
def regs_of(tok):
    out = set()
    t = tok.strip()
    if t in ("vcc", "vcc_lo", "vcc_hi"):
        return {("s", "vcc")}
    if t == "exec" or t in ("exec_lo", "exec_hi"):
        return {("s", "exec")}
    if t == "m0":
        return {("s", "m0")}
    for m in re.finditer(r"(?<![\w.])([vs])(?:(\d+)\b|\[(\d+):(\d+)\])", t):
        k = m.group(1)
        if m.group(2) is not None:
            out.add((k, int(m.group(2))))
        else:
            for i in range(int(m.group(3)), int(m.group(4)) + 1):
                out.add((k, i))
    return out

TRANS = ("v_exp_f32", "v_log_f32", "v_rcp_f32", "v_rsq_f32", "v_sqrt_f32", "v_sin_f32", "v_cos_f32", "v_rcp_iflag_f32")
def mfma_passes(mn):
    if "32x32x16" in mn or "32x32x8" in mn: return 8
    if "16x16x32" in mn or "16x16x16" in mn: return 4
    raise ValueError(mn)

class Ins:
    __slots__ = ("text", "mn", "ops", "kind", "w", "r", "srcc", "ab", "passes", "label", "target", "wait", "nops", "sdata")
    def __init__(self, text):
        self.text = text
        self.label = None; self.target = None; self.wait = None; self.nops = 0
        self.w = set(); self.r = set(); self.srcc = set(); self.ab = set(); self.passes = 0; self.sdata = set()
        t = text.split(";")[0].strip()
        if t.endswith(":"):
            self.kind = "label"; self.label = t[:-1]; self.mn = ""; self.ops = []
            return
        if t.startswith(".") or t == "":
            self.kind = "dir"; self.mn = ""; self.ops = []
            return
        parts = t.split(None, 1)
        mn = parts[0]; self.mn = mn
        rest = parts[1] if len(parts) > 1 else ""
        ops = [o.strip() for o in rest.split(",")] if rest else []
        self.ops = ops
        R = lambda i: regs_of(ops[i].split(" ")[0]) if i < len(ops) else set()
        if mn.startswith("v_mfma"):
            self.kind = "mfma"; self.passes = mfma_passes(mn)
            self.w = R(0); self.ab = R(1) | R(2); self.srcc = R(3); self.r = self.ab | self.srcc
        elif mn.startswith("v_"):
            self.kind = "trans" if any(mn.startswith(x) for x in TRANS) else "valu"
            if mn.startswith("v_permlane") and "swap" in mn:
                self.w = R(0) | R(1); self.r = R(0) | R(1); self.kind = "permlane"
            elif mn.startswith("v_cmp"):
                self.w = R(0)
                for i in range(1, len(ops)): self.r |= regs_of(ops[i])
            elif mn.startswith("v_add_co") or mn.startswith("v_addc_co") or mn.startswith("v_sub_co"):
                self.w = R(0) | R(1)
                for i in range(2, len(ops)): self.r |= regs_of(ops[i])
            else:
                self.w = R(0)
                for i in range(1, len(ops)): self.r |= regs_of(ops[i])
                if mn.startswith("v_fmac") or mn.startswith("v_mac") or mn.startswith("v_pk_fmac") or mn.startswith("v_writelane"):
                    self.r |= R(0)
                if mn.startswith("v_cndmask") and len(ops) == 3:
                    self.r |= {("s", "vcc")}
            if mn.startswith("v_readfirstlane") or mn.startswith("v_readlane"):
                self.kind = "readlane"
            self.r |= {("s", "exec")}
        elif mn.startswith("ds_"):
            self.kind = "ds"
            if mn.startswith("ds_read") or mn.startswith("ds_bpermute") or mn.startswith("ds_swizzle") or mn.startswith("ds_permute"):
                self.w = R(0)
                for i in range(1, len(ops)): self.r |= regs_of(ops[i].split(" ")[0])
            else:
                for i in range(0, len(ops)): self.r |= regs_of(ops[i].split(" ")[0])
        elif mn.startswith("buffer_") or mn.startswith("global_"):
            self.kind = "vmem"
            is_lds = bool(re.search(r"\blds\b", rest))
            if mn.startswith("buffer_load") and is_lds:
                for i in range(len(ops)): self.r |= regs_of(ops[i].split(" ")[0])
                self.r |= {("s", "m0")}
                self.kind = "vmem_lds"
            elif "load" in mn:
                self.w = R(0)
                for i in range(1, len(ops)): self.r |= regs_of(ops[i].split(" ")[0])
            elif "store" in mn:
                for i in range(len(ops)): self.r |= regs_of(ops[i].split(" ")[0])
                if mn.startswith("buffer_store"):
                    self.sdata = R(0)
                else:
                    self.sdata = R(1)
                if not ("x3" in mn or "x4" in mn): self.sdata = set()
            elif mn.startswith("buffer_atomic"):
                for i in range(len(ops)): self.r |= regs_of(ops[i].split(" ")[0])
            elif mn.startswith("buffer_wbl2") or mn.startswith("buffer_inv"):
                pass
            else:
                raise ValueError("unhandled vmem " + text)
        elif mn == "s_waitcnt":
            self.kind = "wait"
            w = {}
            for m in re.finditer(r"(vmcnt|lgkmcnt|expcnt)\((\d+)\)", rest): w[m.group(1)] = int(m.group(2))
            self.wait = w
        elif mn == "s_nop":
            self.kind = "nop"; self.nops = int(rest, 0) + 1
        elif mn.startswith("s_cbranch") or mn == "s_branch":
            self.kind = "branch"; self.target = ops[0]
            if "vcc" in mn: self.r = {("s", "vcc")}
            if "exec" in mn: self.r = {("s", "exec")}
            if "scc" in mn: self.r = {("s", "scc")}
        elif mn in ("s_barrier", "s_endpgm", "s_setprio", "s_sleep"):
            self.kind = "misc"
        elif mn.startswith("s_load") or mn.startswith("s_buffer_load") or mn.startswith("s_memtime") or mn.startswith("s_memrealtime"):
            self.kind = "smem"; self.w = R(0)
            for i in range(1, len(ops)): self.r |= regs_of(ops[i].split(" ")[0])
        elif mn.startswith("s_"):
            self.kind = "salu"
            if mn.startswith("s_cmp") or mn.startswith("s_bitcmp"):
                for i in range(len(ops)): self.r |= regs_of(ops[i])
                self.w = {("s", "scc")}
            else:
                self.w = R(0)
                for i in range(1, len(ops)): self.r |= regs_of(ops[i])
                if "saveexec" in mn:
                    self.w |= {("s", "exec")}; self.r |= {("s", "exec")}
                if mn.startswith("s_cselect") or mn.startswith("s_addc") or mn.startswith("s_subb") or mn.startswith("s_cmov"):
                    self.r |= {("s", "scc")}
                if mn.startswith("s_addk") or mn.startswith("s_mulk"):
                    self.r |= R(0)
                if not (mn.startswith("s_mov") or mn.startswith("s_cselect") or mn.startswith("s_mul") or mn.startswith("s_getpc") or mn.startswith("s_getreg") or mn.startswith("s_setreg")):
                    self.w |= {("s", "scc")}
        else:
            raise ValueError("unknown instr: " + text)

def isv(x): return x[0] == "v"
VALU_KINDS = ("valu", "trans", "permlane", "readlane")

def required(p, c):
    need = 0
    pv_w = {x for x in p.w if isv(x)}
    ps_w = {x for x in p.w if not isv(x)}
    cv_r = {x for x in c.r if isv(x)}
    cv_w = {x for x in c.w if isv(x)}
    cs_r = {x for x in c.r if not isv(x)}
    if p.kind in VALU_KINDS:
        if pv_w & cv_r:
            if c.kind == "mfma": need = max(need, 2)
            if c.kind == "permlane": need = max(need, 2)
            if c.kind == "readlane": need = max(need, 1)
            if p.kind == "trans" and c.kind in ("valu", "permlane", "readlane"): need = max(need, 1)
            if "dpp" in c.text or "row_" in c.text or "quad_perm" in c.text: need = max(need, 2)
        sw = ps_w - {("s", "scc")}
        if sw & cs_r:
            if c.kind in ("vmem", "vmem_lds"): need = max(need, 5)
            elif c.kind in VALU_KINDS or c.kind == "mfma":
                if ("s", "exec") in (sw & cs_r): need = max(need, 4)
                else: need = max(need, 4 if c.kind == "readlane" else 2)
            elif c.kind in ("salu", "branch", "smem"): need = max(need, 2)
            elif c.kind == "ds": need = max(need, 2)
    if p.kind == "mfma":
        big = {2: 5, 4: 8, 8: 12, 16: 20}[p.passes]
        ovl = {2: 4, 4: 6, 8: 10, 16: 18}[p.passes]
        if c.kind == "mfma":
            if pv_w & c.ab: need = max(need, big)
            if pv_w & c.srcc:
                if not (pv_w == c.srcc and p.passes == c.passes): need = max(need, ovl)
            if pv_w & cv_w and not (pv_w & c.srcc):
                need = max(need, ovl)
        else:
            if pv_w & (cv_r | cv_w): need = max(need, big)
        if c.kind in VALU_KINDS and ({x for x in p.srcc if isv(x)} & cv_w):
            need = max(need, {2: 1, 4: 3, 8: 7, 16: 15}[p.passes])
    if p.kind == "vmem" and p.sdata and (p.sdata & cv_w):
        need = max(need, 2 if c.kind in VALU_KINDS or c.kind == "mfma" else 1)
    if p.kind == "salu" and ("s", "m0") in p.w and c.kind == "vmem_lds":
        need = max(need, 1)
    return need

class State:
    def __init__(self):
        self.recent = []
        self.vm = []
        self.lg = []
    def copy(self):
        n = State()
        n.recent = [list(x) for x in self.recent]
        n.vm = [list(x) for x in self.vm]
        n.lg = [list(x) for x in self.lg]
        return n
    def merge(self, o):
        d = {id(x[0]): x for x in self.recent}
        for x in o.recent:
            if id(x[0]) in d: d[id(x[0])][1] = min(d[id(x[0])][1], x[1])
            else: self.recent.append(list(x))
        for mine, other in ((self.vm, o.vm), (self.lg, o.lg)):
            dd = {x[-1]: x for x in mine}
            for x in other:
                if x[-1] in dd: dd[x[-1]][1] = min(dd[x[-1]][1], x[1])
                else: mine.append(list(x))

class Asm:
    def __init__(self):
        self.lines = []
        self.uid = 0
    def I(self, text):
        for t in text.strip().split("\n"):
            t = t.strip()
            if t: self.lines.append(Ins(t))
    def L(self, name):
        self.lines.append(Ins(name + ":"))
    def raw(self, text):
        i = Ins(".x"); i.text = text; i.kind = "dir"; self.lines.append(i)
    def newlabel(self, p="L"):
        self.uid += 1
        return f"{p}_{self.uid}"

    def finalize(self, check_waits=True):
        out = []
        st = State()
        saved = {}
        seen_labels = set()
        label_state = {}
        dead = False
        errors = []
        n_ins = 0
        for idx, c in enumerate(self.lines):
            if c.kind == "dir":
                out.append(c.text); continue
            if c.kind == "label":
                if c.label.endswith("_kernel"):
                    st = State(); dead = False
                if c.label in saved:
                    if dead: st = saved[c.label]
                    else: st.merge(saved[c.label])
                    dead = False
                elif dead:
                    st = State(); dead = False
                seen_labels.add(c.label)
                label_state[c.label] = st.copy()
                out.append(c.text); continue
            need = 0
            for p, age in st.recent:
                r = required(p, c)
                if r - age > need: need = r - age
            if need > 0:
                k = need
                while k > 0:
                    n = min(k, 16)
                    out.append(f"    s_nop {n-1}")
                    k -= n
                for x in st.recent: x[1] += need
            if check_waits:
                touched = {x for x in (c.r | c.w)}
                for q, nm in ((st.vm, "vmcnt"), (st.lg, "lgkmcnt")):
                    for e in q:
                        if e[0] & touched and c.kind != "wait":
                            if nm == "vmcnt" and c.kind == "vmem" and not (e[0] & c.r): continue
                            if nm == "lgkmcnt" and c.kind == "ds" and not (e[0] & c.r): continue
                            errors.append(f"missing {nm} wait: '{c.text}' touches regs of outstanding '{e[-1].split('#')[0]}' (younger={e[1]})")
            if c.kind == "wait":
                if "vmcnt" in c.wait:
                    n = c.wait["vmcnt"]; st.vm = [e for e in st.vm if e[1] < n]
                if "lgkmcnt" in c.wait:
                    n = c.wait["lgkmcnt"]
                    if any(e[2] for e in st.lg):
                        if n == 0: st.lg = []
                    else:
                        st.lg = [e for e in st.lg if e[1] < n]
            if c.kind in ("vmem", "vmem_lds"):
                for e in st.vm: e[1] += 1
                self.uid += 1
                st.vm.append([set(x for x in c.w if isv(x)), 0, c.text + f"#{self.uid}"])
                if len(st.vm) > 63 + 0 and max(e[1] for e in st.vm) > 63:
                    pass
            if c.kind == "ds" or c.kind == "smem":
                for e in st.lg: e[1] += 1
                self.uid += 1
                st.lg.append([set(c.w), 0, c.kind == "smem", c.text + f"#{self.uid}"])
            slots = c.nops if c.kind == "nop" else 1
            for x in st.recent: x[1] += slots
            st.recent = [x for x in st.recent if x[1] < 24]
            if c.kind in VALU_KINDS or c.kind in ("mfma", "vmem", "salu"):
                st.recent.append([c, 0])
            out.append("    " + c.text)
            n_ins += 1
            if c.kind == "branch":
                tgt = c.target
                if tgt in seen_labels:
                    j = next(i for i, x in enumerate(self.lines) if x.kind == "label" and x.label == tgt)
                    tmp = st.copy(); cnt = 0
                    for x in self.lines[j+1:]:
                        if x.kind in ("dir", "label"): continue
                        for p, age in tmp.recent:
                            if required(p, x) > age:
                                errors.append(f"loop-carried hazard: '{p.text}' -> '{x.text}'")
                        sl = x.nops if x.kind == "nop" else 1
                        for y in tmp.recent: y[1] += sl
                        cnt += sl
                        if cnt > 24 or x.kind == "branch": break
                    ls = label_state[tgt]
                    for q0, q1, nm in ((ls.vm, st.vm, "vmcnt"), (ls.lg, st.lg, "lgkmcnt")):
                        if any(e[0] for e in q1):
                            errors.append(f"loop '{tgt}': register loads outstanding at back edge ({nm}): check by hand")
                else:
                    if tgt in saved: saved[tgt].merge(st)
                    else: saved[tgt] = st.copy()
                if c.mn == "s_branch": dead = True
            if c.mn == "s_endpgm": dead = True
        if errors:
            for e in errors[:40]: print("ERROR:", e)
            raise SystemExit(f"{len(errors)} asm check errors")
        return "\n".join(out) + "\n"
```

```python
from asmlib import *
S_LEN=2048; D=640; H=32
WS_QB = 0
WS_KB = 2621440
WS_VB = 5242880
WS_PQ = WS_VB + 32*64*1344
WS_KVP = WS_PQ + 2621440
WS_OA = WS_KVP + 32*8*3072
WS_OB = WS_OA + 2621440
WS_END = WS_OB + 2621440
OOB = 0x7F000000
import struct, math
def f2u(x): return struct.unpack("<I", struct.pack("<f", x))[0]
LOG2E = 1.4426950408889634
QSCALE = (20 ** -0.5) * LOG2E
NEG_INF = 0xFF800000
SRD3 = 0x00020000

def srd(a, dst, lo, hi, nbytes):
    a.I(f"s_mov_b32 s{dst}, s{lo}")
    a.I(f"s_mov_b32 s{dst+1}, s{hi}")
    a.I(f"s_mov_b32 s{dst+2}, {nbytes}")
    a.I(f"s_mov_b32 s{dst+3}, {SRD3:#x}")

def kd(name, vgpr, sgpr=96):
    acc = (vgpr + 3) // 4 * 4
    return f""".section .rodata,"a"
.p2align 6
.amdhsa_kernel {name}
  .amdhsa_next_free_vgpr {vgpr}
  .amdhsa_next_free_sgpr {sgpr}
  .amdhsa_accum_offset {acc}
  .amdhsa_group_segment_fixed_size 0
  .amdhsa_kernarg_size 72
  .amdhsa_user_sgpr_count 2
  .amdhsa_user_sgpr_kernarg_segment_ptr 1
  .amdhsa_system_sgpr_workgroup_id_x 1
  .amdhsa_float_denorm_mode_32 3
.end_amdhsa_kernel
.text
"""

class VmTrack:
    def __init__(self): self.ops = []
    def add(self, tag): self.ops.append(tag)
    def wait_n(self, pred):
        last = max((i for i, t in enumerate(self.ops) if pred(t)), default=-1)
        return len(self.ops) - 1 - last, last
```

```python
from common import *

K1_LDS = 153600 + 512
RING = 4
V_LANE=1; V_X=2; V_W0=3; V_W1=4; V_T0=5; V_T1=6; V_T2=7
V_A0=8; V_A1=9; V_A2=10; V_A3=11
V_TMP=12
V_RING=16
V_XB=32
V_ACC=112
K1_VGPRS=176
def acc(t, rt): return V_ACC + (t*2+rt)*4
def xreg(b, sh, rt): return V_XB + (b % 5)*16 + sh*8 + rt*4

SLOT_B = [0,3,1,4,5,8,6,9,2,7,10,11,13,14,12]
SLOT_A = [0,3,1,4,5,6,8,9,10,11,13,14,7,12,2]
ROWLANE_B = [1,1,1,1,1,0,0,0]
ROWLANE_A = [1,1,0,0,0,0,0,1]

def k1_branch(a, br):
    isB = br == "B"
    koff = 24 if isB else 0
    slots = SLOT_B if isB else SLOT_A
    rowlane = ROWLANE_B if isB else ROWLANE_A
    a.I(f"s_load_dwordx4 s[4:7], s[0:1], {koff}")
    a.I("s_load_dwordx2 s[28:29], s[0:1], 64")
    a.I("""
    s_and_b32 s20, s3, 1
    s_lshl_b32 s20, s20, 2
    s_and_b32 s23, s30, 3
    s_add_u32 s20, s20, s23
    s_lshr_b32 s21, s3, 1
    s_and_b32 s21, s21, 1
    s_lshl_b32 s21, s21, 3
    s_lshr_b32 s23, s30, 2
    s_add_u32 s21, s21, s23
    v_lshrrev_b32 v12, 6, v0
    v_and_b32 v1, 63, v0
    """)
    a.I("v_readfirstlane_b32 s22, v12")
    a.I("""
    v_and_b32 v12, 15, v1
    v_lshrrev_b32 v13, 4, v1
    s_lshl_b32 s23, s20, 3
    s_add_u32 s31, s23, s22
    s_lshl_b32 s23, s31, 5
    v_add_u32 v14, s23, v12
    v_mul_u32_u24 v14, 1280, v14
    v_lshl_add_u32 v2, v13, 4, v14
    s_mov_b32 s24, 20480
    """)
    a.I("""
    s_add_u32 s25, s22, 8
    s_min_u32 s25, s25, 14
    s_lshl_b32 s26, s22, 10
    s_lshl_b32 s27, s25, 10
    s_mul_i32 s23, s21, 80
    """)
    tbl = 0
    for i, x in enumerate(slots): tbl |= x << (4*i)
    a.I(f"s_mov_b32 s32, {tbl & 0xffffffff:#x}")
    a.I(f"s_mov_b32 s33, {tbl >> 32:#x}")
    for (dst, si) in ((V_W0, 22), (V_W1, 25)):
        a.I(f"""
        s_lshl_b32 s34, s{si}, 6
        v_add_u32 v12, s34, v1
        v_mul_u32_u24 v13, 4370, v12
        v_lshrrev_b32 v13, 16, v13
        v_mul_u32_u24 v14, 15, v13
        v_sub_u32 v14, v12, v14
        v_lshlrev_b32 v14, 2, v14
        v_lshrrev_b64 v[16:17], v14, s[32:33]
        v_and_b32 v16, 15, v16
        v_and_b32 v17, 0x38, v13
        v_and_b32 v18, 1, v13
        v_lshl_or_b32 v17, v18, 2, v17
        v_bfe_u32 v18, v13, 1, 2
        v_or_b32 v17, v17, v18
        v_mul_u32_u24 v17, 3840, v17
        v_lshl_add_u32 v17, v16, 4, v17
        v_mul_u32_u24 v18, 52, v16
        v_lshrrev_b32 v18, 8, v18
        v_mul_u32_u24 v18, 1200, v18
        v_add3_u32 v{dst}, v17, v18, s23
        """)
    a.I("s_waitcnt lgkmcnt(0)")
    srd(a, 8, 4, 5, 2621440)
    srd(a, 12, 6, 7, 2457600)
    srd(a, 16, 28, 29, WS_END)
    vm = VmTrack()
    def issue_w(b):
        for (vw, sb, i) in ((V_W0, 26, 0), (V_W1, 27, 1)):
            a.I(f"s_add_u32 m0, s{sb}, {b*15360}")
            if i == 0:
                a.I(f"s_mov_b32 s35, {b*245760}")
            a.I(f"buffer_load_dwordx4 v{vw}, s[12:15], s35 offen lds")
            vm.add(("W", b))
    def issue_x(b, sh):
        for rt in range(2):
            so = "s24" if rt else "0"
            a.I(f"buffer_load_dwordx4 {v(xreg(b, sh, rt), 4)}, v{V_X}, s[8:11], {so} offen offset:{(2*b+sh)*64}")
            vm.add(("x", b))
    order = ["W0","x0","W1","x1","W2","W3","x2","W4","W5","x3","W6","W7","x4","W8","W9"]
    for o in order:
        b = int(o[1:])
        if o[0] == "W": issue_w(b)
        else:
            issue_x(b, 0); issue_x(b, 1)
    a.I(f"""
    v_lshrrev_b32 v12, 4, v1
    v_bfe_u32 v13, v1, 2, 2
    v_lshlrev_b32 v12, 3, v12
    v_lshl_add_u32 v12, v13, 1, v12
    v_mul_u32_u24 v12, 240, v12
    v_and_b32 v13, 3, v1
    v_lshl_add_u32 v{V_T0}, v13, 3, v12
    v_add_u32 v{V_T1}, {8*7680}, v{V_T0}
    v_add_u32 v{V_T2}, {16*7680}, v{V_T0}
    """)
    a.I("""
    v_lshrrev_b32 v12, 4, v1
    v_and_b32 v13, 15, v1
    s_lshl_b32 s36, s21, 1
    """)
    base_q = WS_QB if isB else WS_PQ
    a.I(f"""
    v_lshrrev_b32 v14, 1, v12
    v_add_u32 v14, s36, v14
    v_lshlrev_b32 v14, 6, v14
    v_add_u32 v14, s31, v14
    v_mul_u32_u24 v14, 1280, v14
    v_and_b32 v15, 1, v12
    v_lshl_add_u32 v14, v15, 9, v14
    v_lshl_add_u32 v14, v13, 4, v14
    v_add_u32 v{V_A0}, {base_q}, v14
    """)
    a.I(f"""
    v_add_u32 v14, s36, v15
    v_lshlrev_b32 v14, 6, v14
    v_add_u32 v14, s31, v14
    v_mul_u32_u24 v14, 1280, v14
    v_lshl_add_u32 v14, v13, 4, v14
    v_add_u32 v14, {base_q + 1024}, v14
    """)
    if isB:
        a.I(f"""
        v_add_u32 v15, {WS_KB - WS_QB}, v14
        v_cmp_gt_u32 s[38:39], 32, v1
        v_cndmask_b32 v{V_A1}, v15, v14, s[38:39]
        """)
        a.I(f"""
        s_lshl_b32 s37, s36, 6
        s_add_u32 s37, s37, s31
        s_mul_i32 s37, s37, 1344
        s_add_u32 s37, s37, {WS_VB}
        v_mul_u32_u24 v14, 336, v12
        v_add_u32 v14, s37, v14
        v_lshl_add_u32 v{V_A2}, v13, 4, v14
        """)
        a.I(f"""
        v_lshrrev_b32 v15, 2, v13
        v_and_b32 v16, 1, v13
        v_cmp_gt_u32 s[40:41], 8, v13
        v_cndmask_b32 v15, v16, v15, s[40:41]
        v_and_b32 v16, 3, v13
        v_add_u32 v16, 16, v16
        v_mov_b32 v17, 20
        v_cndmask_b32 v16, v17, v16, s[40:41]
        v_mul_u32_u24 v15, {64*1344}, v15
        v_lshl_add_u32 v15, v16, 4, v15
        v_add_u32 v{V_A3}, v15, v14
        """)
    else:
        a.I(f"""
        v_mov_b32 v15, {OOB:#x}
        v_cmp_gt_u32 s[38:39], 32, v1
        v_cndmask_b32 v{V_A1}, v15, v14, s[38:39]
        v_cmp_gt_u32 s[40:41], 8, v13
        """)
    visible = set()
    def point(b):
        need_bar = b not in visible
        n, last = vm.wait_n(lambda t: t == ("x", b) or (need_bar and t == ("W", b)))
        a.I(f"s_waitcnt vmcnt({n})")
        if need_bar:
            a.I("s_barrier")
            for t in vm.ops[:last+1]:
                if t[0] == "W": visible.add(t[1])
    def issue_tr(n):
        s_, t = divmod(n, 8)
        base = V_T0 if s_ < 8 else (V_T1 if s_ < 16 else V_T2)
        off = (s_ % 8) * 7680 + 32*t
        r = V_RING + (n % RING)*4
        a.I(f"ds_read_b64_tr_b16 {v(r,2)}, v{base} offset:{off}")
        a.I(f"ds_read_b64_tr_b16 {v(r+2,2)}, v{base} offset:{off+240}")
    NT = 160
    point(0)
    for n in range(RING-1): issue_tr(n)
    for n in range(NT):
        s_, t = divmod(n, 8); b = s_ // 2; sh = s_ % 2
        m = n + RING - 1
        if m < NT:
            if m % 16 == 0: point(m // 16)
            issue_tr(m)
            a.I(f"s_waitcnt lgkmcnt({2*(RING-1)})")
        else:
            a.I(f"s_waitcnt lgkmcnt({2*(NT-1-n)})")
        wf = v(V_RING + (n % RING)*4, 4)
        for rt in range(2):
            xf = v(xreg(b, sh, rt), 4)
            d = v(acc(t, rt), 4)
            c = "0" if s_ == 0 else d
            if rowlane[t]: a.I(f"v_mfma_f32_16x16x32_bf16 {d}, {wf}, {xf}, {c}")
            else:          a.I(f"v_mfma_f32_16x16x32_bf16 {d}, {xf}, {wf}, {c}")
        if t == 7 and b + 5 < 10:
            issue_x(b + 5, sh)
    P = V_XB
    def pack(dst, t, rt, scale=None):
        r = acc(t, rt)
        if scale:
            for i in range(4): a.I(f"v_mul_f32 v{r+i}, {scale}, v{r+i}")
        a.I(f"v_cvt_pk_bf16_f32 v{dst}, v{r}, v{r+1}")
        a.I(f"v_cvt_pk_bf16_f32 v{dst+1}, v{r+2}, v{r+3}")
    if isB:
        a.I(f"s_mov_b32 s42, {f2u(QSCALE):#x}")
        a.I(f"s_mov_b32 s43, {WS_KB - WS_QB}")
        a.I(f"s_mov_b32 s44, {64*1344}")
        a.I(f"v_mov_b32 v12, s42")
        a.I(f"v_cndmask_b32 v12, 1.0, v12, s[38:39]")
        p = P
        for rt in range(2):
            pack(p, 0, rt, "s42"); pack(p+2, 1, rt, "s42")
            a.I(f"buffer_store_dwordx4 {v(p,4)}, v{V_A0}, s[16:19], 0 offen offset:{rt*256}")
            p += 4
        for rt in range(2):
            pack(p, 2, rt); pack(p+2, 3, rt)
            a.I(f"buffer_store_dwordx4 {v(p,4)}, v{V_A0}, s[16:19], s43 offen offset:{rt*256}")
            p += 4
        pack(p, 4, 0, "v12"); pack(p+2, 4, 1, "v12")
        a.I(f"buffer_store_dwordx4 {v(p,4)}, v{V_A1}, s[16:19], 0 offen")
        p += 4
        for t, so in ((5, "0"), (6, "s44")):
            pack(p, t, 0); pack(p+2, t, 1)
            a.I(f"buffer_store_dwordx4 {v(p,4)}, v{V_A2}, s[16:19], {so} offen")
            p += 4
        pack(p, 7, 0); pack(p+2, 7, 1)
        a.I("v_mov_b32 v13, 0x3f803f80")
        for i in range(4): a.I(f"v_cndmask_b32 v{p+i}, v13, v{p+i}, s[40:41]")
        a.I(f"buffer_store_dwordx4 {v(p,4)}, v{V_A3}, s[16:19], 0 offen")
        a.I("s_endpgm")
    else:
        a.I(f"s_mov_b32 s42, {f2u(LOG2E):#x}")
        a.I(f"s_mov_b32 s43, {f2u(1e-6):#x}")
        def phi(t, rt, dst=None):
            r = acc(t, rt); d = r if dst is None else dst
            tm = P + 64
            for i in range(4): a.I(f"v_mul_f32 v{tm+i}, s42, v{r+i}")
            for i in range(4): a.I(f"v_exp_f32 v{tm+i}, v{tm+i} clamp")
            for i in range(4): a.I(f"v_max_f32 v{d+i}, s43, v{r+i}")
            for i in range(4): a.I(f"v_add_f32 v{d+i}, v{d+i}, v{tm+i}")
        def packr(dst, r):
            a.I(f"v_cvt_pk_bf16_f32 v{dst}, v{r}, v{r+1}")
            a.I(f"v_cvt_pk_bf16_f32 v{dst+1}, v{r+2}, v{r+3}")
        PK0=P; PK1=P+4; VV0=P+8; VV1=P+12; T6P=P+16; T6O=P+20
        for t, dst in ((2, PK0), (3, PK1)):
            for rt in range(2):
                phi(t, rt); packr(dst+2*rt, acc(t, rt))
        for t, dst in ((4, VV0), (5, VV1)):
            for rt in range(2): packr(dst+2*rt, acc(t, rt))
        for rt in range(2): packr(T6O+2*rt, acc(6, rt))
        a.I("v_mov_b32 v13, 0x3f803f80")
        for i in range(4): a.I(f"v_cndmask_b32 v{T6O+i}, v{T6O+i}, v13, s[40:41]")
        for rt in range(2):
            phi(6, rt); packr(T6P+2*rt, acc(6, rt))
        M = P + 24
        pairs = [(PK0,VV0),(PK1,VV1),(PK0,T6O),(PK1,T6O),(T6P,VV0),(T6P,VV1),(T6P,T6O)]
        for i, (x, y) in enumerate(pairs):
            a.I(f"v_mfma_f32_16x16x32_bf16 {v(M+4*i,4)}, {v(x,4)}, {v(y,4)}, 0")
        Q = P + 56
        for rt in range(2):
            phi(0, rt); phi(1, rt)
            packr(Q+4*rt, acc(0, rt)); packr(Q+4*rt+2, acc(1, rt))
            a.I(f"buffer_store_dwordx4 {v(Q+4*rt,4)}, v{V_A0}, s[16:19], 0 offen offset:{rt*256}")
        QT = acc(0, 0)
        for rt in range(2):
            phi(7, rt); packr(QT+2*rt, acc(7, rt))
        a.I(f"buffer_store_dwordx4 {v(QT,4)}, v{V_A1}, s[16:19], 0 offen")
        a.I("s_barrier")
        a.I(f"""
        s_mul_i32 s44, s22, 7168
        v_lshlrev_b32 v12, 4, v1
        v_add_u32 v12, s44, v12
        """)
        for i in range(7):
            a.I(f"ds_write_b128 v12, {v(M+4*i,4)} offset:{i*1024}")
        a.I("s_waitcnt lgkmcnt(0)")
        a.I("s_barrier")
        done = a.newlabel("k1a_done")
        a.I("s_cmp_ge_u32 s22, 6")
        a.I(f"s_cbranch_scc1 {done}")
        a.I("""
        s_cmp_ge_u32 s22, 3
        s_cselect_b32 s45, 1, 0
        s_mul_i32 s46, s45, 3
        s_sub_u32 s46, s22, s46
        v_lshrrev_b32 v12, 5, v1
        v_and_b32 v13, 31, v1
        """)
        a.I("""
        s_lshl_b32 s47, s46, 1
        v_add_u32 v14, s47, v12
        v_mov_b32 v15, s45
        s_cmp_eq_u32 s46, 2
        s_cselect_b64 s[48:49], -1, 0
        v_cndmask_b32 v14, v14, v15, s[48:49]
        s_add_u32 s50, s45, 4
        s_add_u32 s51, s45, 2
        s_cmp_eq_u32 s46, 2
        s_cselect_b32 s50, s50, s45
        s_cselect_b32 s51, 6, s51
        v_mov_b32 v8, s51
        v_mov_b32 v9, s50
        v_cmp_gt_u32 s[52:53], 16, v13
        v_cndmask_b32 v8, v8, v9, s[52:53]
        s_lshl_b32 s54, s45, 2
        s_sub_u32 s54, s54, 8
        v_add_u32 v9, s54, v13
        v_cmp_gt_u32 s[56:57], 20, v13
        v_cndmask_b32 v9, 0, v9, s[56:57]
        v_cndmask_b32 v9, v9, v13, s[52:53]
        v_lshl_add_u32 v9, v14, 4, v9
        v_lshlrev_b32 v9, 4, v9
        v_lshl_add_u32 v9, v8, 10, v9
        """)
        R = P
        for w_ in range(8):
            a.I(f"ds_read_b128 {v(R+4*w_,4)}, v9 offset:{w_*7168}")
        a.I(f"""
        s_add_u32 s55, s36, s45
        s_lshl_b32 s55, s55, 3
        s_add_u32 s55, s55, s20
        s_mul_i32 s55, s55, 3
        s_add_u32 s55, s55, s46
        s_lshl_b32 s55, s55, 10
        s_add_u32 s55, s55, {WS_KVP}
        v_lshlrev_b32 v10, 4, v1
        v_add_u32 v10, s55, v10
        """)
        for w_ in range(1, 8):
            a.I(f"s_waitcnt lgkmcnt({7-w_})")
            for i in range(4): a.I(f"v_add_f32 v{R+i}, v{R+i}, v{R+4*w_+i}")
        a.I(f"buffer_store_dwordx4 {v(R,4)}, v10, s[16:19], 0 offen")
        a.L(done)
        a.I("s_endpgm")

def gen_k1(a, name):
    a.raw(f".globl {name}\n.p2align 8\n.type {name},@function")
    a.L(name)
    lb = a.newlabel("k1_B"); le = a.newlabel("k1_end")
    a.I("s_cmp_ge_u32 s2, 256")
    a.I(f"s_cbranch_scc1 {le}")
    a.I("s_and_b32 s3, s2, 7")
    a.I("s_lshr_b32 s30, s2, 3")
    a.I("s_cmp_ge_u32 s3, 4")
    a.I(f"s_cbranch_scc1 {lb}")
    k1_branch(a, "A")
    a.L(lb)
    k1_branch(a, "B")
    a.L(le)
    a.I("s_endpgm")
    a.raw(kd(name, K1_VGPRS))
```

```python
from common import *

LK = 0
LV = 16*1280
LKV = LV + 16*1344
K2_LDS = LKV + 1024 + 512
VCF=16; VCL=32; VS=(48,64); VO=80; VQM=96; VQT=100
VKM=(102,106); VKT=(110,112); VV=(114,122); VP=130
VPQM=138; VPQT=142; VKVM=144; VKVT=148
VR=150
VAKM=2; VAKT=3; VAV=4; VAO=5; VAOT=6; VL=7
K2_VGPRS=184

def kappa_code(a, m, dst, tmp):
    a.I(f"""
    v_and_b32 v{dst}, 7, v{m}
    v_bfe_u32 v{tmp}, v{m}, 3, 1
    v_lshl_or_b32 v{dst}, v{tmp}, 4, v{dst}
    v_bfe_u32 v{tmp}, v{m}, 4, 1
    v_lshl_or_b32 v{dst}, v{tmp}, 3, v{dst}
    """)

def key_of_reg(r):
    s_, b, i = r >> 3, (r >> 2) & 1, r & 3
    return 16*b + 8*s_ + i

def normalize_store(a, O, add_eps, so, check=None):
    a.I(f"v_cndmask_b32 v{VL}, v{O+8}, v{O+12}, s[38:39]")
    if add_eps: a.I(f"v_add_f32 v{VL}, s43, v{VL}")
    if check: check()
    a.I(f"v_rcp_f32 v8, v{VL}")
    for i in range(12): a.I(f"v_mul_f32 v{O+i}, v8, v{O+i}")
    for i in range(6): a.I(f"v_cvt_pk_bf16_f32 v{VP+i}, v{O+2*i}, v{O+2*i+1}")
    a.I(f"buffer_store_dwordx4 {v(VP,4)}, v{VAO}, s[16:19], {so} offen")
    a.I(f"buffer_store_dwordx2 {v(VP+4,2)}, v{VAOT}, s[16:19], {so} offen")

def gen_k2(a, name):
    a.raw(f".globl {name}\n.p2align 8\n.type {name},@function")
    a.L(name)
    le = a.newlabel("k2_end")
    a.I("s_cmp_ge_u32 s2, 256")
    a.I(f"s_cbranch_scc1 {le}")
    a.I("s_load_dwordx2 s[28:29], s[0:1], 64")
    a.I("""
    s_and_b32 s20, s2, 7
    s_lshr_b32 s23, s2, 6
    s_lshl_b32 s23, s23, 3
    s_add_u32 s20, s20, s23
    s_lshr_b32 s21, s2, 3
    s_and_b32 s21, s21, 7
    v_lshrrev_b32 v12, 6, v0
    v_and_b32 v1, 63, v0
    """)
    a.I("v_readfirstlane_b32 s22, v12")
    a.I("""
    s_lshl_b32 s24, s20, 6
    s_lshl_b32 s23, s21, 3
    s_add_u32 s24, s24, s23
    s_cmp_eq_u32 s21, 0
    s_cselect_b32 s23, 0, 8
    s_sub_u32 s25, s24, s23
    s_add_u32 s26, s24, s22
    v_lshlrev_b32 v8, 4, v1
    """)
    a.I("s_waitcnt lgkmcnt(0)")
    srd(a, 16, 28, 29, WS_END)
    for half, st in ((1, 24), (0, 25)):
        a.I(f"s_mul_i32 s30, s{st}, 1280")
        a.I(f"s_add_u32 s30, s30, {WS_KB}")
        a.I(f"s_mul_i32 s31, s{st}, 1344")
        a.I(f"s_add_u32 s31, s31, {WS_VB - 10240}")
        a.I(f"s_mov_b32 s42, {LK + half*10240}")
        a.I(f"s_mov_b32 s43, {LV + half*10752 - 10240}")
        for j in range(3):
            skip = a.newlabel("k2_skip")
            a.I(f"s_add_u32 s32, s22, {8*j}")
            if j == 2:
                a.I("s_cmp_ge_u32 s32, 21")
                a.I(f"s_cbranch_scc1 {skip}")
            a.I("s_lshl_b32 s33, s32, 10")
            a.I("s_cmp_lt_u32 s32, 10")
            a.I("s_cselect_b32 s34, s30, s31")
            a.I(f"s_cselect_b32 s35, s42, s43")
            a.I("s_add_u32 s34, s34, s33")
            a.I("s_add_u32 m0, s35, s33")
            if j == 2:
                a.I("s_cmp_eq_u32 s32, 20")
                a.I("s_cselect_b32 exec_hi, 0, -1")
            a.I("buffer_load_dwordx4 v8, s[16:19], s34 offen lds")
            if j == 2:
                a.I("s_mov_b32 exec_hi, -1")
            a.L(skip)
    a.I(f"""
    s_mul_i32 s36, s26, 1280
    v_add_u32 v9, s36, v8
    v_and_b32 v12, 31, v1
    v_and_b32 v13, 15, v1
    v_lshlrev_b32 v13, 4, v13
    v_bfe_u32 v14, v1, 4, 1
    v_lshl_add_u32 v13, v14, 3, v13
    v_add_u32 v10, s36, v13
    s_mov_b32 s37, {WS_PQ}
    """)
    a.I(f"buffer_load_dwordx4 {v(VPQM,4)}, v9, s[16:19], s37 offen")
    a.I(f"buffer_load_dwordx2 {v(VPQT,2)}, v10, s[16:19], s37 offen offset:1024")
    a.I(f"buffer_load_dwordx4 {v(VQM,4)}, v9, s[16:19], 0 offen")
    a.I(f"buffer_load_dwordx2 {v(VQT,2)}, v10, s[16:19], 0 offen offset:1024")
    nokv = a.newlabel("k2_nokv")
    a.I("s_cmp_ge_u32 s22, 3")
    a.I(f"s_cbranch_scc1 {nokv}")
    a.I(f"""
    s_mul_i32 s40, s20, 24
    s_add_u32 s40, s40, s22
    s_lshl_b32 s40, s40, 10
    s_add_u32 s40, s40, {WS_KVP}
    """)
    for i in range(8):
        a.I(f"buffer_load_dwordx4 {v(VR+4*i,4)}, v8, s[16:19], s40 offen")
        if i < 7: a.I("s_add_u32 s40, s40, 3072")
    a.L(nokv)
    a.I("v_cmp_gt_u32 s[38:39], 32, v1")
    a.I("v_lshrrev_b32 v11, 5, v1")
    kappa_code(a, 12, 13, 14)
    a.I(f"""
    s_mul_i32 s41, s22, 1280
    v_lshlrev_b32 v14, 9, v11
    v_lshl_add_u32 v14, v13, 4, v14
    v_add_u32 v{VAKM}, s41, v14
    v_and_b32 v14, 15, v13
    v_lshlrev_b32 v14, 4, v14
    v_lshrrev_b32 v15, 4, v13
    v_lshl_add_u32 v14, v15, 3, v14
    v_add_u32 v14, 1024, v14
    v_add_u32 v{VAKT}, s41, v14
    """)
    a.I(f"""
    v_min_u32 v14, 20, v12
    v_subrev_u32 v15, 12, v12
    v_cmp_lt_u32 s[44:45], 27, v12
    v_cndmask_b32 v14, v14, v15, s[44:45]
    v_mul_u32_u24 v15, 336, v11
    v_lshl_add_u32 v14, v14, 4, v15
    s_mul_i32 s41, s22, 1344
    s_add_u32 s41, s41, {LV}
    v_add_u32 v{VAV}, s41, v14
    """)
    a.I(f"""
    v_mov_b32 v{VAO}, v9
    v_lshlrev_b32 v14, 3, v12
    v_add_u32 v14, s36, v14
    v_add_u32 v14, 1024, v14
    v_mov_b32 v15, {OOB:#x}
    v_cndmask_b32 v{VAOT}, v15, v14, s[38:39]
    """)
    a.I(f"""
    v_lshlrev_b32 v14, 2, v11
    v_sub_u32 v14, v12, v14
    v_mov_b32 v15, {NEG_INF:#x}
    v_mov_b32 v9, 0
    """)
    for r in range(16):
        pr = 46 + 2*(r & 1)
        a.I(f"v_cmp_gt_i32 s[{pr}:{pr+1}], {key_of_reg(r)}, v14")
        a.I(f"v_cndmask_b32 v{VCF+r}, v15, v9, s[{pr}:{pr+1}]")
        a.I(f"v_cndmask_b32 v{VCL+r}, v9, v15, s[{pr}:{pr+1}]")
    l0 = a.newlabel("k2_r0")
    a.I("s_mov_b32 s27, 0")
    a.I("s_cmp_lg_u32 s21, 0")
    a.I(f"s_cbranch_scc1 {l0}")
    a.I("s_sub_u32 s27, 8, s22")
    for r in range(16): a.I(f"v_mov_b32 v{VCF+r}, v15")
    a.L(l0)
    nokv2 = a.newlabel("k2_nokv2")
    a.I("s_cmp_ge_u32 s22, 3")
    a.I(f"s_cbranch_scc1 {nokv2}")
    a.I("s_waitcnt vmcnt(0)")
    for i in range(1, 8):
        for k in range(4): a.I(f"v_add_f32 v{VR+k}, v{VR+k}, v{VR+4*i+k}")
    a.I(f"v_cvt_pk_bf16_f32 v{VR}, v{VR}, v{VR+1}")
    a.I(f"v_cvt_pk_bf16_f32 v{VR+1}, v{VR+2}, v{VR+3}")
    a.I(f"""
    s_lshl_b32 s41, s22, 3
    s_add_u32 s41, s41, {LKV}
    v_add_u32 v14, s41, v8
    v_lshlrev_b32 v15, 3, v1
    v_add_u32 v15, {LKV + 1024}, v15
    s_cmp_eq_u32 s22, 2
    s_cselect_b64 s[46:47], -1, 0
    v_cndmask_b32 v14, v14, v15, s[46:47]
    """)
    a.I(f"ds_write_b64 v14, {v(VR,2)}")
    a.L(nokv2)
    a.I("s_waitcnt vmcnt(0) lgkmcnt(0)")
    a.I("s_barrier")
    for r in (VQT, VQT+1, VPQT, VPQT+1):
        a.I(f"v_cndmask_b32 v{r}, 0, v{r}, s[38:39]")
    def rdK(i):
        a.I(f"ds_read_b128 {v(VKM[i&1],4)}, v{VAKM} offset:{LK + i*1280}")
        a.I(f"ds_read_b64 {v(VKT[i&1],2)}, v{VAKT} offset:{LK + i*1280}")
    def rdV(i):
        a.I(f"ds_read_b128 {v(VV[0],4)}, v{VAV} offset:{i*1344}")
        a.I(f"ds_read_b128 {v(VV[1],4)}, v{VAV} offset:{i*1344 + 672}")
    a.I(f"v_add_u32 v14, {LKV}, v8")
    a.I(f"v_lshlrev_b32 v15, 3, v1")
    a.I(f"ds_read_b128 {v(VKVM,4)}, v14")
    a.I(f"ds_read_b64 {v(VKVT,2)}, v15 offset:{LKV+1024}")
    rdK(0)
    a.I(f"s_mov_b32 s43, {f2u(1e-6):#x}")
    a.I(f"s_mov_b32 s48, {WS_OA}")
    a.I(f"s_mov_b32 s49, {WS_OB}")
    a.I("s_waitcnt lgkmcnt(2)")
    a.I(f"v_mfma_f32_32x32x16_bf16 {v(VO,16)}, {v(VKVM,4)}, {v(VPQM,4)}, 0")
    a.I(f"v_mfma_f32_32x32x8bf16_1k {v(VO,16)}, {v(VKVT,2)}, {v(VPQT,2)}, {v(VO,16)}")
    def qk(i, wn=0):
        S = VS[i & 1]
        a.I(f"s_waitcnt lgkmcnt({wn})")
        if i == 0:
            a.I(f"v_mfma_f32_32x32x16_bf16 {v(S,16)}, {v(VKM[i&1],4)}, {v(VQM,4)}, {v(VCF,16)}")
        elif i == 8:
            a.I(f"v_mfma_f32_32x32x16_bf16 {v(S,16)}, {v(VKM[i&1],4)}, {v(VQM,4)}, {v(VCL,16)}")
        else:
            ln = a.newlabel("k2_neg"); lj = a.newlabel("k2_join")
            a.I(f"s_cmp_gt_u32 s27, {i}")
            a.I(f"s_cbranch_scc1 {ln}")
            a.I(f"v_mfma_f32_32x32x16_bf16 {v(S,16)}, {v(VKM[i&1],4)}, {v(VQM,4)}, 0")
            a.I(f"s_branch {lj}")
            a.L(ln)
            a.I(f"v_mfma_f32_32x32x16_bf16 {v(S,16)}, {v(VKM[i&1],4)}, {v(VQM,4)}, {v(VCF,16)}")
            a.L(lj)
        a.I(f"v_mfma_f32_32x32x8bf16_1k {v(S,16)}, {v(VKT[i&1],2)}, {v(VQT,2)}, {v(S,16)}")
    qk(0)
    rdK(1)
    normalize_store(a, VO, True, "s48")
    rdV(0)
    for i in range(9):
        S = VS[i & 1]
        if i < 8:
            qk(i+1, 2)
            if i + 2 <= 8: rdK(i+2)
        for hfs in range(2):
            for k in range(8): a.I(f"v_exp_f32 v{S+8*hfs+k}, v{S+8*hfs+k}")
            for k in range(4): a.I(f"v_cvt_pk_bf16_f32 v{VP+4*hfs+k}, v{S+8*hfs+2*k}, v{S+8*hfs+2*k+1}")
            if hfs == 0: a.I(f"s_waitcnt lgkmcnt({2 if i + 2 <= 8 else 0})")
            c = "0" if (i == 0 and hfs == 0) else v(VO,16)
            a.I(f"v_mfma_f32_32x32x16_bf16 {v(VO,16)}, {v(VV[hfs],4)}, {v(VP+4*hfs,4)}, {c}")
        if i < 8: rdV(i+1)
    slow = a.newlabel("k2_slow"); fin = a.newlabel("k2_fin")
    def check():
        a.I(f"v_mov_b32 v9, 0")
        for i in range(12): a.I(f"v_fma_f32 v9, v{VO+i}, 0, v9")
        a.I(f"s_mov_b32 s50, {f2u(2.0**-64):#x}")
        a.I(f"s_mov_b32 s51, {f2u(2.0**64):#x}")
        a.I(f"v_cmp_nge_f32 s[52:53], v{VL}, s50")
        a.I(f"v_cmp_nle_f32 s[54:55], v{VL}, s51")
        a.I(f"v_cmp_u_f32 s[56:57], v9, v9")
        a.I("s_or_b64 s[52:53], s[52:53], s[54:55]")
        a.I("s_or_b64 s[52:53], s[52:53], s[56:57]")
        a.I("s_cmp_lg_u64 s[52:53], 0")
        a.I(f"s_cbranch_scc1 {slow}")
        a.L(fin)
    normalize_store(a, VO, False, "s49", check)
    a.I("s_endpgm")
    a.L(slow)
    S = VS[0]
    def slow_scores(tag):
        lf = a.newlabel("k2s_f"); ll = a.newlabel("k2s_l"); lj = a.newlabel("k2s_j")
        a.I(f"s_mul_i32 s59, s58, 1280")
        a.I(f"v_add_u32 v9, s59, v{VAKM}")
        a.I(f"v_add_u32 v10, s59, v{VAKT}")
        a.I(f"ds_read_b128 {v(VKM[0],4)}, v9 offset:{LK}")
        a.I(f"ds_read_b64 {v(VKT[0],2)}, v10 offset:{LK}")
        a.I("s_waitcnt lgkmcnt(0)")
        a.I("s_cmp_eq_u32 s58, 8")
        a.I(f"s_cbranch_scc1 {ll}")
        a.I("s_cmp_eq_u32 s58, 0")
        a.I(f"s_cbranch_scc1 {lf}")
        a.I("s_cmp_gt_u32 s27, s58")
        a.I(f"s_cbranch_scc1 {lf}")
        a.I(f"v_mfma_f32_32x32x16_bf16 {v(S,16)}, {v(VKM[0],4)}, {v(VQM,4)}, 0")
        a.I(f"s_branch {lj}")
        a.L(lf)
        a.I(f"v_mfma_f32_32x32x16_bf16 {v(S,16)}, {v(VKM[0],4)}, {v(VQM,4)}, {v(VCF,16)}")
        a.I(f"s_branch {lj}")
        a.L(ll)
        a.I(f"v_mfma_f32_32x32x16_bf16 {v(S,16)}, {v(VKM[0],4)}, {v(VQM,4)}, {v(VCL,16)}")
        a.L(lj)
        a.I("s_nop 9")
        a.I(f"v_mfma_f32_32x32x8bf16_1k {v(S,16)}, {v(VKT[0],2)}, {v(VQT,2)}, {v(S,16)}")
        a.I("s_nop 15")
    VM = 11
    a.I(f"v_mov_b32 v{VM}, {NEG_INF:#x}")
    a.I("s_mov_b32 s58, 0")
    lp1 = a.newlabel("k2s_p1")
    a.L(lp1)
    slow_scores("a")
    for r in range(16): a.I(f"v_max_f32 v{VM}, v{VM}, v{S+r}")
    a.I("s_add_u32 s58, s58, 1")
    a.I("s_cmp_le_u32 s58, 8")
    a.I(f"s_cbranch_scc1 {lp1}")
    a.I(f"v_mov_b32 v12, v{VM}")
    a.I("s_nop 1")
    a.I(f"v_permlane32_swap_b32 v12, v{VM}")
    a.I("s_nop 1")
    a.I(f"v_max_f32 v{VM}, v{VM}, v12")
    for r in range(16): a.I(f"v_mov_b32 v{VO+r}, 0")
    a.I("s_mov_b32 s58, 0")
    lp2 = a.newlabel("k2s_p2")
    a.L(lp2)
    slow_scores("b")
    a.I(f"s_mul_i32 s59, s58, 1344")
    a.I(f"v_add_u32 v9, s59, v{VAV}")
    a.I(f"ds_read_b128 {v(VV[0],4)}, v9")
    a.I(f"ds_read_b128 {v(VV[1],4)}, v9 offset:672")
    for r in range(16): a.I(f"v_sub_f32 v{S+r}, v{S+r}, v{VM}")
    for r in range(16): a.I(f"v_exp_f32 v{S+r}, v{S+r}")
    a.I("s_nop 0")
    for k in range(8): a.I(f"v_cvt_pk_bf16_f32 v{VP+k}, v{S+2*k}, v{S+2*k+1}")
    a.I("s_waitcnt lgkmcnt(0)")
    a.I("s_nop 1")
    for hfs in range(2):
        a.I(f"v_mfma_f32_32x32x16_bf16 {v(VO,16)}, {v(VV[hfs],4)}, {v(VP+4*hfs,4)}, {v(VO,16)}")
    a.I("s_nop 15")
    a.I("s_add_u32 s58, s58, 1")
    a.I("s_cmp_le_u32 s58, 8")
    a.I(f"s_cbranch_scc1 {lp2}")
    a.I(f"v_cndmask_b32 v{VL}, v{VO+8}, v{VO+12}, s[38:39]")
    a.I("s_nop 1")
    a.I(f"s_branch {fin}")
    a.L(le)
    a.I("s_endpgm")
    a.raw(kd(name, K2_VGPRS))
```

```python
from common import *

K3_LDS = 102400 + 512
RING = 4
V_OM=2; V_OT=3; V_T0=4; V_T1=5; V_OUT=6; V_OUT2=7
V_WM=8
V_RING=20
V_ACC=36
V_O=76
K3_VGPRS=240
def acc(t, rt): return V_ACC + (t*2+rt)*4
def oreg(s_, rt): return V_O + (s_*2+rt)*4

def gen_k3(a, name):
    a.raw(f".globl {name}\n.p2align 8\n.type {name},@function")
    a.L(name)
    le = a.newlabel("k3_end"); lb = a.newlabel("k3_b"); lj = a.newlabel("k3_j")
    a.I("s_cmp_ge_u32 s2, 256")
    a.I(f"s_cbranch_scc1 {le}")
    a.I("s_load_dwordx4 s[24:27], s[0:1], 40")
    a.I("s_load_dwordx2 s[4:5], s[0:1], 16")
    a.I("s_load_dwordx2 s[28:29], s[0:1], 64")
    a.I("""
    s_and_b32 s3, s2, 7
    s_lshr_b32 s30, s2, 3
    s_lshr_b32 s44, s3, 2
    s_and_b32 s20, s3, 3
    s_lshl_b32 s20, s20, 2
    s_and_b32 s23, s30, 3
    s_add_u32 s20, s20, s23
    s_lshr_b32 s21, s30, 2
    v_lshrrev_b32 v18, 6, v0
    v_and_b32 v1, 63, v0
    """)
    a.I("v_readfirstlane_b32 s22, v18")
    a.I(f"""
    s_lshl_b32 s31, s20, 2
    s_add_u32 s31, s31, s22
    s_mul_i32 s32, s31, 1280
    s_cmp_eq_u32 s44, 0
    s_mov_b32 s33, {WS_OA}
    s_mov_b32 s34, {WS_OB}
    s_cselect_b32 s33, s33, s34
    s_add_u32 s32, s32, s33
    v_lshrrev_b32 v18, 4, v1
    v_and_b32 v19, 15, v1
    """)
    a.I(f"""
    v_lshrrev_b32 v20, 1, v18
    v_mul_u32_u24 v20, 81920, v20
    v_and_b32 v21, 1, v18
    v_lshl_add_u32 v20, v21, 9, v20
    v_lshl_add_u32 v20, v19, 4, v20
    v_add_u32 v{V_OM}, s32, v20
    v_mul_u32_u24 v20, {2*81920}, v18
    v_lshl_add_u32 v20, v19, 3, v20
    v_add_u32 v20, s32, v20
    v_add_u32 v{V_OT}, 1024, v20
    s_mul_i32 s35, s21, 160
    """)
    for q in range(5):
        a.I(f"""
        v_add_u32 v20, {64*q}, v1
        v_mul_u32_u24 v21, 6554, v20
        v_lshrrev_b32 v21, 16, v21
        v_mul_u32_u24 v22, 10, v21
        v_sub_u32 v22, v20, v22
        v_lshlrev_b32 v22, 4, v22
        v_add_u32 v22, s35, v22
        v_lshrrev_b32 v23, 4, v21
        v_lshl_add_u32 v24, v23, 3, v21
        v_mul_u32_u24 v24, 1280, v24
        v_add_u32 v{V_WM+q}, v24, v22
        v_lshlrev_b32 v23, 1, v23
        v_bfe_u32 v24, v21, 2, 1
        v_add_u32 v23, v23, v24
        v_mul_u32_u24 v23, 40, v23
        v_bfe_u32 v24, v21, 3, 1
        v_lshl_add_u32 v23, v24, 2, v23
        v_and_b32 v24, 3, v21
        v_add3_u32 v23, v23, v24, 16
        v_mul_u32_u24 v23, 1280, v23
        v_add_u32 v{V_WM+5+q}, v23, v22
        """)
    a.I("s_waitcnt lgkmcnt(0)")
    a.I("s_cmp_eq_u32 s44, 0")
    a.I("s_cselect_b32 s4, s4, s24")
    a.I("s_cselect_b32 s5, s5, s25")
    srd(a, 8, 4, 5, 819200)
    srd(a, 16, 28, 29, WS_END)
    srd(a, 12, 26, 27, 5242880)
    vm = VmTrack()
    a.I("s_mul_i32 s36, s22, 5120")
    a.I("s_mul_i32 s37, s22, 51200")
    a.I("s_mul_i32 s38, s22, 204800")
    def issue_w(g):
        if g < 4: a.I(f"s_add_u32 s39, s37, {g*4*51200}")
        for q in range(5):
            a.I(f"s_add_u32 m0, s36, {g*4*5120 + q*1024}")
            so = "s39" if g < 4 else "s38"
            vw = V_WM + q + (0 if g < 4 else 5)
            a.I(f"buffer_load_dwordx4 v{vw}, s[8:11], {so} offen lds")
            vm.add(("W", g))
    def issue_o(s_):
        if s_ < 16:
            a.I(f"s_mov_b32 s40, {s_*163840}")
            for rt in range(2):
                a.I(f"buffer_load_dwordx4 {v(oreg(s_,rt),4)}, v{V_OM}, s[16:19], s40 offen offset:{rt*256}")
                vm.add(("O", s_))
        else:
            for u in range(2):
                a.I(f"s_mov_b32 s40, {(s_-16)*655360 + u*81920}")
                for rt in range(2):
                    a.I(f"buffer_load_dwordx2 {v(oreg(s_,rt)+2*u,2)}, v{V_OT}, s[16:19], s40 offen offset:{rt*128}")
                    vm.add(("O", s_))
    for g in range(4):
        issue_w(g)
        for s_ in range(4*g, 4*g+4): issue_o(s_)
    a.I(f"""
    v_lshrrev_b32 v18, 5, v1
    v_lshlrev_b32 v18, 4, v18
    v_bfe_u32 v19, v1, 4, 1
    v_lshl_add_u32 v18, v19, 2, v18
    v_bfe_u32 v19, v1, 2, 2
    v_add_u32 v18, v18, v19
    v_mul_u32_u24 v18, 160, v18
    v_and_b32 v19, 3, v1
    v_lshl_add_u32 v{V_T0}, v19, 3, v18
    v_add_u32 v{V_T1}, {12*5120}, v{V_T0}
    """)
    a.I(f"""
    v_lshrrev_b32 v18, 4, v1
    v_and_b32 v19, 15, v1
    s_lshl_b32 s41, s31, 5
    v_add_u32 v19, s41, v19
    v_mul_u32_u24 v19, 2560, v19
    s_mul_i32 s42, s44, 1280
    s_add_u32 s42, s42, s35
    v_add_u32 v19, s42, v19
    v_and_b32 v20, 1, v18
    v_lshlrev_b32 v20, 5, v20
    v_lshrrev_b32 v21, 1, v18
    v_lshl_add_u32 v20, v21, 4, v20
    v_add_u32 v{V_OUT}, v19, v20
    v_lshl_add_u32 v{V_OUT2}, v18, 3, v19
    s_mov_b32 s43, {16*2560}
    """)
    visible = set()
    def point(s_):
        g = s_ // 4
        need_bar = g not in visible
        n, last = vm.wait_n(lambda t: t == ("O", s_) or (need_bar and t == ("W", g)))
        a.I(f"s_waitcnt vmcnt({n})")
        if need_bar:
            a.I("s_barrier")
            for t in vm.ops[:last+1]:
                if t[0] == "W": visible.add(t[1])
    def issue_tr(n):
        s_, t = divmod(n, 5)
        base = V_T0 if s_ < 12 else V_T1
        off = (s_ % 12) * 5120 + 32*t
        r = V_RING + (n % RING)*4
        a.I(f"ds_read_b64_tr_b16 {v(r,2)}, v{base} offset:{off}")
        a.I(f"ds_read_b64_tr_b16 {v(r+2,2)}, v{base} offset:{off+1280}")
    NT = 100
    point(0)
    for n in range(RING-1): issue_tr(n)
    issued_tail = False
    for n in range(NT):
        s_, t = divmod(n, 5)
        m = n + RING - 1
        if m < NT:
            if m % 5 == 0: point(m // 5)
            issue_tr(m)
            a.I(f"s_waitcnt lgkmcnt({2*(RING-1)})")
        else:
            a.I(f"s_waitcnt lgkmcnt({2*(NT-1-n)})")
        wf = v(V_RING + (n % RING)*4, 4)
        for rt in range(2):
            d = v(acc(t, rt), 4)
            c = "0" if s_ == 0 else d
            a.I(f"v_mfma_f32_16x16x32_bf16 {d}, {wf}, {v(oreg(s_,rt),4)}, {c}")
        if s_ == 3 and t == 4:
            issue_w(4)
            for s2 in range(16, 20): issue_o(s2)
    P = V_O
    for rt in range(2):
        so = "s43" if rt else "0"
        for pr in range(2):
            p = P + rt*12 + pr*4
            for k, t in enumerate((2*pr, 2*pr+1)):
                r = acc(t, rt)
                a.I(f"v_cvt_pk_bf16_f32 v{p+2*k}, v{r}, v{r+1}")
                a.I(f"v_cvt_pk_bf16_f32 v{p+2*k+1}, v{r+2}, v{r+3}")
            a.I(f"v_permlane16_swap_b32 v{p}, v{p+2}")
            a.I(f"v_permlane16_swap_b32 v{p+1}, v{p+3}")
            a.I(f"buffer_store_dwordx4 {v(p,4)}, v{V_OUT}, s[12:15], {so} offen offset:{pr*64}")
        p = P + rt*12 + 8
        r = acc(4, rt)
        a.I(f"v_cvt_pk_bf16_f32 v{p}, v{r}, v{r+1}")
        a.I(f"v_cvt_pk_bf16_f32 v{p+1}, v{r+2}, v{r+3}")
        a.I(f"buffer_store_dwordx2 {v(p,2)}, v{V_OUT2}, s[12:15], {so} offen offset:128")
    a.L(le)
    a.I("s_endpgm")
    a.raw(kd(name, K3_VGPRS))
```

```python
import sys
sys.path.insert(0, "gen")
from common import *
import k1, k2, k3
NAME = "concat_heads__linear_attn_block__sliding_block__prompt"
def build():
    ref = open(f"cdna_kernels/{NAME}.s.ref").read().split("\n")
    hdr = [l for l in ref if l.startswith(";") and "@launch" not in l and "Override launch" not in l and "grid=ceil" not in l]
    hdr = [l for l in hdr if not l.strip().startswith("; v1 =")]
    out = "\n".join(hdr) + "\n"
    out += f"; @launch kernel=qkv_proj_kernel grid=(256,1,1) block=(768,1,1) lds={k1.K1_LDS}\n"
    out += f"; @launch kernel=attn_core_kernel grid=(288,1,1) block=(512,1,1) lds={k2.K2_LDS}\n"
    out += f"; @launch kernel=out_proj_kernel grid=(256,1,1) block=(256,1,1) lds={k3.K3_LDS}\n"
    out += '.amdgcn_target "amdgcn-amd-amdhsa--gfx950"\n.text\n'
    a = Asm()
    k1.gen_k1(a, "qkv_proj_kernel")
    k2.gen_k2(a, "attn_core_kernel")
    k3.gen_k3(a, "out_proj_kernel")
    out += a.finalize()
    return out
if __name__ == "__main__":
    dst = sys.argv[1] if len(sys.argv) > 1 else f"cdna_kernels/{NAME}.s"
    txt = build()
    open(dst, "w").write(txt)
    print("wrote", dst, len(txt), "bytes", txt.count("\n"), "lines")
```

```python
from asmlib import *
S_LEN=2048; D=640; H=32
BUF = 2621440
import os
WS0 = int(os.environ.get('WS0', '0'))
WS_QB = 0
WS_KB = BUF
WS_VB = 2*BUF
WS_PQ = 3*BUF
WS_PK = 4*BUF
WS_VA = 5*BUF
WS_OA = 6*BUF
WS_OB = 7*BUF
WS_END = 8*BUF
OOB = 0x7F000000
import struct, math
def f2u(x): return struct.unpack("<I", struct.pack("<f", x))[0]
LOG2E = 1.4426950408889634
QSCALE = (20 ** -0.5) * LOG2E
NEG_INF = 0xFF800000
SRD3 = 0x00020000

def srd(a, dst, lo, hi, nbytes, add=0):
    if add:
        a.I(f"s_add_u32 s{dst}, s{lo}, {add}")
        a.I(f"s_addc_u32 s{dst+1}, s{hi}, 0")
    else:
        a.I(f"s_mov_b32 s{dst}, s{lo}")
        a.I(f"s_mov_b32 s{dst+1}, s{hi}")
    a.I(f"s_mov_b32 s{dst+2}, {nbytes}")
    a.I(f"s_mov_b32 s{dst+3}, {SRD3:#x}")

def kd(name, vgpr, sgpr=102):
    acc = (vgpr + 3) // 4 * 4
    return f""".section .rodata,"a"
.p2align 6
.amdhsa_kernel {name}
  .amdhsa_next_free_vgpr {vgpr}
  .amdhsa_next_free_sgpr {sgpr}
  .amdhsa_accum_offset {acc}
  .amdhsa_group_segment_fixed_size 0
  .amdhsa_kernarg_size 72
  .amdhsa_user_sgpr_count 2
  .amdhsa_user_sgpr_kernarg_segment_ptr 1
  .amdhsa_system_sgpr_workgroup_id_x 1
  .amdhsa_float_denorm_mode_32 3
.end_amdhsa_kernel
.text
"""

class VmTrack:
    def __init__(self): self.ops = []
    def add(self, tag): self.ops.append(tag)
    def wait_n(self, pred):
        last = max((i for i, t in enumerate(self.ops) if pred(t)), default=-1)
        return len(self.ops) - 1 - last, last

import os
PROFILE = os.environ.get("PROFILE", "0") == "1"
PROF_BASE = 32 << 20
WS_REC = (64 << 20) if PROFILE else WS_END
class Prof:
    def __init__(self, a, kidx): self.a = a; self.k = kidx; self.n = 0; self.names = []
    def start(self):
        if not PROFILE: return
        self.a.I("s_memrealtime s[96:97]")
        self.a.I("s_memtime s[64:65]")
        self.n = 1; self.names = ["entry"]
    def stamp(self, name):
        if not PROFILE: return
        assert self.n < 15
        self.a.I(f"s_memtime s[{64+2*self.n}:{65+2*self.n}]")
        self.a.I("s_waitcnt lgkmcnt(0)")
        self.n += 1; self.names.append(name)
    def finish(self, srd0, swave, n_fixed=None):
        if not PROFILE: return
        a = self.a
        a.I("s_memtime s[94:95]")
        a.I("s_memrealtime s[98:99]")
        a.I("s_waitcnt lgkmcnt(0)")
        a.I("s_lshl_b32 s3, s2, 4")
        a.I(f"s_add_u32 s3, s3, s{swave}")
        a.I("s_lshl_b32 s3, s3, 7")
        a.I(f"s_add_u32 s3, s3, {PROF_BASE + self.k*(1<<20)}")
        a.I("s_mov_b64 exec, 1")
        for i in range(self.n):
            a.I(f"v_mov_b32 v2, s{64+2*i}")
            a.I(f"v_mov_b32 v3, s3")
            a.I(f"buffer_store_dword v2, v3, s[{srd0}:{srd0+3}], 0 offen offset:{4*i}")
        for j, sr in enumerate((94, 96, 98)):
            a.I(f"v_mov_b32 v2, s{sr}")
            a.I(f"v_mov_b32 v3, s3")
            a.I(f"buffer_store_dword v2, v3, s[{srd0}:{srd0+3}], 0 offen offset:{64+4*j}")

ST_K1 = os.environ.get("ST_K1", "sc1")
ST_K2 = os.environ.get("ST_K2", "sc1")
ST_K3 = os.environ.get("ST_K3", "")
def sfx(x): return (" " + x) if x else ""
```

```python
from common import *

K1_PRE = os.environ.get('K1_PRE', '1') == '1'
STAMPS = eval(os.environ.get('K1_STAMPS', '(4, 10, 16)'))
WB = 0; XB = 49152
K1_LDS = XB + 3*32768
V_XE=2; V_XO=3; V_W=4; V_T=5; V_XR=9; V_XR2=11; V_A=16
V_F=20; V_ACC=84
K1_VGPRS=152
def acc(i, j): return V_ACC + (i*4+j)*4
def fx(n, i): return V_F + (n & 1)*32 + i*4
def fw(n, j): return V_F + (n & 1)*32 + 16 + j*4

def main_loop(a, rowlane, pf):
    def reads(n):
        b, sp = n >> 1, n & 1
        st = b % 3
        out = []
        xb = (V_XR2 if st == 2 else V_XR) + sp
        xo = 0 if st == 2 else st*32768
        def rw(j):
            off = WB + st*16384 + sp*8192
            return [f"ds_read_b64_tr_b16 {v(fw(n,j),2)}, v{V_T+j} offset:{off}",
                    f"ds_read_b64_tr_b16 {v(fw(n,j)+2,2)}, v{V_T+j} offset:{off+1024}"]
        def rx(i): return [f"ds_read_b128 {v(fx(n,i),4)}, v{xb} offset:{xo + i*2048}"]
        for k in range(4):
            out += rw(k) + rx(k)
        return out
    sched = eval(os.environ.get("K1_TOUCH", "{-1:[0,1,2,3], 0:[4,5], 2:[6,7], 4:[8,9]}"))
    tw = [0]
    def do_touch(k):
        for b in sched.get(k, []):
            touch(a, b, tw[0] % 8); tw[0] += 1
    touch_setup(a)
    do_touch(-1)
    yield "prologue"
    a.I("s_barrier")
    do_touch(0)
    pf.stamp("first")
    for t in reads(0): a.I(t)
    for n in range(20):
        b, sp = n >> 1, n & 1
        if n in STAMPS: pf.stamp(f"n{n}")
        a.I("s_waitcnt lgkmcnt(0)")
        if sp == 1 and b + 1 <= 9:
            a.I("s_barrier")
            do_touch(b + 1)
            if n in STAMPS: pf.stamp(f"n{n}bar")
        rd = reads(n+1) if n < 19 else []
        for k in range(16):
            i, j = k >> 2, k & 3
            d = v(acc(i, j), 4); c = "0" if n == 0 else d
            if rowlane: a.I(f"v_mfma_f32_16x16x32_bf16 {d}, {v(fw(n,j),4)}, {v(fx(n,i),4)}, {c}")
            else:       a.I(f"v_mfma_f32_16x16x32_bf16 {d}, {v(fx(n,i),4)}, {v(fw(n,j),4)}, {c}")
            if k < len(rd): a.I(rd[k])

def loader_wave(a, pf):
    a.I(f"""
    s_sub_u32 s24, s22, 8
    v_lshrrev_b32 v13, 3, v1
    v_and_b32 v14, 7, v1
    v_lshrrev_b32 v15, 1, v13
    v_xor_b32 v14, v14, v15
    s_lshl_b32 s23, s20, 8
    s_lshl_b32 s25, s24, 6
    s_add_u32 s23, s23, s25
    v_add_u32 v13, s23, v13
    v_mul_u32_u24 v13, 1280, v13
    v_lshl_add_u32 v2, v14, 4, v13
    v_xor_b32 v3, 64, v2
    s_lshl_b32 s26, s24, 13
    s_add_u32 s26, s26, {XB}
    """)
    a.I(f"""
    v_lshrrev_b32 v13, 4, v1
    v_lshlrev_b32 v14, 1, v13
    v_and_b32 v15, 15, v1
    v_xor_b32 v14, v14, v15
    s_lshl_b32 s25, s24, 4
    v_add_u32 v13, s25, v13
    v_mul_u32_u24 v13, 3840, v13
    v_lshl_add_u32 v13, v14, 4, v13
    s_lshl_b32 s25, s21, 8
    v_add_u32 v4, s25, v13
    v_xor_b32 v5, 128, v4
    s_lshl_b32 s27, s24, 12
    s_add_u32 s27, s27, {WB}
    """)
    def issue():
        def dx(q):
            a.I(f"s_add_u32 m0, s40, {q*1024}")
            a.I(f"s_add_u32 s35, s44, {q*10240}")
            a.I(f"buffer_load_dwordx4 v{3 if q & 1 else 2}, s[8:11], s35 offen lds")
        def dw(q):
            a.I(f"s_add_u32 m0, s41, {q*1024}")
            a.I(f"s_add_u32 s35, s45, {q*15360}")
            a.I(f"buffer_load_dwordx4 v{5 if q & 2 else 4}, s[12:15], s35 offen lds")
        for q in range(4):
            dw(q); dx(2*q); dx(2*q+1)
    def set_slot(sl):
        a.I(f"s_mul_i32 s40, {sl}, 32768")
        a.I("s_add_u32 s40, s40, s26")
        a.I(f"s_mul_i32 s41, {sl}, 16384")
        a.I("s_add_u32 s41, s41, s27")
    def next_k():
        a.I("s_add_u32 s44, s44, 128")
        a.I("s_add_u32 s45, s45, 245760")
    def issue_stage(b):
        st = b % 3
        for q in range(4):
            for kind, qq in (("w", q), ("x", 2*q), ("x", 2*q+1)):
                if kind == "x":
                    a.I(f"s_add_u32 m0, s26, {st*32768 + qq*1024}")
                    a.I(f"s_mov_b32 s35, {qq*10240 + b*128}")
                    a.I(f"buffer_load_dwordx4 v{3 if qq & 1 else 2}, s[8:11], s35 offen lds")
                else:
                    a.I(f"s_add_u32 m0, s27, {st*16384 + qq*1024}")
                    a.I(f"s_mov_b32 s35, {qq*15360 + b*245760}")
                    a.I(f"buffer_load_dwordx4 v{5 if qq & 2 else 4}, s[12:15], s35 offen lds")
    issue_stage(0)
    pf.stamp("l_iss0")
    a.I("s_waitcnt vmcnt(0)")
    pf.stamp("l_land0")
    a.I("s_barrier")
    issue_stage(1)
    issue_stage(2)
    pf.stamp("l_iss2")
    for b in range(1, 10):
        a.I(f"s_waitcnt vmcnt({12 if b <= 8 else 0})")
        if b <= 3: pf.stamp(f"l_land{b}")
        a.I("s_barrier")
        if b <= 3: pf.stamp(f"l_bar{b}")
        if b + 2 <= 9:
            issue_stage(b + 2)
            if b <= 3: pf.stamp(f"l_iss{b+2}")
    pf.finish(16, 22)
    a.I("s_endpgm")

def touch_setup(a):
    a.I(f"""
    v_and_b32 v13, 31, v1
    s_and_b32 s23, s3, 1
    s_lshl_b32 s23, s23, 10
    s_lshl_b32 s24, s30, 5
    s_add_u32 s23, s23, s24
    v_add_u32 v13, s23, v13
    v_mul_u32_u24 v13, 1280, v13
    v_mov_b32 v14, {OOB:#x}
    v_cmp_gt_u32 s[48:49], 32, v1
    v_cndmask_b32 v{V_XE}, v14, v13, s[48:49]
    v_bfe_u32 v13, v1, 4, 1
    s_lshl_b32 s24, s30, 1
    v_add_u32 v13, s24, v13
    v_mul_u32_u24 v13, 3840, v13
    v_and_b32 v15, 15, v1
    v_lshl_add_u32 v13, v15, 7, v13
    s_lshr_b32 s24, s3, 1
    s_and_b32 s24, s24, 1
    s_lshl_b32 s24, s24, 11
    v_add_u32 v13, s24, v13
    v_cndmask_b32 v{V_XO}, v13, v14, s[48:49]
    """)
def touch_ops(a, b, d0=V_W, d1=148):
    a.I(f"buffer_load_dword v{d0}, v{V_XE}, s[8:11], 0 offen offset:{b*128}")
    a.I(f"s_mov_b32 s35, {b*245760}")
    a.I(f"buffer_load_dword v{d1}, v{V_XO}, s[12:15], s35 offen")
def touch(a, b, wave, wait_first=False):
    l = a.newlabel("k1_nt")
    a.I(f"s_cmp_lg_u32 s22, {wave}")
    a.I(f"s_cbranch_scc1 {l}")
    if wait_first: a.I("s_waitcnt vmcnt(0)")
    touch_ops(a, b)
    a.L(l)

def epilogue(a, mode):
    P = V_F + 16
    if mode == "phi":
        a.I(f"s_mov_b32 s42, {f2u(LOG2E):#x}")
        a.I(f"s_mov_b32 s43, {f2u(LOG2E):#x}")
        a.I(f"s_mov_b32 s44, {f2u(1e-6):#x}")
    if mode == "scale":
        a.I(f"s_mov_b32 s42, {f2u(QSCALE):#x}")
        a.I(f"s_mov_b32 s43, {f2u(QSCALE):#x}")
    k = 0
    for p in range(2):
        for j in range(4):
            d = P + (k % 8)*4; tm = V_F + (k % 2)*8; k += 1
            regs = [acc(2*p, j), acc(2*p+1, j)]
            if mode == "phi":
                for q, r in enumerate(regs):
                    for i in (0, 2): a.I(f"v_pk_mul_f32 {v(tm+4*q+i,2)}, {v(r+i,2)}, s[42:43]")
                for q, r in enumerate(regs):
                    for i in range(4): a.I(f"v_exp_f32 v{tm+4*q+i}, v{tm+4*q+i} clamp")
                for q, r in enumerate(regs):
                    for i in range(4): a.I(f"v_max_f32 v{r+i}, s44, v{r+i}")
                for q, r in enumerate(regs):
                    for i in (0, 2): a.I(f"v_pk_add_f32 {v(r+i,2)}, {v(r+i,2)}, {v(tm+4*q+i,2)}")
            if mode == "scale":
                for q, r in enumerate(regs):
                    for i in (0, 2): a.I(f"v_pk_mul_f32 {v(r+i,2)}, {v(r+i,2)}, s[42:43]")
            for rt in range(2):
                r = regs[rt]
                a.I(f"v_cvt_pk_bf16_f32 v{d+2*rt}, v{r}, v{r+1}")
                a.I(f"v_cvt_pk_bf16_f32 v{d+2*rt+1}, v{r+2}, v{r+3}")
            a.I(f"buffer_store_dwordx4 {v(d,4)}, v{V_A+j}, s[16:19], 0 offen offset:{p*1280}{sfx(ST_K1)}")

def gen_k1(a, name):
    a.raw(f".globl {name}\n.p2align 8\n.type {name},@function")
    a.L(name)
    le = a.newlabel("k1_end")
    pf = Prof(a, 0)
    a.I("s_cmp_ge_u32 s2, 256")
    a.I(f"s_cbranch_scc1 {le}")
    pf.start()
    a.I("s_load_dwordx4 s[4:7], s[0:1], 0")
    a.I("s_load_dwordx4 s[44:47], s[0:1], 24")
    a.I("s_load_dwordx2 s[28:29], s[0:1], 64")
    a.I("""
    s_and_b32 s3, s2, 7
    s_lshr_b32 s30, s2, 3
    s_lshr_b32 s31, s3, 2
    s_and_b32 s20, s3, 1
    s_lshl_b32 s20, s20, 2
    s_and_b32 s23, s30, 3
    s_add_u32 s20, s20, s23
    s_lshr_b32 s21, s3, 1
    s_and_b32 s21, s21, 1
    s_lshl_b32 s21, s21, 3
    s_lshr_b32 s23, s30, 2
    s_add_u32 s21, s21, s23
    s_cmp_ge_u32 s21, 15
    """)
    lx = a.newlabel("k1_idle")
    a.I(f"s_cbranch_scc1 {lx}")
    a.I("""
    s_mul_i32 s32, s21, 52
    s_lshr_b32 s32, s32, 8
    s_mul_i32 s23, s32, 5
    s_sub_u32 s33, s21, s23
    v_lshrrev_b32 v13, 6, v0
    v_and_b32 v1, 63, v0
    """)
    a.I("v_readfirstlane_b32 s22, v13")
    a.I("s_waitcnt lgkmcnt(0)")
    pf.stamp("kernarg")
    a.I("s_cmp_eq_u32 s31, 0")
    for i in range(4): a.I(f"s_cselect_b32 s{4+i}, s{4+i}, s{44+i}")
    srd(a, 8, 4, 5, 2621440)
    srd(a, 12, 6, 7, 2457600)
    srd(a, 16, 28, 29, WS_REC, WS0)
    lh = a.newlabel("k1_main")
    n0h = (pf.n, list(pf.names))
    a.I("s_cmp_lt_u32 s22, 8")
    a.I(f"s_cbranch_scc1 {lh}")
    loader_wave(a, pf)
    pf.n, pf.names = n0h[0], list(n0h[1])
    a.L(lh)
    lcol = a.newlabel("k1_col"); lepi = a.newlabel("k1_epi")
    def addr_setup():
        a.I(f"""
        s_lshr_b32 s36, s22, 1
        s_and_b32 s37, s22, 1
        v_lshrrev_b32 v13, 4, v1
        v_bfe_u32 v14, v1, 2, 2
        v_lshl_add_u32 v15, v13, 3, v14
        v_lshlrev_b32 v15, 8, v15
        v_and_b32 v16, 3, v1
        v_lshl_add_u32 v15, v16, 3, v15
        v_and_b32 v16, 1, v13
        v_lshl_or_b32 v16, v16, 2, v14
        s_lshl_b32 s38, s37, 2
        """)
        for j in range(4):
            a.I(f"s_add_u32 s39, s38, {j}")
            a.I(f"v_xor_b32 v17, s39, v16")
            a.I(f"v_lshl_add_u32 v{V_T+j}, v17, 5, v15")
        a.I(f"""
        v_and_b32 v14, 15, v1
        v_lshrrev_b32 v15, 1, v14
        v_xor_b32 v15, v15, v13
        s_lshl_b32 s39, s36, 13
        s_add_u32 s39, s39, {XB}
        v_lshlrev_b32 v16, 7, v14
        v_add_u32 v16, s39, v16
        v_lshl_add_u32 v{V_XR}, v15, 4, v16
        v_xor_b32 v{V_XR+1}, 64, v{V_XR}
        v_add_u32 v{V_XR2}, 0x10000, v{V_XR}
        v_add_u32 v{V_XR2+1}, 0x10000, v{V_XR+1}
        """)
        a.I(f"""
        s_mul_i32 s40, s31, 3
        s_sub_u32 s40, s32, s40
        s_add_u32 s40, s40, 3
        s_mul_i32 s40, s40, {BUF}
        s_lshl_b32 s41, s20, 3
        s_lshl_b32 s39, s36, 1
        s_add_u32 s41, s41, s39
        s_mul_i32 s41, s41, 1280
        s_add_u32 s40, s40, s41
        """)
    def addr_row():
        a.I(f"""
        s_lshl_b32 s39, s33, 5
        s_lshl_b32 s41, s37, 4
        s_add_u32 s39, s39, s41
        v_add_u32 v15, s39, v13
        v_lshlrev_b32 v16, 4, v14
        v_add_u32 v16, s40, v16
        """)
        for j in range(4):
            a.I(f"""
            v_add_u32 v17, {4*j}, v15
            v_mul_u32_u24 v18, 205, v17
            v_lshrrev_b32 v18, 10, v18
            v_mul_u32_u24 v18, 80640, v18
            v_lshl_add_u32 v17, v17, 8, v16
            v_add_u32 v{V_F+j}, v17, v18
            """)
    def addr_col():
        a.I(f"""
        s_lshl_b32 s39, s33, 7
        s_lshl_b32 s41, s37, 6
        s_add_u32 s39, s39, s41
        v_add_u32 v15, s39, v14
        v_mul_u32_u24 v16, 320, v13
        v_add_u32 v16, s40, v16
        """)
        for j in range(4):
            a.I(f"""
            v_add_u32 v17, {16*j}, v15
            v_mul_u32_u24 v18, 3277, v17
            v_lshrrev_b32 v18, 16, v18
            v_mul_u32_u24 v18, 81600, v18
            v_lshl_add_u32 v17, v17, 4, v16
            v_add_u32 v{V_F+j}, v17, v18
            """)
    def finish_addr():
        for j in range(4): a.I(f"v_mov_b32 v{V_A+j}, v{V_F+j}")
    a.I("s_cmp_gt_u32 s32, s31")
    a.I(f"s_cbranch_scc1 {lcol}")
    n0 = (pf.n, list(pf.names))
    for rowlane in (True, False):
        pf.n, pf.names = n0[0], list(n0[1])
        if not rowlane: a.L(lcol)
        g = main_loop(a, rowlane, pf)
        next(g)
        addr_setup()
        (addr_row if rowlane else addr_col)()
        finish_addr()
        for _ in g: pass
        if rowlane: a.I(f"s_branch {lepi}")
    a.L(lepi)
    a.I("s_waitcnt vmcnt(0)")
    pf.stamp("mainend")
    lnp = a.newlabel("k1_nophi"); lst = a.newlabel("k1_plain"); ldn = a.newlabel("k1_done")
    a.I("s_cmp_lg_u32 s31, 0")
    a.I(f"s_cbranch_scc1 {lnp}")
    a.I("s_cmp_ge_u32 s32, 2")
    a.I(f"s_cbranch_scc1 {lst}")
    epilogue(a, "phi")
    a.I(f"s_branch {ldn}")
    a.L(lnp)
    a.I("s_cmp_lg_u32 s32, 0")
    a.I(f"s_cbranch_scc1 {lst}")
    epilogue(a, "scale")
    a.I(f"s_branch {ldn}")
    a.L(lst)
    epilogue(a, "none")
    a.L(ldn)
    pf.stamp("stored")
    if PROFILE: a.I("s_waitcnt vmcnt(0)")
    pf.finish(16, 22)
    a.I("s_endpgm")
    a.L(lx)
    lnt = a.newlabel("k1_spare_nt")
    a.I("v_lshrrev_b32 v13, 6, v0")
    a.I("v_and_b32 v1, 63, v0")
    a.I("v_readfirstlane_b32 s22, v13")
    a.I("s_waitcnt lgkmcnt(0)")
    a.I("s_cmp_lg_u32 s22, 0")
    a.I(f"s_cbranch_scc1 {lnt}")
    a.I("s_cmp_eq_u32 s31, 0")
    for i in range(4): a.I(f"s_cselect_b32 s{4+i}, s{4+i}, s{44+i}")
    srd(a, 8, 4, 5, 2621440)
    srd(a, 12, 6, 7, 2457600)
    touch_setup(a)
    touch_ops(a, 0, 8, 9)
    touch_ops(a, 1, 10, 11)
    for b in range(2, 10):
        a.I("s_waitcnt vmcnt(2)")
        touch_ops(a, b, 8 + 2*(b & 1), 9 + 2*(b & 1))
    a.I("s_waitcnt vmcnt(0)")
    a.L(lnt)
    if os.environ.get("WO_PF", "1") == "1":
        a.I("s_load_dwordx2 s[48:49], s[0:1], 16")
        a.I("s_load_dwordx2 s[50:51], s[0:1], 40")
        a.I("""
        s_and_b32 s20, s3, 1
        s_and_b32 s21, s30, 3
        s_lshl_b32 s21, s21, 1
        s_add_u32 s20, s20, s21
        s_mul_i32 s20, s20, 102400
        v_lshlrev_b32 v2, 7, v0
        v_add_u32 v2, s20, v2
        """)
        a.I("s_waitcnt lgkmcnt(0)")
        a.I("s_cmp_eq_u32 s31, 0")
        a.I("s_cselect_b32 s4, s48, s50")
        a.I("s_cselect_b32 s5, s49, s51")
        srd(a, 8, 4, 5, 819200)
        a.I("buffer_load_dword v4, v2, s[8:11], 0 offen")
        a.I("s_mov_b32 s21, 73728")
        a.I("v_cmp_gt_u32 vcc, 224, v0")
        a.I("s_and_saveexec_b64 s[22:23], vcc")
        lz = a.newlabel("k1_pfz")
        a.I(f"s_cbranch_execz {lz}")
        a.I("buffer_load_dword v5, v2, s[8:11], s21 offen")
        a.L(lz)
        a.I("s_mov_b64 exec, -1")
        a.I("s_waitcnt vmcnt(0)")
    a.L(le)
    a.I("s_endpgm")
    a.raw(kd(name, K1_VGPRS))
```

```python
from common import *

LK = 0
LV = 16*1280
K2_LDS = 32*1280
VAKM=2; VAKT=3; VAV=4; VAO=5; VAOT=6; VL=7
VC=16; VS=(32,48); VO=64; VQM=80; VQT=84
VKM=(86,90); VKT=(94,96); VV=(98,102); VP=106
K2_VGPRS=128
MASK20 = (0x000FFFFF, 0x000FFFFF)

def kappa_code(a, m, dst, tmp):
    a.I(f"""
    v_and_b32 v{dst}, 7, v{m}
    v_bfe_u32 v{tmp}, v{m}, 3, 1
    v_lshl_or_b32 v{dst}, v{tmp}, 4, v{dst}
    v_bfe_u32 v{tmp}, v{m}, 4, 1
    v_lshl_or_b32 v{dst}, v{tmp}, 3, v{dst}
    """)

def key_of_reg(r):
    s_, b, i = r >> 3, (r >> 2) & 1, r & 3
    return 16*b + 8*s_ + i

def normalize_store(a, O, P, add_eps, so, off=0, check=None):
    a.I(f"v_cndmask_b32 v{VL}, v{O+8}, v{O+12}, s[38:39]")
    if add_eps: a.I(f"v_add_f32 v{VL}, s43, v{VL}")
    if check: check()
    a.I(f"v_rcp_f32 v8, v{VL}")
    for i in range(12): a.I(f"v_mul_f32 v{O+i}, v8, v{O+i}")
    for i in range(6): a.I(f"v_cvt_pk_bf16_f32 v{P+i}, v{O+2*i}, v{O+2*i+1}")
    a.I(f"buffer_store_dwordx4 {v(P,4)}, v{VAO}, s[16:19], {so} offen offset:{off}{sfx(ST_K2)}")
    a.I(f"buffer_store_dwordx2 {v(P+4,2)}, v{VAOT}, s[16:19], {so} offen offset:{off}{sfx(ST_K2)}")

def out_addr(a, stile):
    a.I(f"""
    s_mul_i32 s36, {stile}, 1280
    v_lshlrev_b32 v14, 4, v1
    v_add_u32 v{VAO}, s36, v14
    v_lshlrev_b32 v14, 3, v12
    v_add_u32 v14, s36, v14
    v_add_u32 v14, 1024, v14
    v_mov_b32 v15, {OOB:#x}
    v_cndmask_b32 v{VAOT}, v15, v14, s[38:39]
    """)

def q_addr(a, dst):
    a.I(f"""
    v_and_b32 v13, 15, v1
    v_lshlrev_b32 v13, 4, v13
    v_bfe_u32 v14, v1, 4, 1
    v_lshl_add_u32 v13, v14, 3, v13
    v_lshl_add_u32 v13, v11, 8, v13
    v_add_u32 v{dst}, s36, v13
    """)

def gen_lin(a, pf, le):
    A0 = 16
    D = 80
    KVM = 96; KVT = 100
    PQ = 16
    O = (64, 80); P = (102, 108)
    a.I("""
    v_lshrrev_b32 v12, 6, v0
    v_and_b32 v1, 63, v0
    """)
    a.I("v_readfirstlane_b32 s22, v12")
    a.I("""
    v_lshrrev_b32 v11, 5, v1
    v_and_b32 v12, 31, v1
    v_cmp_gt_u32 s[38:39], 32, v1
    s_lshl_b32 s26, s2, 6
    s_lshl_b32 s23, s22, 3
    s_add_u32 s26, s26, s23
    s_mul_i32 s36, s26, 1280
    v_mul_u32_u24 v13, 320, v11
    v_lshl_add_u32 v13, v12, 4, v13
    v_add_u32 v9, s36, v13
    """)
    for t in range(4):
        for k in range(8): a.I(f"v_mov_b32 v{A0+16*t+k}, 0")
        for k in range(8): a.I(f"v_mov_b32 v{A0+16*t+8+k}, 0x3f803f80")
    a.I("s_waitcnt lgkmcnt(0)")
    srd(a, 16, 28, 29, WS_REC, WS0)
    a.I(f"s_mov_b32 s30, {WS_PK}")
    a.I(f"s_mov_b32 s31, {WS_VA}")
    def load_tile(i):
        r = A0 + 16*(i % 4)
        if i*1280 + 640 + 16 > 4095:
            pass
        for s_ in range(2):
            a.I(f"buffer_load_dwordx4 {v(r+4*s_,4)}, v9, s[16:19], s30 offen offset:{s_*640}")
            a.I(f"buffer_load_dwordx4 {v(r+8+4*s_,4)}, v9, s[16:19], s31 offen offset:{s_*640}")
        a.I("s_add_u32 s30, s30, 1280")
        a.I("s_add_u32 s31, s31, 1280")
    a.I(f"s_mov_b32 exec_lo, {MASK20[0]:#x}")
    a.I(f"s_mov_b32 exec_hi, {MASK20[1]:#x}")
    for i in range(4): load_tile(i)
    a.I("s_mov_b64 exec, -1")
    pf.stamp("issued")
    for i in range(8):
        r = A0 + 16*(i % 4)
        n_after = 4*min(3, 7 - i)
        a.I(f"s_waitcnt vmcnt({n_after})")
        for s_ in range(2):
            c = "0" if (i == 0 and s_ == 0) else v(D,16)
            a.I(f"v_mfma_f32_32x32x16_bf16 {v(D,16)}, {v(r+4*s_,4)}, {v(r+8+4*s_,4)}, {c}")
        if i + 4 < 8:
            a.I(f"s_mov_b32 exec_lo, {MASK20[0]:#x}")
            a.I(f"s_mov_b32 exec_hi, {MASK20[1]:#x}")
            load_tile(i + 4)
            a.I("s_mov_b64 exec, -1")
    pf.stamp("kv")
    q_addr(a, 10)
    for i in range(8):
        a.I(f"v_mov_b32 v{PQ+6*i+4}, 0")
        a.I(f"v_mov_b32 v{PQ+6*i+5}, 0")
    a.I(f"s_mov_b32 s30, {WS_PQ}")
    for i in range(8):
        r = PQ + 6*i
        a.I(f"buffer_load_dwordx2 {v(r,2)}, v10, s[16:19], s30 offen")
        a.I(f"buffer_load_dwordx2 {v(r+2,2)}, v10, s[16:19], s30 offen offset:512")
        a.I("s_mov_b32 exec_hi, 0")
        a.I(f"buffer_load_dwordx2 {v(r+4,2)}, v10, s[16:19], s30 offen offset:1024")
        a.I("s_mov_b32 exec_hi, -1")
        a.I("s_add_u32 s30, s30, 1280")
    a.I("s_mul_i32 s40, s22, 3072")
    a.I("v_lshlrev_b32 v8, 4, v1")
    a.I("v_add_u32 v14, s40, v8")
    for g in range(3): a.I(f"ds_write_b128 v14, {v(D+4*g,4)} offset:{g*1024}")
    a.I("s_waitcnt lgkmcnt(0)")
    a.I("s_barrier")
    nored = a.newlabel("k2a_nored")
    LR = 8*3072
    a.I("s_cmp_ge_u32 s22, 3")
    a.I(f"s_cbranch_scc1 {nored}")
    R = 64
    a.I("s_lshl_b32 s40, s22, 10")
    a.I("v_add_u32 v14, s40, v8")
    for k in range(8): a.I(f"ds_read_b128 {v(R+4*k,4)}, v14 offset:{k*3072}")
    for k in range(1, 8):
        a.I(f"s_waitcnt lgkmcnt({7-k})")
        for i in range(4): a.I(f"v_add_f32 v{R+i}, v{R+i}, v{R+4*k+i}")
    a.I(f"v_cvt_pk_bf16_f32 v{R}, v{R}, v{R+1}")
    a.I(f"v_cvt_pk_bf16_f32 v{R+1}, v{R+2}, v{R+3}")
    a.I(f"""
    s_lshl_b32 s41, s22, 3
    s_add_u32 s41, s41, {LR}
    v_add_u32 v14, s41, v8
    v_lshlrev_b32 v15, 3, v1
    v_add_u32 v15, {LR + 1024}, v15
    s_cmp_eq_u32 s22, 2
    s_cselect_b64 s[46:47], -1, 0
    v_cndmask_b32 v14, v14, v15, s[46:47]
    """)
    a.I(f"ds_write_b64 v14, {v(R,2)}")
    a.I("s_waitcnt lgkmcnt(0)")
    a.L(nored)
    a.I("s_barrier")
    a.I(f"v_add_u32 v14, {LR}, v8")
    a.I(f"v_lshlrev_b32 v15, 3, v1")
    a.I(f"ds_read_b128 {v(KVM,4)}, v14")
    a.I(f"ds_read_b64 {v(KVT,2)}, v15 offset:{LR+1024}")
    out_addr(a, "s26")
    a.I(f"s_mov_b32 s43, {f2u(1e-6):#x}")
    a.I(f"s_mov_b32 s48, {WS_OA}")
    a.I("s_waitcnt lgkmcnt(0)")
    pf.stamp("reduced")
    def ap(i):
        r = PQ + 6*i
        a.I(f"s_waitcnt vmcnt({3*(7-i) + 2*max(0, i-1)})")
        a.I(f"v_mfma_f32_32x32x16_bf16 {v(O[i&1],16)}, {v(KVM,4)}, {v(r,4)}, 0")
        a.I(f"v_mfma_f32_32x32x8bf16_1k {v(O[i&1],16)}, {v(KVT,2)}, {v(r+4,2)}, {v(O[i&1],16)}")
    ap(0)
    for i in range(8):
        if i < 7: ap(i+1)
        normalize_store(a, O[i&1], P[i&1], True, "s48")
        a.I("s_add_u32 s48, s48, 1280")
    if PROFILE: a.I("s_waitcnt vmcnt(0)")
    pf.finish(16, 22)
    a.I("s_endpgm")

def gen_k2(a, name):
    a.raw(f".globl {name}\n.p2align 8\n.type {name},@function")
    a.L(name)
    le = a.newlabel("k2_end"); lsw = a.newlabel("k2_sw")
    a.I("s_cmp_ge_u32 s2, 288")
    a.I(f"s_cbranch_scc1 {le}")
    pf = Prof(a, 1); pf.start()
    a.I("s_load_dwordx2 s[28:29], s[0:1], 64")
    a.I("s_cmp_ge_u32 s2, 32")
    a.I(f"s_cbranch_scc1 {lsw}")
    n0 = (pf.n, list(pf.names))
    gen_lin(a, pf, le)
    pf.n, pf.names = n0
    a.L(lsw)
    a.I("""
    s_sub_u32 s3, s2, 32
    s_and_b32 s20, s3, 7
    s_lshr_b32 s23, s3, 6
    s_lshl_b32 s23, s23, 3
    s_add_u32 s20, s20, s23
    s_lshr_b32 s21, s3, 3
    s_and_b32 s21, s21, 7
    v_lshrrev_b32 v12, 6, v0
    v_and_b32 v1, 63, v0
    """)
    a.I("v_readfirstlane_b32 s22, v12")
    a.I("""
    s_lshl_b32 s24, s20, 6
    s_lshl_b32 s23, s21, 3
    s_add_u32 s24, s24, s23
    s_cmp_eq_u32 s21, 0
    s_cselect_b32 s23, 0, 8
    s_sub_u32 s25, s24, s23
    s_add_u32 s26, s24, s22
    v_lshlrev_b32 v8, 4, v1
    v_lshrrev_b32 v11, 5, v1
    v_and_b32 v12, 31, v1
    s_mul_i32 s36, s26, 1280
    """)
    q_addr(a, 10)
    a.I("s_waitcnt lgkmcnt(0)")
    pf.stamp('kernarg')
    srd(a, 16, 28, 29, WS_REC, WS0)
    a.I(f"v_mov_b32 v{VQT}, 0")
    a.I(f"v_mov_b32 v{VQT+1}, 0")
    a.I(f"buffer_load_dwordx2 {v(VQM,2)}, v10, s[16:19], 0 offen")
    a.I(f"buffer_load_dwordx2 {v(VQM+2,2)}, v10, s[16:19], 0 offen offset:512")
    a.I("s_mov_b32 exec_hi, 0")
    a.I(f"buffer_load_dwordx2 {v(VQT,2)}, v10, s[16:19], 0 offen offset:1024")
    a.I("s_mov_b32 exec_hi, -1")
    a.I(f"""
    s_mul_i32 s30, s25, 1280
    s_mul_i32 s31, s24, 1280
    """)
    for j in range(5):
        a.I(f"""
        s_add_u32 s32, s22, {8*j}
        s_mul_i32 s33, s32, 52
        s_lshr_b32 s33, s33, 9
        s_mul_i32 s34, s33, 10
        s_sub_u32 s34, s32, s34
        s_lshl_b32 s34, s34, 10
        s_bitcmp1_b32 s33, 0
        s_cselect_b32 s35, s31, s30
        s_add_u32 s34, s34, s35
        s_cmp_ge_u32 s33, 2
        s_mov_b32 s35, {WS_KB}
        s_mov_b32 s37, {WS_VB}
        s_cselect_b32 s35, s37, s35
        s_add_u32 s34, s34, s35
        s_lshl_b32 m0, s32, 10
        """)
        a.I("buffer_load_dwordx4 v8, s[16:19], s34 offen lds")
    pf.stamp("issued")
    a.I("v_cmp_gt_u32 s[38:39], 32, v1")
    kappa_code(a, 12, 13, 14)
    a.I(f"""
    s_mul_i32 s41, s22, 1280
    v_and_b32 v14, 15, v13
    v_lshlrev_b32 v14, 4, v14
    v_lshrrev_b32 v15, 4, v13
    v_lshl_add_u32 v14, v15, 3, v14
    v_add_u32 v{VAKT}, s41, v14
    v_lshl_add_u32 v{VAKM}, v11, 8, v{VAKT}
    """)
    a.I(f"""
    v_mul_u32_u24 v15, 320, v11
    v_lshl_add_u32 v14, v12, 4, v15
    s_add_u32 s41, s41, {LV}
    v_add_u32 v{VAV}, s41, v14
    """)
    out_addr(a, "s26")
    for k in range(8): a.I(f"v_mov_b32 v{VV[0]+k}, 0x3f803f80")
    def make_mask(first):
        a.I(f"""
        v_lshlrev_b32 v14, 2, v11
        v_sub_u32 v14, v12, v14
        v_mov_b32 v15, {NEG_INF:#x}
        """)
        for r in range(16):
            pr = 46 + 2*(r & 1)
            a.I(f"v_cmp_gt_i32 s[{pr}:{pr+1}], {key_of_reg(r)}, v14")
            if first: a.I(f"v_cndmask_b32 v{VC+r}, v15, 0, s[{pr}:{pr+1}]")
            else:     a.I(f"v_cndmask_b32 v{VC+r}, 0, v15, s[{pr}:{pr+1}]")
    l0 = a.newlabel("k2_r0"); l1 = a.newlabel("k2_r1")
    a.I("s_mov_b32 s27, 0")
    a.I("s_cmp_lg_u32 s21, 0")
    a.I(f"s_cbranch_scc1 {l0}")
    a.I("s_sub_u32 s27, 8, s22")
    for r in range(16): a.I(f"v_mov_b32 v{VC+r}, {NEG_INF:#x}")
    a.I(f"s_branch {l1}")
    a.L(l0)
    make_mask(True)
    a.L(l1)
    pf.stamp("masks")
    a.I("s_waitcnt vmcnt(0)")
    a.I("s_barrier")
    pf.stamp("first")
    def rdK(i):
        a.I(f"ds_read_b64 {v(VKM[i&1],2)}, v{VAKM} offset:{LK + i*1280}")
        a.I(f"ds_read_b64 {v(VKM[i&1]+2,2)}, v{VAKM} offset:{LK + i*1280 + 512}")
        a.I(f"ds_read_b64 {v(VKT[i&1],2)}, v{VAKT} offset:{LK + i*1280 + 1024}")
    def rdV(i):
        a.I(f"s_mov_b32 exec_lo, {MASK20[0]:#x}")
        a.I(f"s_mov_b32 exec_hi, {MASK20[1]:#x}")
        a.I(f"ds_read_b128 {v(VV[0],4)}, v{VAV} offset:{i*1280}")
        a.I(f"ds_read_b128 {v(VV[1],4)}, v{VAV} offset:{i*1280 + 640}")
        a.I("s_mov_b64 exec, -1")
    def qk(i, wn=0):
        S = VS[i & 1]
        a.I(f"s_waitcnt lgkmcnt({wn})")
        if i == 0 or i == 8:
            a.I(f"v_mfma_f32_32x32x16_bf16 {v(S,16)}, {v(VKM[i&1],4)}, {v(VQM,4)}, {v(VC,16)}")
        else:
            ln = a.newlabel("k2_neg"); lj = a.newlabel("k2_join")
            a.I(f"s_cmp_gt_u32 s27, {i}")
            a.I(f"s_cbranch_scc1 {ln}")
            a.I(f"v_mfma_f32_32x32x16_bf16 {v(S,16)}, {v(VKM[i&1],4)}, {v(VQM,4)}, 0")
            a.I(f"s_branch {lj}")
            a.L(ln)
            a.I(f"v_mfma_f32_32x32x16_bf16 {v(S,16)}, {v(VKM[i&1],4)}, {v(VQM,4)}, {v(VC,16)}")
            a.L(lj)
        a.I(f"v_mfma_f32_32x32x8bf16_1k {v(S,16)}, {v(VKT[i&1],2)}, {v(VQT,2)}, {v(S,16)}")
    rdK(0); rdK(1); rdV(0)
    qk(0, 5)
    for i in range(9):
        S = VS[i & 1]
        if i == 7:
            make_mask(False)
        if i < 8:
            qk(i+1, 2)
            if i + 2 <= 8: rdK(i+2)
        for hfs in range(2):
            for k in range(8): a.I(f"v_exp_f32 v{S+8*hfs+k}, v{S+8*hfs+k}")
            for k in range(4): a.I(f"v_cvt_pk_bf16_f32 v{VP+4*hfs+k}, v{S+8*hfs+2*k}, v{S+8*hfs+2*k+1}")
            if hfs == 0: a.I(f"s_waitcnt lgkmcnt({3 if i + 2 <= 8 else 0})")
            c = "0" if (i == 0 and hfs == 0) else v(VO,16)
            a.I(f"v_mfma_f32_32x32x16_bf16 {v(VO,16)}, {v(VV[hfs],4)}, {v(VP+4*hfs,4)}, {c}")
        if i < 8: rdV(i+1)
    pf.stamp("mainend")
    slow = a.newlabel("k2_slow"); fin = a.newlabel("k2_fin")
    def check():
        a.I(f"v_mov_b32 v9, 0")
        for i in range(12): a.I(f"v_fma_f32 v9, v{VO+i}, 0, v9")
        a.I(f"s_mov_b32 s50, {f2u(2.0**-64):#x}")
        a.I(f"s_mov_b32 s51, {f2u(2.0**64):#x}")
        a.I(f"v_cmp_nge_f32 s[52:53], v{VL}, s50")
        a.I(f"v_cmp_nle_f32 s[54:55], v{VL}, s51")
        a.I(f"v_cmp_u_f32 s[56:57], v9, v9")
        a.I("s_or_b64 s[52:53], s[52:53], s[54:55]")
        a.I("s_or_b64 s[52:53], s[52:53], s[56:57]")
        a.I("s_cmp_lg_u64 s[52:53], 0")
        if os.environ.get("FORCE_SLOW") == "1": a.I("s_cmp_eq_u32 s22, s22")
        a.I(f"s_cbranch_scc1 {slow}")
        a.L(fin)
    a.I(f"s_mov_b32 s60, {WS_OB}")
    normalize_store(a, VO, VP, False, "s60", 0, check)
    if PROFILE: a.I("s_waitcnt vmcnt(0)")
    pf.finish(16, 22)
    a.I("s_endpgm")
    a.L(slow)
    S = VS[0]
    def slow_scores():
        lm = a.newlabel("k2s_m"); lf = a.newlabel("k2s_f"); ll = a.newlabel("k2s_l"); ln = a.newlabel("k2s_n"); lj = a.newlabel("k2s_j")
        a.I(f"s_mul_i32 s59, s58, 1280")
        a.I(f"v_add_u32 v9, s59, v{VAKM}")
        a.I(f"v_add_u32 v10, s59, v{VAKT}")
        a.I(f"ds_read_b64 {v(VKM[0],2)}, v9 offset:{LK}")
        a.I(f"ds_read_b64 {v(VKM[0]+2,2)}, v9 offset:{LK+512}")
        a.I(f"ds_read_b64 {v(VKT[0],2)}, v10 offset:{LK+1024}")
        a.I("s_cmp_eq_u32 s58, 8")
        a.I(f"s_cbranch_scc1 {ll}")
        a.I("s_cmp_gt_u32 s27, s58")
        a.I(f"s_cbranch_scc1 {ln}")
        a.I("s_cmp_eq_u32 s58, 0")
        a.I(f"s_cbranch_scc1 {lf}")
        for r in range(16): a.I(f"v_mov_b32 v{VC+r}, 0")
        a.I(f"s_branch {lj}")
        a.L(ln)
        for r in range(16): a.I(f"v_mov_b32 v{VC+r}, {NEG_INF:#x}")
        a.I(f"s_branch {lj}")
        a.L(lf)
        make_mask(True)
        a.I(f"s_branch {lj}")
        a.L(ll)
        make_mask(False)
        a.L(lj)
        a.I("s_waitcnt lgkmcnt(0)")
        a.I("s_nop 1")
        a.I(f"v_mfma_f32_32x32x16_bf16 {v(S,16)}, {v(VKM[0],4)}, {v(VQM,4)}, {v(VC,16)}")
        a.I(f"v_mfma_f32_32x32x8bf16_1k {v(S,16)}, {v(VKT[0],2)}, {v(VQT,2)}, {v(S,16)}")
        a.I("s_nop 15")
    VM = 13
    a.I(f"v_mov_b32 v{VM}, {NEG_INF:#x}")
    a.I("s_mov_b32 s58, 0")
    lp1 = a.newlabel("k2s_p1")
    a.L(lp1)
    slow_scores()
    for r in range(16): a.I(f"v_max_f32 v{VM}, v{VM}, v{S+r}")
    a.I("s_add_u32 s58, s58, 1")
    a.I("s_cmp_le_u32 s58, 8")
    a.I(f"s_cbranch_scc1 {lp1}")
    a.I(f"v_mov_b32 v9, v{VM}")
    a.I("s_nop 1")
    a.I(f"v_permlane32_swap_b32 v9, v{VM}")
    a.I("s_nop 1")
    a.I(f"v_max_f32 v{VM}, v{VM}, v9")
    for r in range(16): a.I(f"v_mov_b32 v{VO+r}, 0")
    a.I("s_mov_b32 s58, 0")
    lp2 = a.newlabel("k2s_p2")
    a.L(lp2)
    slow_scores()
    a.I(f"s_mul_i32 s59, s58, 1280")
    a.I(f"v_add_u32 v9, s59, v{VAV}")
    a.I(f"s_mov_b32 exec_lo, {MASK20[0]:#x}")
    a.I(f"s_mov_b32 exec_hi, {MASK20[1]:#x}")
    a.I(f"ds_read_b128 {v(VV[0],4)}, v9")
    a.I(f"ds_read_b128 {v(VV[1],4)}, v9 offset:640")
    a.I("s_mov_b64 exec, -1")
    for r in range(16): a.I(f"v_sub_f32 v{S+r}, v{S+r}, v{VM}")
    for r in range(16): a.I(f"v_exp_f32 v{S+r}, v{S+r}")
    a.I("s_nop 0")
    for k in range(8): a.I(f"v_cvt_pk_bf16_f32 v{VP+k}, v{S+2*k}, v{S+2*k+1}")
    a.I("s_waitcnt lgkmcnt(0)")
    a.I("s_nop 1")
    for hfs in range(2):
        a.I(f"v_mfma_f32_32x32x16_bf16 {v(VO,16)}, {v(VV[hfs],4)}, {v(VP+4*hfs,4)}, {v(VO,16)}")
    a.I("s_nop 15")
    a.I("s_add_u32 s58, s58, 1")
    a.I("s_cmp_le_u32 s58, 8")
    a.I(f"s_cbranch_scc1 {lp2}")
    a.I(f"v_cndmask_b32 v{VL}, v{VO+8}, v{VO+12}, s[38:39]")
    a.I("s_nop 1")
    a.I(f"s_branch {fin}")
    a.L(le)
    a.I("s_endpgm")
    a.raw(kd(name, K2_VGPRS))
```

```python
from common import *

K3_LDS = 102400 + 512
RING = 4
V_OM=2; V_OT=3; V_T0=4; V_T1=5; V_OUT=6; V_OUT2=7
V_WM=8
V_RING=20
V_ACC=36
V_O=76
K3_VGPRS=240
def acc(t, rt): return V_ACC + (t*2+rt)*4
def oreg(s_, rt): return V_O + (s_*2+rt)*4

def gen_k3(a, name):
    a.raw(f".globl {name}\n.p2align 8\n.type {name},@function")
    a.L(name)
    le = a.newlabel("k3_end"); lb = a.newlabel("k3_b"); lj = a.newlabel("k3_j")
    a.I("s_cmp_ge_u32 s2, 256")
    a.I(f"s_cbranch_scc1 {le}")
    pf = Prof(a, 2); pf.start()
    a.I("s_load_dwordx4 s[24:27], s[0:1], 40")
    a.I("s_load_dwordx2 s[4:5], s[0:1], 16")
    a.I("s_load_dwordx2 s[28:29], s[0:1], 64")
    a.I("""
    s_and_b32 s3, s2, 7
    s_lshr_b32 s30, s2, 3
    s_lshr_b32 s44, s3, 2
    s_and_b32 s20, s3, 3
    s_lshl_b32 s20, s20, 2
    s_and_b32 s23, s30, 3
    s_add_u32 s20, s20, s23
    s_lshr_b32 s21, s30, 2
    v_lshrrev_b32 v18, 6, v0
    v_and_b32 v1, 63, v0
    """)
    a.I("v_readfirstlane_b32 s22, v18")
    a.I(f"""
    s_lshl_b32 s31, s20, 2
    s_add_u32 s31, s31, s22
    s_mul_i32 s32, s31, 1280
    s_cmp_eq_u32 s44, 0
    s_mov_b32 s33, {WS_OA}
    s_mov_b32 s34, {WS_OB}
    s_cselect_b32 s33, s33, s34
    s_add_u32 s32, s32, s33
    v_lshrrev_b32 v18, 4, v1
    v_and_b32 v19, 15, v1
    """)
    a.I(f"""
    v_lshrrev_b32 v20, 1, v18
    v_mul_u32_u24 v20, 81920, v20
    v_and_b32 v21, 1, v18
    v_lshl_add_u32 v20, v21, 9, v20
    v_lshl_add_u32 v20, v19, 4, v20
    v_add_u32 v{V_OM}, s32, v20
    v_mul_u32_u24 v20, {2*81920}, v18
    v_lshl_add_u32 v20, v19, 3, v20
    v_add_u32 v20, s32, v20
    v_add_u32 v{V_OT}, 1024, v20
    s_mul_i32 s35, s21, 160
    """)
    for q in range(5):
        a.I(f"""
        v_add_u32 v20, {64*q}, v1
        v_mul_u32_u24 v21, 6554, v20
        v_lshrrev_b32 v21, 16, v21
        v_mul_u32_u24 v22, 10, v21
        v_sub_u32 v22, v20, v22
        v_lshlrev_b32 v22, 4, v22
        v_add_u32 v22, s35, v22
        v_lshrrev_b32 v23, 4, v21
        v_lshl_add_u32 v24, v23, 2, v21
        v_mul_u32_u24 v24, 1280, v24
        v_add_u32 v{V_WM+q}, v24, v22
        v_lshlrev_b32 v23, 1, v23
        v_bfe_u32 v24, v21, 2, 1
        v_add_u32 v23, v23, v24
        v_mul_u32_u24 v23, 40, v23
        v_bfe_u32 v24, v21, 3, 1
        v_mul_u32_u24 v24, 20, v24
        v_add_u32 v23, v23, v24
        v_and_b32 v24, 3, v21
        v_add3_u32 v23, v23, v24, 16
        v_mul_u32_u24 v23, 1280, v23
        v_add_u32 v{V_WM+5+q}, v23, v22
        """)
    a.I("s_waitcnt lgkmcnt(0)")
    pf.stamp("kernarg")
    a.I("s_cmp_eq_u32 s44, 0")
    a.I("s_cselect_b32 s4, s4, s24")
    a.I("s_cselect_b32 s5, s5, s25")
    srd(a, 8, 4, 5, 819200)
    srd(a, 16, 28, 29, WS_REC, WS0)
    srd(a, 12, 26, 27, 5242880)
    vm = VmTrack()
    a.I("s_mul_i32 s36, s22, 5120")
    a.I("s_mul_i32 s37, s22, 51200")
    a.I("s_mul_i32 s38, s22, 204800")
    def ops_w(g):
        out = []
        for q in range(5):
            t = []
            if g < 4 and q == 0: t.append(f"s_add_u32 s39, s37, {g*4*51200}")
            t.append(f"s_add_u32 m0, s36, {g*4*5120 + q*1024}")
            so = "s39" if g < 4 else "s38"
            vw = V_WM + q + (0 if g < 4 else 5)
            t.append(f"buffer_load_dwordx4 v{vw}, s[8:11], {so} offen lds")
            out.append((t, ("W", g)))
        return out
    def ops_o(s_):
        out = []
        if s_ < 16:
            for rt in range(2):
                t = [f"s_mov_b32 s40, {s_*163840}"] if rt == 0 else []
                t.append(f"buffer_load_dwordx4 {v(oreg(s_,rt),4)}, v{V_OM}, s[16:19], s40 offen offset:{rt*256}")
                out.append((t, ("O", s_)))
        else:
            for u in range(2):
                for rt in range(2):
                    t = [f"s_mov_b32 s40, {(s_-16)*655360 + u*81920}"] if rt == 0 else []
                    t.append(f"buffer_load_dwordx2 {v(oreg(s_,rt)+2*u,2)}, v{V_OT}, s[16:19], s40 offen offset:{rt*128}")
                    out.append((t, ("O", s_)))
        return out
    def group_ops(g):
        out = ops_w(g)
        for s_ in range(4*g, 4*g+4): out += ops_o(s_)
        return out
    def emit_op(op):
        for t in op[0]: a.I(t)
        vm.add(op[1])
    for op in group_ops(0): emit_op(op)
    a.I(f"""
    v_lshrrev_b32 v18, 5, v1
    v_lshlrev_b32 v18, 4, v18
    v_bfe_u32 v19, v1, 4, 1
    v_lshl_add_u32 v18, v19, 2, v18
    v_bfe_u32 v19, v1, 2, 2
    v_add_u32 v18, v18, v19
    v_mul_u32_u24 v18, 160, v18
    v_and_b32 v19, 3, v1
    v_lshl_add_u32 v{V_T0}, v19, 3, v18
    v_add_u32 v{V_T1}, {12*5120}, v{V_T0}
    """)
    a.I(f"""
    v_lshrrev_b32 v18, 4, v1
    v_and_b32 v19, 15, v1
    s_lshl_b32 s41, s31, 5
    v_add_u32 v19, s41, v19
    v_mul_u32_u24 v19, 2560, v19
    s_mul_i32 s42, s44, 1280
    s_add_u32 s42, s42, s35
    v_add_u32 v19, s42, v19
    v_and_b32 v20, 1, v18
    v_lshlrev_b32 v20, 5, v20
    v_lshrrev_b32 v21, 1, v18
    v_lshl_add_u32 v20, v21, 4, v20
    v_add_u32 v{V_OUT}, v19, v20
    v_lshl_add_u32 v{V_OUT2}, v18, 3, v19
    s_mov_b32 s43, {16*2560}
    """)
    for op in group_ops(1): emit_op(op)
    pf.stamp("issued")
    visible = set()
    def point(s_):
        g = s_ // 4
        need_bar = g not in visible
        n, last = vm.wait_n(lambda t: t == ("O", s_) or (need_bar and t == ("W", g)))
        a.I(f"s_waitcnt vmcnt({n})")
        if need_bar:
            a.I("s_barrier")
            for t in vm.ops[:last+1]:
                if t[0] == "W": visible.add(t[1])
    def issue_tr(n):
        s_, t = divmod(n, 5)
        base = V_T0 if s_ < 12 else V_T1
        off = (s_ % 12) * 5120 + 32*t
        r = V_RING + (n % RING)*4
        a.I(f"ds_read_b64_tr_b16 {v(r,2)}, v{base} offset:{off}")
        a.I(f"ds_read_b64_tr_b16 {v(r+2,2)}, v{base} offset:{off+1280}")
    NT = 100
    point(0)
    pf.stamp("first")
    for n in range(RING-1): issue_tr(n)
    pending = []
    for n in range(NT):
        s_, t = divmod(n, 5)
        if n in (20, 40, 60, 80): pf.stamp(f"n{n}")
        m = n + RING - 1
        if m < NT:
            if m % 5 == 0: point(m // 5)
            issue_tr(m)
            a.I(f"s_waitcnt lgkmcnt({2*(RING-1)})")
        else:
            a.I(f"s_waitcnt lgkmcnt({2*(NT-1-n)})")
        wf = v(V_RING + (n % RING)*4, 4)
        for rt in range(2):
            d = v(acc(t, rt), 4)
            c = "0" if s_ == 0 else d
            a.I(f"v_mfma_f32_16x16x32_bf16 {d}, {wf}, {v(oreg(s_,rt),4)}, {c}")
        if n % 20 == 0 and n // 20 + 2 <= 4: pending = group_ops(n // 20 + 2)
        k = 2 if len(pending) > 19 - (n % 20) else 1
        for _ in range(k):
            if pending: emit_op(pending.pop(0))
    pf.stamp("mainend")
    P = V_O
    for rt in range(2):
        so = "s43" if rt else "0"
        for pr in range(2):
            p = P + rt*12 + pr*4
            for k, t in enumerate((2*pr, 2*pr+1)):
                r = acc(t, rt)
                a.I(f"v_cvt_pk_bf16_f32 v{p+2*k}, v{r}, v{r+1}")
                a.I(f"v_cvt_pk_bf16_f32 v{p+2*k+1}, v{r+2}, v{r+3}")
            a.I(f"v_permlane16_swap_b32 v{p}, v{p+2}")
            a.I(f"v_permlane16_swap_b32 v{p+1}, v{p+3}")
            a.I(f"buffer_store_dwordx4 {v(p,4)}, v{V_OUT}, s[12:15], {so} offen offset:{pr*64}{sfx(ST_K3)}")
        p = P + rt*12 + 8
        r = acc(4, rt)
        a.I(f"v_cvt_pk_bf16_f32 v{p}, v{r}, v{r+1}")
        a.I(f"v_cvt_pk_bf16_f32 v{p+1}, v{r+2}, v{r+3}")
        a.I(f"buffer_store_dwordx2 {v(p,2)}, v{V_OUT2}, s[12:15], {so} offen offset:128{sfx(ST_K3)}")
    pf.stamp("stored")
    if PROFILE: a.I("s_waitcnt vmcnt(0)")
    pf.finish(16, 22)
    a.L(le)
    a.I("s_endpgm")
    a.raw(kd(name, K3_VGPRS))
```

```python
from asmlib import *
S_LEN=2048; D=640; H=32
BUF = 2621440
import os
WS0 = int(os.environ.get('WS0', '0'))
WS_QB = 0
WS_KB = BUF
WS_VB = 2*BUF
WS_PQ = 3*BUF
WS_OA = 4*BUF
WS_OB = 5*BUF
WS_KVP = 6*BUF
WS_END = 6*BUF + 32*8*3072
OOB = 0x7F000000
import struct, math
def f2u(x): return struct.unpack("<I", struct.pack("<f", x))[0]
LOG2E = 1.4426950408889634
QSCALE = (20 ** -0.5) * LOG2E
NEG_INF = 0xFF800000
SRD3 = 0x00020000

def srd(a, dst, lo, hi, nbytes, add=0):
    if add:
        a.I(f"s_add_u32 s{dst}, s{lo}, {add}")
        a.I(f"s_addc_u32 s{dst+1}, s{hi}, 0")
    else:
        a.I(f"s_mov_b32 s{dst}, s{lo}")
        a.I(f"s_mov_b32 s{dst+1}, s{hi}")
    a.I(f"s_mov_b32 s{dst+2}, {nbytes}")
    a.I(f"s_mov_b32 s{dst+3}, {SRD3:#x}")

def kd(name, vgpr, sgpr=102):
    acc = (vgpr + 3) // 4 * 4
    return f""".section .rodata,"a"
.p2align 6
.amdhsa_kernel {name}
  .amdhsa_next_free_vgpr {vgpr}
  .amdhsa_next_free_sgpr {sgpr}
  .amdhsa_accum_offset {acc}
  .amdhsa_group_segment_fixed_size 0
  .amdhsa_kernarg_size 72
  .amdhsa_user_sgpr_count 2
  .amdhsa_user_sgpr_kernarg_segment_ptr 1
  .amdhsa_system_sgpr_workgroup_id_x 1
  .amdhsa_float_denorm_mode_32 3
.end_amdhsa_kernel
.text
"""

class VmTrack:
    def __init__(self): self.ops = []
    def add(self, tag): self.ops.append(tag)
    def wait_n(self, pred):
        last = max((i for i, t in enumerate(self.ops) if pred(t)), default=-1)
        return len(self.ops) - 1 - last, last

import os
PROFILE = os.environ.get("PROFILE", "0") == "1"
PROF_BASE = 32 << 20
WS_REC = (64 << 20) if PROFILE else WS_END
class Prof:
    def __init__(self, a, kidx): self.a = a; self.k = kidx; self.n = 0; self.names = []
    def start(self):
        if not PROFILE: return
        self.a.I("s_memrealtime s[96:97]")
        self.a.I("s_memtime s[64:65]")
        self.n = 1; self.names = ["entry"]
    def stamp(self, name):
        if not PROFILE: return
        assert self.n < 15
        self.a.I(f"s_memtime s[{64+2*self.n}:{65+2*self.n}]")
        self.a.I("s_waitcnt lgkmcnt(0)")
        self.n += 1; self.names.append(name)
    def finish(self, srd0, swave, n_fixed=None):
        if not PROFILE: return
        a = self.a
        a.I("s_memtime s[94:95]")
        a.I("s_memrealtime s[98:99]")
        a.I("s_waitcnt lgkmcnt(0)")
        a.I("s_lshl_b32 s3, s2, 4")
        a.I(f"s_add_u32 s3, s3, s{swave}")
        a.I("s_lshl_b32 s3, s3, 7")
        a.I(f"s_add_u32 s3, s3, {PROF_BASE + self.k*(1<<20)}")
        a.I("s_mov_b64 exec, 1")
        for i in range(self.n):
            a.I(f"v_mov_b32 v2, s{64+2*i}")
            a.I(f"v_mov_b32 v3, s3")
            a.I(f"buffer_store_dword v2, v3, s[{srd0}:{srd0+3}], 0 offen offset:{4*i}")
        for j, sr in enumerate((94, 96, 98)):
            a.I(f"v_mov_b32 v2, s{sr}")
            a.I(f"v_mov_b32 v3, s3")
            a.I(f"buffer_store_dword v2, v3, s[{srd0}:{srd0+3}], 0 offen offset:{64+4*j}")

ST_K1 = os.environ.get("ST_K1", "sc1")
ST_K2 = os.environ.get("ST_K2", "sc1")
ST_K3 = os.environ.get("ST_K3", "")
def sfx(x): return (" " + x) if x else ""
```

```python
from common import *

WB = 0; XB = 61440
K1_LDS = XB + 3*32768
STAMPS = eval(os.environ.get('K1_STAMPS', '(4, 10, 16)'))
V_TX=2; V_TW=3; V_TD=4
V_T=5
V_XR=10; V_XR2=12
V_F=16
V_ACC=88
V_A=152
K1_VGPRS=168
NCOL = {"row": 4, "col": 4, "kv": 5}
def acc(kind, i, j): return V_ACC + (i*NCOL[kind] + j)*4
def fx(n, i): return V_F + (n & 1)*36 + i*4
def fw(n, j): return V_F + (n & 1)*36 + 16 + j*4
WST = {"row": 16384, "col": 16384, "kv": 20480}
WROW = {"row": 256, "col": 256, "kv": 320}

def main_loop(a, kind, pf):
    nc = NCOL[kind]; wst = WST[kind]; wr_ = WROW[kind]
    def reads(n):
        b, sp = n >> 1, n & 1
        st = b % 3
        xb = (V_XR2 if st == 2 else V_XR) + sp
        xo = 0 if st == 2 else st*32768
        def rw(j):
            off = WB + st*wst + sp*32*wr_
            return [f"ds_read_b64_tr_b16 {v(fw(n,j),2)}, v{V_T+j} offset:{off}",
                    f"ds_read_b64_tr_b16 {v(fw(n,j)+2,2)}, v{V_T+j} offset:{off+4*wr_}"]
        def rx(i): return [f"ds_read_b128 {v(fx(n,i),4)}, v{xb} offset:{xo + i*2048}"]
        out = []
        for k in range(4): out += rw(k) + rx(k)
        if nc == 5: out += rw(4)
        return out
    sched = eval(os.environ.get("K1_TOUCH", "{-1:[0,1,2,3], 0:[4,5], 2:[6,7], 4:[8,9]}"))
    tw = [0]
    def do_touch(k):
        for b in sched.get(k, []):
            touch(a, b, tw[0] % 8); tw[0] += 1
    touch_setup(a)
    do_touch(-1)
    yield "prologue"
    a.I("s_barrier")
    do_touch(0)
    pf.stamp("first")
    for t in reads(0): a.I(t)
    for n in range(20):
        b, sp = n >> 1, n & 1
        if n in STAMPS: pf.stamp(f"n{n}")
        a.I("s_waitcnt lgkmcnt(0)")
        if sp == 1 and b + 1 <= 9:
            a.I("s_barrier")
            do_touch(b + 1)
        rd = reads(n+1) if n < 19 else []
        for k in range(4*nc):
            i, j = divmod(k, nc)
            d = v(acc(kind, i, j), 4); c = "0" if n == 0 else d
            if kind == "row": a.I(f"v_mfma_f32_16x16x32_bf16 {d}, {v(fw(n,j),4)}, {v(fx(n,i),4)}, {c}")
            else:             a.I(f"v_mfma_f32_16x16x32_bf16 {d}, {v(fx(n,i),4)}, {v(fw(n,j),4)}, {c}")
            if k < len(rd): a.I(rd[k])

def loader_wave(a, kv, pf):
    a.I(f"""
    s_sub_u32 s24, s22, 8
    v_lshrrev_b32 v13, 3, v1
    v_and_b32 v14, 7, v1
    v_lshrrev_b32 v15, 1, v13
    v_xor_b32 v14, v14, v15
    s_lshl_b32 s23, s20, 8
    s_lshl_b32 s25, s24, 6
    s_add_u32 s23, s23, s25
    v_add_u32 v13, s23, v13
    v_mul_u32_u24 v13, 1280, v13
    v_lshl_add_u32 v2, v14, 4, v13
    v_xor_b32 v3, 64, v2
    s_lshl_b32 s26, s24, 13
    s_add_u32 s26, s26, {XB}
    """)
    if not kv:
        a.I(f"""
        v_lshrrev_b32 v13, 4, v1
        v_lshlrev_b32 v14, 1, v13
        v_and_b32 v15, 15, v1
        v_xor_b32 v14, v14, v15
        s_lshl_b32 s25, s24, 4
        v_add_u32 v13, s25, v13
        v_mul_u32_u24 v13, 3840, v13
        v_lshl_add_u32 v13, v14, 4, v13
        s_lshl_b32 s25, s21, 8
        v_add_u32 v4, s25, v13
        v_xor_b32 v5, 128, v4
        s_lshl_b32 s27, s24, 12
        s_add_u32 s27, s27, {WB}
        """)
        nw, wst = 4, 16384
        wreg = lambda q: 5 if q & 2 else 4
        woff = lambda q: q*15360
    else:
        tbl = 0
        for i, x in enumerate([0,1,3,4,5,6,8,9,2,7]): tbl |= x << (4*i)
        a.I(f"s_mov_b32 s32, {tbl & 0xffffffff:#x}")
        a.I(f"s_mov_b32 s33, {tbl >> 32:#x}")
        a.I("s_mul_i32 s23, s21, 160")
        a.I("s_add_u32 s23, s23, 1280")
        a.I("s_lshl_b32 s25, s24, 4")
        for q in range(5):
            a.I(f"""
            v_add_u32 v12, {64*q}, v1
            v_mul_u32_u24 v13, 3277, v12
            v_lshrrev_b32 v13, 16, v13
            v_mul_u32_u24 v14, 20, v13
            v_sub_u32 v14, v12, v14
            v_lshrrev_b32 v15, 3, v13
            v_lshlrev_b32 v15, 1, v15
            v_xor_b32 v14, v14, v15
            v_cmp_le_u32 s[36:37], 10, v14
            v_cndmask_b32 v15, 0, 10, s[36:37]
            v_sub_u32 v14, v14, v15
            v_lshlrev_b32 v14, 2, v14
            v_lshrrev_b64 v[16:17], v14, s[32:33]
            v_and_b32 v16, 15, v16
            v_lshlrev_b32 v15, 3, v15
            v_lshl_add_u32 v15, v16, 4, v15
            v_cmp_le_u32 s[36:37], 5, v16
            v_mov_b32 v17, 1200
            v_cndmask_b32 v17, 0, v17, s[36:37]
            v_add_u32 v13, s25, v13
            v_mul_u32_u24 v13, 3840, v13
            v_add3_u32 v13, v13, v15, v17
            v_add_u32 v{4+q}, s23, v13
            """)
        a.I("s_mul_i32 s27, s24, 5120")
        nw, wst = 5, 20480
        wreg = lambda q: 4 + q
        woff = lambda q: 0
    def issue_stage(b):
        st = b % 3
        def dx(qq):
            a.I(f"s_add_u32 m0, s26, {st*32768 + qq*1024}")
            a.I(f"s_mov_b32 s35, {qq*10240 + b*128}")
            a.I(f"buffer_load_dwordx4 v{3 if qq & 1 else 2}, s[8:11], s35 offen lds")
        def dw(qq):
            a.I(f"s_add_u32 m0, s27, {st*wst + qq*1024}")
            a.I(f"s_mov_b32 s35, {woff(qq) + b*245760}")
            a.I(f"buffer_load_dwordx4 v{wreg(qq)}, s[12:15], s35 offen lds")
        for q in range(4):
            dw(q); dx(2*q); dx(2*q+1)
        if nw == 5: dw(4)
    per = 8 + nw
    issue_stage(0)
    pf.stamp("l_iss0")
    a.I("s_waitcnt vmcnt(0)")
    pf.stamp("l_land0")
    a.I("s_barrier")
    issue_stage(1)
    issue_stage(2)
    for b in range(1, 10):
        a.I(f"s_waitcnt vmcnt({per if b <= 8 else 0})")
        a.I("s_barrier")
        if b + 2 <= 9: issue_stage(b + 2)
    pf.finish(16, 22)
    a.I("s_endpgm")

def touch_setup(a):
    a.I(f"""
    v_and_b32 v13, 31, v1
    s_and_b32 s23, s3, 1
    s_lshl_b32 s23, s23, 10
    s_lshl_b32 s24, s30, 5
    s_add_u32 s23, s23, s24
    v_add_u32 v13, s23, v13
    v_mul_u32_u24 v13, 1280, v13
    v_mov_b32 v14, {OOB:#x}
    v_cmp_gt_u32 s[48:49], 32, v1
    v_cndmask_b32 v{V_TX}, v14, v13, s[48:49]
    v_and_b32 v15, 15, v1
    v_add_u32 v13, s50, v15
    v_mov_b32 v16, s52
    v_cmp_le_u32 s[36:37], s51, v15
    v_cndmask_b32 v16, 0, v16, s[36:37]
    v_cmp_le_u32 s[36:37], s53, v15
    v_cndmask_b32 v17, 0, 5, s[36:37]
    v_add3_u32 v13, v13, v16, v17
    v_lshlrev_b32 v13, 7, v13
    v_bfe_u32 v15, v1, 4, 1
    s_lshl_b32 s24, s30, 1
    v_add_u32 v15, s24, v15
    v_mul_u32_u24 v15, 3840, v15
    v_add_u32 v13, v13, v15
    v_cndmask_b32 v{V_TW}, v13, v14, s[48:49]
    """)
def touch_ops(a, b, d0=V_TD, d1=V_TD):
    a.I(f"buffer_load_dword v{d0}, v{V_TX}, s[8:11], 0 offen offset:{b*128}")
    a.I(f"s_mov_b32 s35, {b*245760}")
    a.I(f"buffer_load_dword v{d1}, v{V_TW}, s[12:15], s35 offen")
def touch(a, b, wave):
    l = a.newlabel("k1_nt")
    a.I(f"s_cmp_lg_u32 s22, {wave}")
    a.I(f"s_cbranch_scc1 {l}")
    touch_ops(a, b)
    a.L(l)

def phi_regs(a, regs, tm):
    for q, r in enumerate(regs):
        for i in (0, 2): a.I(f"v_pk_mul_f32 {v(tm+4*q+i,2)}, {v(r+i,2)}, s[42:43]")
    for q, r in enumerate(regs):
        for i in range(4): a.I(f"v_exp_f32 v{tm+4*q+i}, v{tm+4*q+i} clamp")
    for q, r in enumerate(regs):
        for i in range(4): a.I(f"v_max_f32 v{r+i}, s44, v{r+i}")
    for q, r in enumerate(regs):
        for i in (0, 2): a.I(f"v_pk_add_f32 {v(r+i,2)}, {v(r+i,2)}, {v(tm+4*q+i,2)}")
def phi_consts(a):
    a.I(f"s_mov_b32 s42, {f2u(LOG2E):#x}")
    a.I(f"s_mov_b32 s43, {f2u(LOG2E):#x}")
    a.I(f"s_mov_b32 s44, {f2u(1e-6):#x}")
def pack(a, d, r0, r1):
    for rt, r in enumerate((r0, r1)):
        a.I(f"v_cvt_pk_bf16_f32 v{d+2*rt}, v{r}, v{r+1}")
        a.I(f"v_cvt_pk_bf16_f32 v{d+2*rt+1}, v{r+2}, v{r+3}")

def epilogue_flat(a, mode, sfx_):
    P = V_F + 16
    if mode == "phi": phi_consts(a)
    if mode == "scale":
        a.I(f"s_mov_b32 s42, {f2u(QSCALE):#x}")
        a.I(f"s_mov_b32 s43, {f2u(QSCALE):#x}")
    k = 0
    for p in range(2):
        for j in range(4):
            d = P + (k % 8)*4; tm = V_F + (k % 2)*8; k += 1
            regs = [acc("row", 2*p, j), acc("row", 2*p+1, j)]
            if mode == "phi": phi_regs(a, regs, tm)
            if mode == "scale":
                for q, r in enumerate(regs):
                    for i in (0, 2): a.I(f"v_pk_mul_f32 {v(r+i,2)}, {v(r+i,2)}, s[42:43]")
            pack(a, d, regs[0], regs[1])
            a.I(f"buffer_store_dwordx4 {v(d,4)}, v{V_A+j}, s[16:19], 0 offen offset:{p*1280}{sfx(sfx_)}")

def epilogue_kv(a, pf):
    PK0=V_F; PK1=V_F+4; VV0=V_F+8; VV1=V_F+12; T6P=V_F+16; T6O=V_F+20
    M = V_F + 24; tm = V_F + 56
    phi_consts(a)
    a.I("v_and_b32 v13, 15, v1")
    a.I("v_cmp_gt_u32 s[40:41], 8, v13")
    a.I("v_mov_b32 v14, 0x3f803f80")
    for p in range(2):
        i0, i1 = 2*p, 2*p+1
        A = lambda i, t: acc("kv", i, t)
        pack(a, VV0, A(i0,2), A(i1,2)); pack(a, VV1, A(i0,3), A(i1,3))
        pack(a, T6O, A(i0,4), A(i1,4))
        for k in range(4): a.I(f"v_cndmask_b32 v{T6O+k}, v{T6O+k}, v14, s[40:41]")
        for t, dst in ((0, PK0), (1, PK1), (4, T6P)):
            phi_regs(a, [A(i0,t), A(i1,t)], tm)
            pack(a, dst, A(i0,t), A(i1,t))
        pairs = [(PK0,VV0),(PK1,VV1),(PK0,T6O),(PK1,T6O),(T6P,VV0),(T6P,VV1),(T6P,T6O)]
        for k, (x, y) in enumerate(pairs):
            c = "0" if p == 0 else v(M+4*k,4)
            a.I(f"v_mfma_f32_16x16x32_bf16 {v(M+4*k,4)}, {v(x,4)}, {v(y,4)}, {c}")
    pf.stamp("kvm")
    a.I("s_barrier")
    a.I("s_mul_i32 s45, s22, 7168")
    a.I("v_lshlrev_b32 v12, 4, v1")
    a.I("v_add_u32 v12, s45, v12")
    for k in range(7): a.I(f"ds_write_b128 v12, {v(M+4*k,4)} offset:{k*1024}")
    a.I("s_waitcnt lgkmcnt(0)")
    a.I("s_barrier")
    R = V_F
    def task(st):
        a.I(f"""
        s_cmp_ge_u32 {st}, 6
        s_cselect_b32 s54, 1, 0
        s_mul_i32 s55, s54, 6
        s_sub_u32 s55, {st}, s55
        s_cmp_ge_u32 s55, 3
        s_cselect_b32 s45, 1, 0
        s_mul_i32 s46, s45, 3
        s_sub_u32 s46, s55, s46
        v_lshrrev_b32 v12, 5, v1
        v_and_b32 v13, 31, v1
        s_lshl_b32 s47, s46, 1
        v_add_u32 v14, s47, v12
        v_mov_b32 v15, s45
        s_cmp_eq_u32 s46, 2
        s_cselect_b64 s[48:49], -1, 0
        v_cndmask_b32 v14, v14, v15, s[48:49]
        s_add_u32 s50, s45, 4
        s_add_u32 s51, s45, 2
        s_cmp_eq_u32 s46, 2
        s_cselect_b32 s50, s50, s45
        s_cselect_b32 s51, 6, s51
        v_mov_b32 v8, s51
        v_mov_b32 v9, s50
        v_cmp_gt_u32 s[52:53], 16, v13
        v_cndmask_b32 v8, v8, v9, s[52:53]
        s_lshl_b32 s56, s45, 2
        s_sub_u32 s56, s56, 8
        v_add_u32 v9, s56, v13
        v_cmp_gt_u32 s[58:59], 20, v13
        v_cndmask_b32 v9, 0, v9, s[58:59]
        v_cndmask_b32 v9, v9, v13, s[52:53]
        v_lshl_add_u32 v9, v14, 4, v9
        v_lshlrev_b32 v9, 4, v9
        v_lshl_add_u32 v9, v8, 10, v9
        s_mul_i32 s57, s54, 7168
        v_add_u32 v9, s57, v9
        """)
        for w_ in range(4): a.I(f"ds_read_b128 {v(R+4*w_,4)}, v9 offset:{w_*2*7168}")
        a.I(f"""
        s_lshl_b32 s55, s21, 2
        s_lshl_b32 s57, s54, 1
        s_add_u32 s55, s55, s57
        s_add_u32 s55, s55, s45
        s_lshl_b32 s55, s55, 3
        s_add_u32 s55, s55, s20
        s_mul_i32 s55, s55, 3
        s_add_u32 s55, s55, s46
        s_lshl_b32 s55, s55, 10
        s_add_u32 s55, s55, {WS_KVP}
        v_lshlrev_b32 v10, 4, v1
        v_add_u32 v10, s55, v10
        """)
        for w_ in range(1, 4):
            a.I(f"s_waitcnt lgkmcnt({3-w_})")
            for i in range(4): a.I(f"v_add_f32 v{R+i}, v{R+i}, v{R+4*w_+i}")
        a.I(f"buffer_store_dwordx4 {v(R,4)}, v10, s[16:19], 0 offen{sfx(ST_K1)}")
    task("s22")
    l2 = a.newlabel("k1_kv2")
    a.I("s_cmp_ge_u32 s22, 4")
    a.I(f"s_cbranch_scc1 {l2}")
    a.I("s_add_u32 s60, s22, 8")
    a.I("s_nop 1")
    task("s60")
    a.L(l2)

def gen_k1(a, name):
    a.raw(f".globl {name}\n.p2align 8\n.type {name},@function")
    a.L(name)
    le = a.newlabel("k1_end")
    pf = Prof(a, 0)
    a.I("s_cmp_ge_u32 s2, 256")
    a.I(f"s_cbranch_scc1 {le}")
    pf.start()
    a.I("s_load_dwordx4 s[4:7], s[0:1], 0")
    a.I("s_load_dwordx4 s[44:47], s[0:1], 24")
    a.I("s_load_dwordx2 s[28:29], s[0:1], 64")
    lB = a.newlabel("k1_decB"); lD = a.newlabel("k1_dec")
    a.I("""
    s_and_b32 s3, s2, 7
    s_lshr_b32 s30, s2, 3
    s_lshr_b32 s31, s3, 2
    s_and_b32 s20, s3, 1
    s_lshl_b32 s20, s20, 2
    s_and_b32 s23, s30, 3
    s_add_u32 s20, s20, s23
    s_lshr_b32 s38, s3, 1
    s_and_b32 s38, s38, 1
    s_lshr_b32 s34, s30, 2
    v_lshrrev_b32 v13, 6, v0
    v_and_b32 v1, 63, v0
    s_cmp_eq_u32 s31, 0
    """)
    a.I(f"s_cbranch_scc0 {lB}")
    a.I("""
    s_sub_u32 s23, 3, s38
    s_mul_i32 s24, s38, 3
    s_add_u32 s21, s34, s24
    s_sub_u32 s25, s34, s23
    s_lshl_b32 s24, s38, 2
    s_add_u32 s24, s24, s25
    s_cmp_lt_u32 s34, s23
    s_cselect_b32 s21, s21, s24
    s_cselect_b32 s61, 0, 1
    s_add_u32 s23, s23, 4
    s_cmp_ge_u32 s34, s23
    s_cselect_b32 s61, 2, s61
    s_mul_i32 s50, s38, 6
    s_lshl_b32 s24, s38, 1
    s_sub_u32 s51, 6, s24
    s_add_u32 s52, s38, 4
    s_add_u32 s53, s51, 5
    """)
    a.I(f"s_branch {lD}")
    a.L(lB)
    a.I("""
    s_lshl_b32 s21, s38, 3
    s_add_u32 s21, s21, s34
    s_cmp_ge_u32 s21, 15
    s_cselect_b32 s61, 2, 0
    s_lshl_b32 s50, s38, 4
    s_mov_b32 s51, 16
    s_mov_b32 s52, 0
    s_mov_b32 s53, 16
    """)
    a.L(lD)
    a.I("v_readfirstlane_b32 s22, v13")
    a.I("s_waitcnt lgkmcnt(0)")
    pf.stamp("kernarg")
    a.I("s_cmp_eq_u32 s31, 0")
    for i in range(4): a.I(f"s_cselect_b32 s{4+i}, s{4+i}, s{44+i}")
    srd(a, 8, 4, 5, 2621440)
    srd(a, 12, 6, 7, 2457600)
    srd(a, 16, 28, 29, WS_REC, WS0)
    lx = a.newlabel("k1_spare"); lh = a.newlabel("k1_mfma"); lkl = a.newlabel("k1_ldkv"); lkv = a.newlabel("k1_kv")
    a.I("s_cmp_eq_u32 s61, 2")
    a.I(f"s_cbranch_scc1 {lx}")
    n0 = (pf.n, list(pf.names))
    def reset(): pf.n, pf.names = n0[0], list(n0[1])
    a.I("s_cmp_lt_u32 s22, 8")
    a.I(f"s_cbranch_scc1 {lh}")
    a.I("s_cmp_eq_u32 s61, 1")
    a.I(f"s_cbranch_scc1 {lkl}")
    loader_wave(a, False, pf); reset()
    a.L(lkl)
    loader_wave(a, True, pf); reset()
    a.L(lh)
    a.I("s_cmp_eq_u32 s61, 1")
    a.I(f"s_cbranch_scc1 {lkv}")
    a.I("""
    s_mul_i32 s32, s21, 52
    s_lshr_b32 s32, s32, 8
    s_mul_i32 s23, s32, 5
    s_sub_u32 s33, s21, s23
    """)
    lcol = a.newlabel("k1_col"); lepi = a.newlabel("k1_epi")
    def x_addr():
        a.I(f"""
        v_lshrrev_b32 v13, 4, v1
        v_and_b32 v14, 15, v1
        v_lshrrev_b32 v15, 1, v14
        v_xor_b32 v15, v15, v13
        s_lshl_b32 s39, s36, 13
        s_add_u32 s39, s39, {XB}
        v_lshlrev_b32 v16, 7, v14
        v_add_u32 v16, s39, v16
        v_lshl_add_u32 v{V_XR}, v15, 4, v16
        v_xor_b32 v{V_XR+1}, 64, v{V_XR}
        v_add_u32 v{V_XR2}, 0x10000, v{V_XR}
        v_add_u32 v{V_XR2+1}, 0x10000, v{V_XR+1}
        """)
    def addr_setup_flat():
        a.I(f"""
        s_lshr_b32 s36, s22, 1
        s_and_b32 s37, s22, 1
        v_lshrrev_b32 v13, 4, v1
        v_bfe_u32 v14, v1, 2, 2
        v_lshl_add_u32 v15, v13, 3, v14
        v_lshlrev_b32 v15, 8, v15
        v_and_b32 v16, 3, v1
        v_lshl_add_u32 v15, v16, 3, v15
        v_and_b32 v16, 1, v13
        v_lshl_or_b32 v16, v16, 2, v14
        s_lshl_b32 s40, s37, 2
        """)
        for j in range(4):
            a.I(f"s_add_u32 s39, s40, {j}")
            a.I(f"v_xor_b32 v17, s39, v16")
            a.I(f"v_lshl_add_u32 v{V_T+j}, v17, 5, v15")
        x_addr()
        a.I(f"""
        s_mul_i32 s40, s32, {BUF}
        s_cmp_eq_u32 s31, 0
        s_cselect_b32 s40, {WS_PQ}, s40
        s_lshl_b32 s41, s20, 3
        s_lshl_b32 s39, s36, 1
        s_add_u32 s41, s41, s39
        s_mul_i32 s41, s41, 1280
        s_add_u32 s40, s40, s41
        """)
    def addr_row():
        a.I(f"""
        s_lshl_b32 s39, s33, 5
        s_lshl_b32 s41, s37, 4
        s_add_u32 s39, s39, s41
        v_lshrrev_b32 v19, 4, v1
        v_add_u32 v15, s39, v19
        v_lshlrev_b32 v16, 4, v14
        v_add_u32 v16, s40, v16
        """)
        for j in range(4):
            a.I(f"""
            v_add_u32 v17, {4*j}, v15
            v_mul_u32_u24 v18, 205, v17
            v_lshrrev_b32 v18, 10, v18
            v_mul_u32_u24 v18, 80640, v18
            v_lshl_add_u32 v17, v17, 8, v16
            v_add_u32 v{V_A+j}, v17, v18
            """)
    def addr_col():
        a.I(f"""
        s_lshl_b32 s39, s33, 7
        s_lshl_b32 s41, s37, 6
        s_add_u32 s39, s39, s41
        v_add_u32 v15, s39, v14
        v_lshrrev_b32 v19, 4, v1
        v_mul_u32_u24 v16, 320, v19
        v_add_u32 v16, s40, v16
        """)
        for j in range(4):
            a.I(f"""
            v_add_u32 v17, {16*j}, v15
            v_mul_u32_u24 v18, 3277, v17
            v_lshrrev_b32 v18, 16, v18
            v_mul_u32_u24 v18, 81600, v18
            v_lshl_add_u32 v17, v17, 4, v16
            v_add_u32 v{V_A+j}, v17, v18
            """)
    a.I("s_cmp_eq_u32 s32, 2")
    a.I(f"s_cbranch_scc1 {lcol}")
    ldn = a.newlabel("k1_done")
    g = main_loop(a, "row", pf); next(g)
    addr_setup_flat(); addr_row()
    for _ in g: pass
    a.I("s_waitcnt vmcnt(0)")
    pf.stamp("mainend")
    lnp = a.newlabel("k1_nophi"); lst = a.newlabel("k1_plain")
    a.I("s_cmp_lg_u32 s31, 0")
    a.I(f"s_cbranch_scc1 {lnp}")
    epilogue_flat(a, "phi", ST_K1)
    a.I(f"s_branch {ldn}")
    a.L(lnp)
    a.I("s_cmp_lg_u32 s32, 0")
    a.I(f"s_cbranch_scc1 {lst}")
    epilogue_flat(a, "scale", ST_K1)
    a.I(f"s_branch {ldn}")
    a.L(lst)
    epilogue_flat(a, "none", ST_K1)
    a.I(f"s_branch {ldn}")
    reset()
    a.L(lcol)
    g = main_loop(a, "col", pf); next(g)
    addr_setup_flat(); addr_col()
    for _ in g: pass
    a.I("s_waitcnt vmcnt(0)")
    pf.stamp("mainend")
    epilogue_flat(a, "none", os.environ.get("ST_K1V", ST_K1))
    a.I(f"s_branch {ldn}")
    reset()
    a.L(lkv)
    g = main_loop(a, "kv", pf); next(g)
    a.I(f"""
    s_lshr_b32 s36, s22, 1
    s_and_b32 s37, s22, 1
    v_lshrrev_b32 v13, 4, v1
    v_bfe_u32 v14, v1, 2, 2
    v_lshl_add_u32 v15, v13, 3, v14
    v_mul_u32_u24 v15, 320, v15
    v_and_b32 v16, 3, v1
    v_lshl_add_u32 v15, v16, 3, v15
    v_and_b32 v16, 1, v13
    s_mul_i32 s40, s37, 5
    """)
    for t in range(5):
        a.I(f"s_add_u32 s39, s40, {t}")
        a.I(f"v_xor_b32 v17, s39, v16")
        a.I(f"v_lshl_add_u32 v{V_T+t}, v17, 5, v15")
    x_addr()
    for _ in g: pass
    a.I("s_waitcnt vmcnt(0)")
    pf.stamp("mainend")
    epilogue_kv(a, pf)
    a.L(ldn)
    pf.stamp("stored")
    if PROFILE: a.I("s_waitcnt vmcnt(0)")
    pf.finish(16, 22)
    a.I("s_endpgm")
    a.L(lx)
    lnt = a.newlabel("k1_spare_nt")
    a.I("s_cmp_lg_u32 s22, 0")
    a.I(f"s_cbranch_scc1 {lnt}")
    touch_setup(a)
    touch_ops(a, 0, 8, 9)
    touch_ops(a, 1, 10, 11)
    for b in range(2, 10):
        a.I("s_waitcnt vmcnt(2)")
        touch_ops(a, b, 8 + 2*(b & 1), 9 + 2*(b & 1))
    a.I("s_waitcnt vmcnt(0)")
    a.L(lnt)
    if os.environ.get("WO_PF", "1") == "1":
        lz2 = a.newlabel("k1_nopf")
        a.I("s_cmp_lt_u32 s30, 28")
        a.I(f"s_cbranch_scc1 {lz2}")
        a.I("s_add_u32 s23, s3, 2")
        a.I("s_and_b32 s23, s23, 7")
        a.I("s_cmp_ge_u32 s23, 4")
        a.I(f"s_cbranch_scc1 {lz2}")
        a.I("s_load_dwordx2 s[48:49], s[0:1], 16")
        a.I("s_load_dwordx2 s[50:51], s[0:1], 40")
        a.I("""
        s_and_b32 s20, s3, 1
        s_and_b32 s21, s30, 3
        s_lshl_b32 s21, s21, 1
        s_add_u32 s20, s20, s21
        s_mul_i32 s20, s20, 102400
        v_lshlrev_b32 v2, 7, v0
        v_add_u32 v2, s20, v2
        """)
        a.I("s_waitcnt lgkmcnt(0)")
        a.I("s_cmp_eq_u32 s31, 0")
        a.I("s_cselect_b32 s4, s48, s50")
        a.I("s_cselect_b32 s5, s49, s51")
        srd(a, 8, 4, 5, 819200)
        a.I("buffer_load_dword v4, v2, s[8:11], 0 offen")
        a.I("s_mov_b32 s21, 73728")
        a.I("v_cmp_gt_u32 vcc, 224, v0")
        a.I("s_and_saveexec_b64 s[22:23], vcc")
        lz = a.newlabel("k1_pfz")
        a.I(f"s_cbranch_execz {lz}")
        a.I("buffer_load_dword v5, v2, s[8:11], s21 offen")
        a.L(lz)
        a.I("s_mov_b64 exec, -1")
        a.I("s_waitcnt vmcnt(0)")
        a.L(lz2)
    a.L(le)
    a.I("s_endpgm")
    a.raw(kd(name, K1_VGPRS))
```

```python
from common import *

LK = 0
LV = 16*1280
LKV = 32*1280
K2_LDS = LKV + 1024 + 512
VAKM=2; VAKT=3; VAV=4; VAO=5; VAOT=6; VL=7
VC=16; VS=(32,48); VO=64; VQM=80; VQT=84
VKM=(86,90); VKT=(94,96); VV=(98,102); VP=106
VPQM=114; VPQT=118; VKVM=120; VKVT=124
VR=128
K2_VGPRS=160
MASK20 = (0x000FFFFF, 0x000FFFFF)

def kappa_code(a, m, dst, tmp):
    a.I(f"""
    v_and_b32 v{dst}, 7, v{m}
    v_bfe_u32 v{tmp}, v{m}, 3, 1
    v_lshl_or_b32 v{dst}, v{tmp}, 4, v{dst}
    v_bfe_u32 v{tmp}, v{m}, 4, 1
    v_lshl_or_b32 v{dst}, v{tmp}, 3, v{dst}
    """)

def key_of_reg(r):
    s_, b, i = r >> 3, (r >> 2) & 1, r & 3
    return 16*b + 8*s_ + i

def normalize_store(a, O, P, add_eps, so, off=0, check=None):
    a.I(f"v_cndmask_b32 v{VL}, v{O+8}, v{O+12}, s[38:39]")
    if add_eps: a.I(f"v_add_f32 v{VL}, s43, v{VL}")
    if check: check()
    a.I(f"v_rcp_f32 v8, v{VL}")
    for i in range(12): a.I(f"v_mul_f32 v{O+i}, v8, v{O+i}")
    for i in range(6): a.I(f"v_cvt_pk_bf16_f32 v{P+i}, v{O+2*i}, v{O+2*i+1}")
    a.I(f"buffer_store_dwordx4 {v(P,4)}, v{VAO}, s[16:19], {so} offen offset:{off}{sfx(ST_K2)}")
    a.I(f"buffer_store_dwordx2 {v(P+4,2)}, v{VAOT}, s[16:19], {so} offen offset:{off}{sfx(ST_K2)}")

def out_addr(a, stile):
    a.I(f"""
    s_mul_i32 s36, {stile}, 1280
    v_lshlrev_b32 v14, 4, v1
    v_add_u32 v{VAO}, s36, v14
    v_lshlrev_b32 v14, 3, v12
    v_add_u32 v14, s36, v14
    v_add_u32 v14, 1024, v14
    v_mov_b32 v15, {OOB:#x}
    v_cndmask_b32 v{VAOT}, v15, v14, s[38:39]
    """)

def q_addr(a, dst):
    a.I(f"""
    v_and_b32 v13, 15, v1
    v_lshlrev_b32 v13, 4, v13
    v_bfe_u32 v14, v1, 4, 1
    v_lshl_add_u32 v13, v14, 3, v13
    v_lshl_add_u32 v13, v11, 8, v13
    v_add_u32 v{dst}, s36, v13
    """)

def q_addr4(a, dst, dst_t):
    a.I(f"""
    v_and_b32 v13, 15, v1
    v_lshlrev_b32 v13, 4, v13
    v_add_u32 v13, s36, v13
    v_bfe_u32 v14, v1, 4, 1
    v_lshl_add_u32 v{dst_t}, v14, 3, v13
    v_lshl_add_u32 v13, v14, 9, v13
    v_lshl_add_u32 v{dst}, v11, 8, v13
    """)
def q_swap(a, r):
    a.I(f"v_permlane16_swap_b32 v{r}, v{r+2}")
    a.I(f"v_permlane16_swap_b32 v{r+1}, v{r+3}")

def gen_k2(a, name):
    a.raw(f".globl {name}\n.p2align 8\n.type {name},@function")
    a.L(name)
    le = a.newlabel("k2_end")
    a.I("s_cmp_ge_u32 s2, 256")
    a.I(f"s_cbranch_scc1 {le}")
    pf = Prof(a, 1); pf.start()
    a.I("s_load_dwordx2 s[28:29], s[0:1], 64")
    a.I("""
    s_mov_b32 s3, s2
    s_and_b32 s20, s3, 7
    s_lshr_b32 s23, s3, 6
    s_lshl_b32 s23, s23, 3
    s_add_u32 s20, s20, s23
    s_lshr_b32 s21, s3, 3
    s_and_b32 s21, s21, 7
    v_lshrrev_b32 v12, 6, v0
    v_and_b32 v1, 63, v0
    """)
    a.I("v_readfirstlane_b32 s22, v12")
    a.I("""
    s_lshl_b32 s24, s20, 6
    s_lshl_b32 s23, s21, 3
    s_add_u32 s24, s24, s23
    s_cmp_eq_u32 s21, 0
    s_cselect_b32 s23, 0, 8
    s_sub_u32 s25, s24, s23
    s_add_u32 s26, s24, s22
    v_lshlrev_b32 v8, 4, v1
    v_lshrrev_b32 v11, 5, v1
    v_and_b32 v12, 31, v1
    s_mul_i32 s36, s26, 1280
    """)
    q_addr4(a, 10, 9)
    a.I("s_waitcnt lgkmcnt(0)")
    pf.stamp('kernarg')
    srd(a, 16, 28, 29, WS_REC, WS0)
    a.I(f"v_mov_b32 v{VQT}, 0")
    a.I(f"v_mov_b32 v{VQT+1}, 0")
    a.I(f"buffer_load_dwordx4 {v(VQM,4)}, v10, s[16:19], 0 offen")
    a.I("s_mov_b32 exec_hi, 0")
    a.I(f"buffer_load_dwordx2 {v(VQT,2)}, v9, s[16:19], 0 offen offset:1024")
    a.I("s_mov_b32 exec_hi, -1")
    a.I(f"""
    s_mul_i32 s30, s25, 1280
    s_mul_i32 s31, s24, 1280
    """)
    for j in range(5):
        a.I(f"""
        s_add_u32 s32, s22, {8*j}
        s_mul_i32 s33, s32, 52
        s_lshr_b32 s33, s33, 9
        s_mul_i32 s34, s33, 10
        s_sub_u32 s34, s32, s34
        s_lshl_b32 s34, s34, 10
        s_bitcmp1_b32 s33, 0
        s_cselect_b32 s35, s31, s30
        s_add_u32 s34, s34, s35
        s_cmp_ge_u32 s33, 2
        s_mov_b32 s35, {WS_KB}
        s_mov_b32 s37, {WS_VB}
        s_cselect_b32 s35, s37, s35
        s_add_u32 s34, s34, s35
        s_lshl_b32 m0, s32, 10
        """)
        a.I("buffer_load_dwordx4 v8, s[16:19], s34 offen lds")
    a.I(f"""
    s_and_b32 s44, s20, 1
    s_lshl_b32 s45, s44, 8
    s_add_u32 s45, s45, {WS_PQ}
    s_xor_b32 s46, s44, 1
    s_lshl_b32 s46, s46, 10
    s_add_u32 s46, s46, {WS_PQ}
    v_mov_b32 v{VPQT}, 0
    v_mov_b32 v{VPQT+1}, 0
    """)
    a.I(f"buffer_load_dwordx4 {v(VPQM,4)}, v10, s[16:19], s45 offen")
    a.I("s_mov_b32 exec_hi, 0")
    a.I(f"buffer_load_dwordx2 {v(VPQT,2)}, v9, s[16:19], s46 offen")
    a.I("s_mov_b32 exec_hi, -1")
    nokv = a.newlabel("k2_nokv")
    a.I("s_cmp_ge_u32 s22, 3")
    a.I(f"s_cbranch_scc1 {nokv}")
    a.I(f"""
    s_mul_i32 s40, s20, 24
    s_add_u32 s40, s40, s22
    s_lshl_b32 s40, s40, 10
    s_add_u32 s40, s40, {WS_KVP}
    """)
    for i in range(8):
        a.I(f"buffer_load_dwordx4 {v(VR+4*i,4)}, v8, s[16:19], s40 offen")
        if i < 7: a.I("s_add_u32 s40, s40, 3072")
    a.L(nokv)
    pf.stamp("issued")
    a.I("v_cmp_gt_u32 s[38:39], 32, v1")
    kappa_code(a, 12, 13, 14)
    a.I(f"""
    s_mul_i32 s41, s22, 1280
    v_and_b32 v14, 15, v13
    v_lshlrev_b32 v14, 4, v14
    v_lshrrev_b32 v15, 4, v13
    v_lshl_add_u32 v14, v15, 3, v14
    v_add_u32 v{VAKT}, s41, v14
    v_lshl_add_u32 v{VAKM}, v11, 8, v{VAKT}
    """)
    a.I(f"""
    v_mul_u32_u24 v15, 320, v11
    v_lshl_add_u32 v14, v12, 4, v15
    s_add_u32 s41, s41, {LV}
    v_add_u32 v{VAV}, s41, v14
    """)
    out_addr(a, "s26")
    for k in range(8): a.I(f"v_mov_b32 v{VV[0]+k}, 0x3f803f80")
    def make_mask(first):
        a.I(f"""
        v_lshlrev_b32 v14, 2, v11
        v_sub_u32 v14, v12, v14
        v_mov_b32 v15, {NEG_INF:#x}
        """)
        for r in range(16):
            pr = 46 + 2*(r & 1)
            a.I(f"v_cmp_gt_i32 s[{pr}:{pr+1}], {key_of_reg(r)}, v14")
            if first: a.I(f"v_cndmask_b32 v{VC+r}, v15, 0, s[{pr}:{pr+1}]")
            else:     a.I(f"v_cndmask_b32 v{VC+r}, 0, v15, s[{pr}:{pr+1}]")
    l0 = a.newlabel("k2_r0"); l1 = a.newlabel("k2_r1")
    a.I("s_mov_b32 s27, 0")
    a.I("s_cmp_lg_u32 s21, 0")
    a.I(f"s_cbranch_scc1 {l0}")
    a.I("s_sub_u32 s27, 8, s22")
    for r in range(16): a.I(f"v_mov_b32 v{VC+r}, {NEG_INF:#x}")
    a.I(f"s_branch {l1}")
    a.L(l0)
    make_mask(True)
    a.L(l1)
    pf.stamp("masks")
    nokv2 = a.newlabel("k2_nokv2")
    a.I("s_cmp_ge_u32 s22, 3")
    a.I(f"s_cbranch_scc1 {nokv2}")
    a.I("s_waitcnt vmcnt(0)")
    for i in range(1, 8):
        for k in range(4): a.I(f"v_add_f32 v{VR+k}, v{VR+k}, v{VR+4*i+k}")
    a.I(f"v_cvt_pk_bf16_f32 v{VR}, v{VR}, v{VR+1}")
    a.I(f"v_cvt_pk_bf16_f32 v{VR+1}, v{VR+2}, v{VR+3}")
    a.I(f"""
    s_lshl_b32 s41, s22, 3
    s_add_u32 s41, s41, {LKV}
    v_add_u32 v14, s41, v8
    v_lshlrev_b32 v15, 3, v1
    v_add_u32 v15, {LKV + 1024}, v15
    s_cmp_eq_u32 s22, 2
    s_cselect_b64 s[46:47], -1, 0
    v_cndmask_b32 v14, v14, v15, s[46:47]
    """)
    a.I(f"ds_write_b64 v14, {v(VR,2)}")
    a.L(nokv2)
    a.I("s_waitcnt vmcnt(0) lgkmcnt(0)")
    a.I("s_barrier")
    q_swap(a, VQM)
    q_swap(a, VPQM)
    pf.stamp("first")
    def rdK(i):
        a.I(f"ds_read_b64 {v(VKM[i&1],2)}, v{VAKM} offset:{LK + i*1280}")
        a.I(f"ds_read_b64 {v(VKM[i&1]+2,2)}, v{VAKM} offset:{LK + i*1280 + 512}")
        a.I(f"ds_read_b64 {v(VKT[i&1],2)}, v{VAKT} offset:{LK + i*1280 + 1024}")
    def rdV(i):
        a.I(f"s_mov_b32 exec_lo, {MASK20[0]:#x}")
        a.I(f"s_mov_b32 exec_hi, {MASK20[1]:#x}")
        a.I(f"ds_read_b128 {v(VV[0],4)}, v{VAV} offset:{i*1280}")
        a.I(f"ds_read_b128 {v(VV[1],4)}, v{VAV} offset:{i*1280 + 640}")
        a.I("s_mov_b64 exec, -1")
    def qk(i, wn=0):
        S = VS[i & 1]
        a.I(f"s_waitcnt lgkmcnt({wn})")
        if i == 0 or i == 8:
            a.I(f"v_mfma_f32_32x32x16_bf16 {v(S,16)}, {v(VKM[i&1],4)}, {v(VQM,4)}, {v(VC,16)}")
        else:
            ln = a.newlabel("k2_neg"); lj = a.newlabel("k2_join")
            a.I(f"s_cmp_gt_u32 s27, {i}")
            a.I(f"s_cbranch_scc1 {ln}")
            a.I(f"v_mfma_f32_32x32x16_bf16 {v(S,16)}, {v(VKM[i&1],4)}, {v(VQM,4)}, 0")
            a.I(f"s_branch {lj}")
            a.L(ln)
            a.I(f"v_mfma_f32_32x32x16_bf16 {v(S,16)}, {v(VKM[i&1],4)}, {v(VQM,4)}, {v(VC,16)}")
            a.L(lj)
        a.I(f"v_mfma_f32_32x32x8bf16_1k {v(S,16)}, {v(VKT[i&1],2)}, {v(VQT,2)}, {v(S,16)}")
    a.I(f"v_add_u32 v14, {LKV}, v8")
    a.I(f"v_lshlrev_b32 v15, 3, v1")
    a.I(f"ds_read_b128 {v(VKVM,4)}, v14")
    a.I(f"ds_read_b64 {v(VKVT,2)}, v15 offset:{LKV+1024}")
    rdK(0); rdK(1)
    a.I(f"s_mov_b32 s43, {f2u(1e-6):#x}")
    a.I(f"s_mov_b32 s61, {WS_OA}")
    a.I("s_waitcnt lgkmcnt(6)")
    a.I(f"v_mfma_f32_32x32x16_bf16 {v(VO,16)}, {v(VKVM,4)}, {v(VPQM,4)}, 0")
    a.I(f"v_mfma_f32_32x32x8bf16_1k {v(VO,16)}, {v(VKVT,2)}, {v(VPQT,2)}, {v(VO,16)}")
    qk(0, 3)
    normalize_store(a, VO, VP, True, "s61")
    rdV(0)
    pf.stamp("apart")
    for i in range(9):
        S = VS[i & 1]
        if i == 7:
            make_mask(False)
        if i < 8:
            qk(i+1, 2)
            if i + 2 <= 8: rdK(i+2)
        for hfs in range(2):
            for k in range(8): a.I(f"v_exp_f32 v{S+8*hfs+k}, v{S+8*hfs+k}")
            for k in range(4): a.I(f"v_cvt_pk_bf16_f32 v{VP+4*hfs+k}, v{S+8*hfs+2*k}, v{S+8*hfs+2*k+1}")
            if hfs == 0: a.I(f"s_waitcnt lgkmcnt({3 if i + 2 <= 8 else 0})")
            c = "0" if (i == 0 and hfs == 0) else v(VO,16)
            a.I(f"v_mfma_f32_32x32x16_bf16 {v(VO,16)}, {v(VV[hfs],4)}, {v(VP+4*hfs,4)}, {c}")
        if i < 8: rdV(i+1)
    pf.stamp("mainend")
    slow = a.newlabel("k2_slow"); fin = a.newlabel("k2_fin")
    def check():
        a.I(f"v_mov_b32 v9, 0")
        for i in range(12): a.I(f"v_fma_f32 v9, v{VO+i}, 0, v9")
        a.I(f"s_mov_b32 s50, {f2u(2.0**-64):#x}")
        a.I(f"s_mov_b32 s51, {f2u(2.0**64):#x}")
        a.I(f"v_cmp_nge_f32 s[52:53], v{VL}, s50")
        a.I(f"v_cmp_nle_f32 s[54:55], v{VL}, s51")
        a.I(f"v_cmp_u_f32 s[56:57], v9, v9")
        a.I("s_or_b64 s[52:53], s[52:53], s[54:55]")
        a.I("s_or_b64 s[52:53], s[52:53], s[56:57]")
        a.I("s_cmp_lg_u64 s[52:53], 0")
        if os.environ.get("FORCE_SLOW") == "1": a.I("s_cmp_eq_u32 s22, s22")
        a.I(f"s_cbranch_scc1 {slow}")
        a.L(fin)
    a.I(f"s_mov_b32 s60, {WS_OB}")
    normalize_store(a, VO, VP, False, "s60", 0, check)
    if PROFILE: a.I("s_waitcnt vmcnt(0)")
    pf.finish(16, 22)
    a.I("s_endpgm")
    a.L(slow)
    a.I("s_waitcnt vmcnt(0)")
    S = VS[0]
    def slow_scores():
        lm = a.newlabel("k2s_m"); lf = a.newlabel("k2s_f"); ll = a.newlabel("k2s_l"); ln = a.newlabel("k2s_n"); lj = a.newlabel("k2s_j")
        a.I(f"s_mul_i32 s59, s58, 1280")
        a.I(f"v_add_u32 v9, s59, v{VAKM}")
        a.I(f"v_add_u32 v10, s59, v{VAKT}")
        a.I(f"ds_read_b64 {v(VKM[0],2)}, v9 offset:{LK}")
        a.I(f"ds_read_b64 {v(VKM[0]+2,2)}, v9 offset:{LK+512}")
        a.I(f"ds_read_b64 {v(VKT[0],2)}, v10 offset:{LK+1024}")
        a.I("s_cmp_eq_u32 s58, 8")
        a.I(f"s_cbranch_scc1 {ll}")
        a.I("s_cmp_gt_u32 s27, s58")
        a.I(f"s_cbranch_scc1 {ln}")
        a.I("s_cmp_eq_u32 s58, 0")
        a.I(f"s_cbranch_scc1 {lf}")
        for r in range(16): a.I(f"v_mov_b32 v{VC+r}, 0")
        a.I(f"s_branch {lj}")
        a.L(ln)
        for r in range(16): a.I(f"v_mov_b32 v{VC+r}, {NEG_INF:#x}")
        a.I(f"s_branch {lj}")
        a.L(lf)
        make_mask(True)
        a.I(f"s_branch {lj}")
        a.L(ll)
        make_mask(False)
        a.L(lj)
        a.I("s_waitcnt lgkmcnt(0)")
        a.I("s_nop 1")
        a.I(f"v_mfma_f32_32x32x16_bf16 {v(S,16)}, {v(VKM[0],4)}, {v(VQM,4)}, {v(VC,16)}")
        a.I(f"v_mfma_f32_32x32x8bf16_1k {v(S,16)}, {v(VKT[0],2)}, {v(VQT,2)}, {v(S,16)}")
        a.I("s_nop 15")
    VM = 13
    a.I(f"v_mov_b32 v{VM}, {NEG_INF:#x}")
    a.I("s_mov_b32 s58, 0")
    lp1 = a.newlabel("k2s_p1")
    a.L(lp1)
    slow_scores()
    for r in range(16): a.I(f"v_max_f32 v{VM}, v{VM}, v{S+r}")
    a.I("s_add_u32 s58, s58, 1")
    a.I("s_cmp_le_u32 s58, 8")
    a.I(f"s_cbranch_scc1 {lp1}")
    a.I(f"v_mov_b32 v9, v{VM}")
    a.I("s_nop 1")
    a.I(f"v_permlane32_swap_b32 v9, v{VM}")
    a.I("s_nop 1")
    a.I(f"v_max_f32 v{VM}, v{VM}, v9")
    for r in range(16): a.I(f"v_mov_b32 v{VO+r}, 0")
    a.I("s_mov_b32 s58, 0")
    lp2 = a.newlabel("k2s_p2")
    a.L(lp2)
    slow_scores()
    a.I(f"s_mul_i32 s59, s58, 1280")
    a.I(f"v_add_u32 v9, s59, v{VAV}")
    a.I(f"s_mov_b32 exec_lo, {MASK20[0]:#x}")
    a.I(f"s_mov_b32 exec_hi, {MASK20[1]:#x}")
    a.I(f"ds_read_b128 {v(VV[0],4)}, v9")
    a.I(f"ds_read_b128 {v(VV[1],4)}, v9 offset:640")
    a.I("s_mov_b64 exec, -1")
    for r in range(16): a.I(f"v_sub_f32 v{S+r}, v{S+r}, v{VM}")
    for r in range(16): a.I(f"v_exp_f32 v{S+r}, v{S+r}")
    a.I("s_nop 0")
    for k in range(8): a.I(f"v_cvt_pk_bf16_f32 v{VP+k}, v{S+2*k}, v{S+2*k+1}")
    a.I("s_waitcnt lgkmcnt(0)")
    a.I("s_nop 1")
    for hfs in range(2):
        a.I(f"v_mfma_f32_32x32x16_bf16 {v(VO,16)}, {v(VV[hfs],4)}, {v(VP+4*hfs,4)}, {v(VO,16)}")
    a.I("s_nop 15")
    a.I("s_add_u32 s58, s58, 1")
    a.I("s_cmp_le_u32 s58, 8")
    a.I(f"s_cbranch_scc1 {lp2}")
    a.I(f"v_cndmask_b32 v{VL}, v{VO+8}, v{VO+12}, s[38:39]")
    a.I("s_nop 1")
    a.I(f"s_branch {fin}")
    a.L(le)
    a.I("s_endpgm")
    a.raw(kd(name, K2_VGPRS))
```

```python
from common import *

K3_LDS = 102400 + 512
RING = 4
V_OM=2; V_OT=3; V_T0=4; V_T1=5; V_OUT=6; V_OUT2=7
V_WM=8
V_RING=20
V_ACC=36
V_O=76
K3_VGPRS=240
def acc(t, rt): return V_ACC + (t*2+rt)*4
def oreg(s_, rt): return V_O + (s_*2+rt)*4

def gen_k3(a, name):
    a.raw(f".globl {name}\n.p2align 8\n.type {name},@function")
    a.L(name)
    le = a.newlabel("k3_end"); lb = a.newlabel("k3_b"); lj = a.newlabel("k3_j")
    a.I("s_cmp_ge_u32 s2, 256")
    a.I(f"s_cbranch_scc1 {le}")
    pf = Prof(a, 2); pf.start()
    a.I("s_load_dwordx4 s[24:27], s[0:1], 40")
    a.I("s_load_dwordx2 s[4:5], s[0:1], 16")
    a.I("s_load_dwordx2 s[28:29], s[0:1], 64")
    a.I("""
    s_and_b32 s3, s2, 7
    s_lshr_b32 s30, s2, 3
    s_lshr_b32 s44, s3, 2
    s_and_b32 s20, s3, 3
    s_lshl_b32 s20, s20, 2
    s_and_b32 s23, s30, 3
    s_add_u32 s20, s20, s23
    s_lshr_b32 s21, s30, 2
    v_lshrrev_b32 v18, 6, v0
    v_and_b32 v1, 63, v0
    """)
    a.I("v_readfirstlane_b32 s22, v18")
    a.I(f"""
    s_lshl_b32 s31, s20, 2
    s_add_u32 s31, s31, s22
    s_mul_i32 s32, s31, 1280
    s_cmp_eq_u32 s44, 0
    s_mov_b32 s33, {WS_OA}
    s_mov_b32 s34, {WS_OB}
    s_cselect_b32 s33, s33, s34
    s_add_u32 s32, s32, s33
    v_lshrrev_b32 v18, 4, v1
    v_and_b32 v19, 15, v1
    """)
    a.I(f"""
    v_lshrrev_b32 v20, 1, v18
    v_mul_u32_u24 v20, 81920, v20
    v_and_b32 v21, 1, v18
    v_lshl_add_u32 v20, v21, 9, v20
    v_lshl_add_u32 v20, v19, 4, v20
    v_add_u32 v{V_OM}, s32, v20
    v_mul_u32_u24 v20, {2*81920}, v18
    v_lshl_add_u32 v20, v19, 3, v20
    v_add_u32 v20, s32, v20
    v_add_u32 v{V_OT}, 1024, v20
    s_mul_i32 s35, s21, 160
    s_cmp_eq_u32 s44, 0
    s_cselect_b32 s45, 8, 4
    s_cselect_b32 s46, 4, 20
    """)
    for q in range(5):
        a.I(f"""
        v_add_u32 v20, {64*q}, v1
        v_mul_u32_u24 v21, 6554, v20
        v_lshrrev_b32 v21, 16, v21
        v_mul_u32_u24 v22, 10, v21
        v_sub_u32 v22, v20, v22
        v_lshlrev_b32 v22, 4, v22
        v_add_u32 v22, s35, v22
        v_lshrrev_b32 v23, 4, v21
        v_mul_u32_u24 v24, s45, v23
        v_add_u32 v24, v24, v21
        v_mul_u32_u24 v24, 1280, v24
        v_add_u32 v{V_WM+q}, v24, v22
        v_lshlrev_b32 v23, 1, v23
        v_bfe_u32 v24, v21, 2, 1
        v_add_u32 v23, v23, v24
        v_mul_u32_u24 v23, 40, v23
        v_bfe_u32 v24, v21, 3, 1
        v_mul_u32_u24 v24, s46, v24
        v_add_u32 v23, v23, v24
        v_and_b32 v24, 3, v21
        v_add3_u32 v23, v23, v24, 16
        v_mul_u32_u24 v23, 1280, v23
        v_add_u32 v{V_WM+5+q}, v23, v22
        """)
    a.I("s_waitcnt lgkmcnt(0)")
    pf.stamp("kernarg")
    a.I("s_cmp_eq_u32 s44, 0")
    a.I("s_cselect_b32 s4, s4, s24")
    a.I("s_cselect_b32 s5, s5, s25")
    srd(a, 8, 4, 5, 819200)
    srd(a, 16, 28, 29, WS_REC, WS0)
    srd(a, 12, 26, 27, 5242880)
    vm = VmTrack()
    a.I("s_mul_i32 s36, s22, 5120")
    a.I("s_mul_i32 s37, s22, 51200")
    a.I("s_mul_i32 s38, s22, 204800")
    def ops_w(g):
        out = []
        for q in range(5):
            t = []
            if g < 4 and q == 0: t.append(f"s_add_u32 s39, s37, {g*4*51200}")
            t.append(f"s_add_u32 m0, s36, {g*4*5120 + q*1024}")
            so = "s39" if g < 4 else "s38"
            vw = V_WM + q + (0 if g < 4 else 5)
            t.append(f"buffer_load_dwordx4 v{vw}, s[8:11], {so} offen lds")
            out.append((t, ("W", g)))
        return out
    def ops_o(s_):
        out = []
        if s_ < 16:
            for rt in range(2):
                t = [f"s_mov_b32 s40, {s_*163840}"] if rt == 0 else []
                t.append(f"buffer_load_dwordx4 {v(oreg(s_,rt),4)}, v{V_OM}, s[16:19], s40 offen offset:{rt*256}")
                out.append((t, ("O", s_)))
        else:
            for u in range(2):
                for rt in range(2):
                    t = [f"s_mov_b32 s40, {(s_-16)*655360 + u*81920}"] if rt == 0 else []
                    t.append(f"buffer_load_dwordx2 {v(oreg(s_,rt)+2*u,2)}, v{V_OT}, s[16:19], s40 offen offset:{rt*128}")
                    out.append((t, ("O", s_)))
        return out
    def group_ops(g):
        out = ops_w(g)
        for s_ in range(4*g, 4*g+4): out += ops_o(s_)
        return out
    def emit_op(op):
        for t in op[0]: a.I(t)
        vm.add(op[1])
    for op in group_ops(0): emit_op(op)
    a.I(f"""
    v_lshrrev_b32 v18, 5, v1
    v_lshlrev_b32 v18, 4, v18
    v_bfe_u32 v19, v1, 4, 1
    v_lshl_add_u32 v18, v19, 2, v18
    v_bfe_u32 v19, v1, 2, 2
    v_add_u32 v18, v18, v19
    v_mul_u32_u24 v18, 160, v18
    v_and_b32 v19, 3, v1
    v_lshl_add_u32 v{V_T0}, v19, 3, v18
    v_add_u32 v{V_T1}, {12*5120}, v{V_T0}
    """)
    a.I(f"""
    v_lshrrev_b32 v18, 4, v1
    v_and_b32 v19, 15, v1
    s_lshl_b32 s41, s31, 5
    v_add_u32 v19, s41, v19
    v_mul_u32_u24 v19, 2560, v19
    s_mul_i32 s42, s44, 1280
    s_add_u32 s42, s42, s35
    v_add_u32 v19, s42, v19
    v_and_b32 v20, 1, v18
    v_lshlrev_b32 v20, 5, v20
    v_lshrrev_b32 v21, 1, v18
    v_lshl_add_u32 v20, v21, 4, v20
    v_add_u32 v{V_OUT}, v19, v20
    v_lshl_add_u32 v{V_OUT2}, v18, 3, v19
    s_mov_b32 s43, {16*2560}
    """)
    for op in group_ops(1): emit_op(op)
    pf.stamp("issued")
    visible = set()
    def point(s_):
        g = s_ // 4
        need_bar = g not in visible
        n, last = vm.wait_n(lambda t: t == ("O", s_) or (need_bar and t == ("W", g)))
        a.I(f"s_waitcnt vmcnt({n})")
        if need_bar:
            a.I("s_barrier")
            for t in vm.ops[:last+1]:
                if t[0] == "W": visible.add(t[1])
    def issue_tr(n):
        s_, t = divmod(n, 5)
        base = V_T0 if s_ < 12 else V_T1
        off = (s_ % 12) * 5120 + 32*t
        r = V_RING + (n % RING)*4
        a.I(f"ds_read_b64_tr_b16 {v(r,2)}, v{base} offset:{off}")
        a.I(f"ds_read_b64_tr_b16 {v(r+2,2)}, v{base} offset:{off+1280}")
    NT = 100
    point(0)
    pf.stamp("first")
    for n in range(RING-1): issue_tr(n)
    pending = []
    for n in range(NT):
        s_, t = divmod(n, 5)
        if n in (20, 40, 60, 80): pf.stamp(f"n{n}")
        m = n + RING - 1
        if m < NT:
            if m % 5 == 0: point(m // 5)
            issue_tr(m)
            a.I(f"s_waitcnt lgkmcnt({2*(RING-1)})")
        else:
            a.I(f"s_waitcnt lgkmcnt({2*(NT-1-n)})")
        wf = v(V_RING + (n % RING)*4, 4)
        for rt in range(2):
            d = v(acc(t, rt), 4)
            c = "0" if s_ == 0 else d
            a.I(f"v_mfma_f32_16x16x32_bf16 {d}, {wf}, {v(oreg(s_,rt),4)}, {c}")
        if n % 20 == 0 and n // 20 + 2 <= 4: pending = group_ops(n // 20 + 2)
        k = 2 if len(pending) > 19 - (n % 20) else 1
        for _ in range(k):
            if pending: emit_op(pending.pop(0))
    pf.stamp("mainend")
    P = V_O
    for rt in range(2):
        so = "s43" if rt else "0"
        for pr in range(2):
            p = P + rt*12 + pr*4
            for k, t in enumerate((2*pr, 2*pr+1)):
                r = acc(t, rt)
                a.I(f"v_cvt_pk_bf16_f32 v{p+2*k}, v{r}, v{r+1}")
                a.I(f"v_cvt_pk_bf16_f32 v{p+2*k+1}, v{r+2}, v{r+3}")
            a.I(f"v_permlane16_swap_b32 v{p}, v{p+2}")
            a.I(f"v_permlane16_swap_b32 v{p+1}, v{p+3}")
            a.I(f"buffer_store_dwordx4 {v(p,4)}, v{V_OUT}, s[12:15], {so} offen offset:{pr*64}{sfx(ST_K3)}")
        p = P + rt*12 + 8
        r = acc(4, rt)
        a.I(f"v_cvt_pk_bf16_f32 v{p}, v{r}, v{r+1}")
        a.I(f"v_cvt_pk_bf16_f32 v{p+1}, v{r+2}, v{r+3}")
        a.I(f"buffer_store_dwordx2 {v(p,2)}, v{V_OUT2}, s[12:15], {so} offen offset:128{sfx(ST_K3)}")
    pf.stamp("stored")
    if PROFILE: a.I("s_waitcnt vmcnt(0)")
    pf.finish(16, 22)
    a.L(le)
    a.I("s_endpgm")
    a.raw(kd(name, K3_VGPRS))
```

```python
from asmlib import *
S_LEN=2048; D=640; H=32
BUF = 2621440
import os
WS0 = int(os.environ.get('WS0', '0'))
WS_QB = 0
WS_KB = BUF
WS_VB = 2*BUF
WS_PQ = 3*BUF
WS_OA = 4*BUF
WS_OB = 5*BUF
WS_KVP = 6*BUF
WS_FLAG = 6*BUF + 32*8*3072
FLAG_SH = int(os.environ.get('FLAG_SH', '7'))
WS_END = WS_FLAG + (256 << FLAG_SH)
OOB = 0x7F000000
import struct, math
def f2u(x): return struct.unpack("<I", struct.pack("<f", x))[0]
LOG2E = 1.4426950408889634
QSCALE = (20 ** -0.5) * LOG2E
NEG_INF = 0xFF800000
SRD3 = 0x00020000

def srd(a, dst, lo, hi, nbytes, add=0):
    if add:
        a.I(f"s_add_u32 s{dst}, s{lo}, {add}")
        a.I(f"s_addc_u32 s{dst+1}, s{hi}, 0")
    else:
        a.I(f"s_mov_b32 s{dst}, s{lo}")
        a.I(f"s_mov_b32 s{dst+1}, s{hi}")
    a.I(f"s_mov_b32 s{dst+2}, {nbytes}")
    a.I(f"s_mov_b32 s{dst+3}, {SRD3:#x}")

def kd(name, vgpr, sgpr=102):
    acc = (vgpr + 3) // 4 * 4
    return f""".section .rodata,"a"
.p2align 6
.amdhsa_kernel {name}
  .amdhsa_next_free_vgpr {vgpr}
  .amdhsa_next_free_sgpr {sgpr}
  .amdhsa_accum_offset {acc}
  .amdhsa_group_segment_fixed_size 0
  .amdhsa_kernarg_size 72
  .amdhsa_user_sgpr_count 2
  .amdhsa_user_sgpr_kernarg_segment_ptr 1
  .amdhsa_system_sgpr_workgroup_id_x 1
  .amdhsa_float_denorm_mode_32 3
.end_amdhsa_kernel
.text
"""

class VmTrack:
    def __init__(self): self.ops = []
    def add(self, tag): self.ops.append(tag)
    def wait_n(self, pred):
        last = max((i for i, t in enumerate(self.ops) if pred(t)), default=-1)
        return len(self.ops) - 1 - last, last

import os
PROFILE = os.environ.get("PROFILE", "0") == "1"
PROF_BASE = 32 << 20
WS_REC = (64 << 20) if PROFILE else WS_END
class Prof:
    def __init__(self, a, kidx): self.a = a; self.k = kidx; self.n = 0; self.names = []
    def start(self):
        if not PROFILE: return
        self.a.I("s_memrealtime s[66:67]")
        self.a.I("s_memtime s[64:65]")
        self.n = 1; self.names = ["entry"]
    def stamp(self, name):
        if not PROFILE: return
        assert self.n < 15
        self.a.I("s_memtime s[68:69]")
        self.a.I("s_waitcnt lgkmcnt(0)")
        self.a.I(f"v_writelane_b32 v0, s68, {self.n}")
        self.n += 1; self.names.append(name)
    def finish(self, srd0, swave, n_fixed=None):
        if not PROFILE: return
        a = self.a
        a.I("s_memtime s[68:69]")
        a.I("s_memrealtime s[70:71]")
        a.I("s_waitcnt lgkmcnt(0)")
        a.I("v_writelane_b32 v0, s64, 0")
        for l in range(self.n, 16): a.I(f"v_writelane_b32 v0, 0xabababab, {l}") if False else None
        a.I("v_writelane_b32 v0, s68, 16")
        a.I("v_writelane_b32 v0, s66, 17")
        a.I("v_writelane_b32 v0, s70, 18")
        a.I(f"s_mov_b32 s68, {self.n}")
        a.I("v_writelane_b32 v0, s68, 19")
        a.I("s_lshl_b32 s3, s2, 4")
        a.I(f"s_add_u32 s3, s3, s{swave}")
        a.I("s_lshl_b32 s3, s3, 7")
        a.I(f"s_add_u32 s3, s3, {PROF_BASE + self.k*(1<<20)}")
        a.I("s_mov_b32 exec_lo, 0xfffff")
        a.I("s_mov_b32 exec_hi, 0")
        a.I("v_lshlrev_b32 v2, 2, v1")
        a.I("v_add_u32 v2, s3, v2")
        a.I(f"buffer_store_dword v0, v2, s[{srd0}:{srd0+3}], 0 offen")

ST_K1 = os.environ.get("ST_K1", "sc1")
ST_K2 = os.environ.get("ST_K2", "sc1")
ST_K3 = os.environ.get("ST_K3", "")
def sfx(x): return (" " + x) if x else ""
```

```python
from common import *

WB = 0; XB = 61440
K1_LDS = XB + 3*32768
STAMPS = eval(os.environ.get('K1_STAMPS', '(4, 10, 16)'))
V_TX=2; V_TW=3; V_TD=4
V_T=5
V_XR=10; V_XR2=12
V_F=16
V_ACC=88
V_A=152
K1_VGPRS=168
NCOL = {"row": 4, "col": 4, "kv": 5}
def acc(kind, i, j): return V_ACC + (i*NCOL[kind] + j)*4
def fx(n, i): return V_F + (n & 1)*36 + i*4
def fw(n, j): return V_F + (n & 1)*36 + 16 + j*4
WST = {"row": 16384, "col": 16384, "kv": 20480}
WROW = {"row": 256, "col": 256, "kv": 320}

def main_loop(a, kind, pf):
    nc = NCOL[kind]; wst = WST[kind]; wr_ = WROW[kind]
    def reads(n):
        b, sp = n >> 1, n & 1
        st = b % 3
        xb = (V_XR2 if st == 2 else V_XR) + sp
        xo = 0 if st == 2 else st*32768
        def rw(j):
            off = WB + st*wst + sp*32*wr_
            return [f"ds_read_b64_tr_b16 {v(fw(n,j),2)}, v{V_T+j} offset:{off}",
                    f"ds_read_b64_tr_b16 {v(fw(n,j)+2,2)}, v{V_T+j} offset:{off+4*wr_}"]
        def rx(i): return [f"ds_read_b128 {v(fx(n,i),4)}, v{xb} offset:{xo + i*2048}"]
        out = []
        for k in range(4): out += rw(k) + rx(k)
        if nc == 5: out += rw(4)
        return out
    sched = eval(os.environ.get("K1_TOUCH", "{-1:[0,1,2,3], 0:[4,5], 2:[6,7], 4:[8,9]}"))
    tw = [0]
    def do_touch(k):
        for b in sched.get(k, []):
            touch(a, b, tw[0] % 8); tw[0] += 1
    touch_setup(a)
    do_touch(-1)
    yield "prologue"
    a.I("s_barrier")
    do_touch(0)
    pf.stamp("first")
    for t in reads(0): a.I(t)
    for n in range(20):
        b, sp = n >> 1, n & 1
        if n in STAMPS: pf.stamp(f"n{n}")
        a.I("s_waitcnt lgkmcnt(0)")
        if sp == 1 and b + 1 <= 9:
            a.I("s_barrier")
            do_touch(b + 1)
        rd = reads(n+1) if n < 19 else []
        for k in range(4*nc):
            i, j = divmod(k, nc)
            d = v(acc(kind, i, j), 4); c = "0" if n == 0 else d
            if kind == "row": a.I(f"v_mfma_f32_16x16x32_bf16 {d}, {v(fw(n,j),4)}, {v(fx(n,i),4)}, {c}")
            else:             a.I(f"v_mfma_f32_16x16x32_bf16 {d}, {v(fx(n,i),4)}, {v(fw(n,j),4)}, {c}")
            if k < len(rd): a.I(rd[k])

def loader_wave(a, kv, pf):
    a.I(f"""
    s_sub_u32 s24, s22, 8
    v_lshrrev_b32 v13, 3, v1
    v_and_b32 v14, 7, v1
    v_lshrrev_b32 v15, 1, v13
    v_xor_b32 v14, v14, v15
    s_lshl_b32 s23, s20, 8
    s_lshl_b32 s25, s24, 6
    s_add_u32 s23, s23, s25
    v_add_u32 v13, s23, v13
    v_mul_u32_u24 v13, 1280, v13
    v_lshl_add_u32 v2, v14, 4, v13
    v_xor_b32 v3, 64, v2
    s_lshl_b32 s26, s24, 13
    s_add_u32 s26, s26, {XB}
    """)
    if not kv:
        a.I(f"""
        v_lshrrev_b32 v13, 4, v1
        v_lshlrev_b32 v14, 1, v13
        v_and_b32 v15, 15, v1
        v_xor_b32 v14, v14, v15
        s_lshl_b32 s25, s24, 4
        v_add_u32 v13, s25, v13
        v_mul_u32_u24 v13, 3840, v13
        v_lshl_add_u32 v13, v14, 4, v13
        s_lshl_b32 s25, s21, 8
        v_add_u32 v4, s25, v13
        v_xor_b32 v5, 128, v4
        s_lshl_b32 s27, s24, 12
        s_add_u32 s27, s27, {WB}
        """)
        nw, wst = 4, 16384
        wreg = lambda q: 5 if q & 2 else 4
        woff = lambda q: q*15360
    else:
        tbl = 0
        for i, x in enumerate([0,1,3,4,5,6,8,9,2,7]): tbl |= x << (4*i)
        a.I(f"s_mov_b32 s32, {tbl & 0xffffffff:#x}")
        a.I(f"s_mov_b32 s33, {tbl >> 32:#x}")
        a.I("s_mul_i32 s23, s21, 160")
        a.I("s_add_u32 s23, s23, 1280")
        a.I("s_lshl_b32 s25, s24, 4")
        for q in range(5):
            a.I(f"""
            v_add_u32 v12, {64*q}, v1
            v_mul_u32_u24 v13, 3277, v12
            v_lshrrev_b32 v13, 16, v13
            v_mul_u32_u24 v14, 20, v13
            v_sub_u32 v14, v12, v14
            v_lshrrev_b32 v15, 3, v13
            v_lshlrev_b32 v15, 1, v15
            v_xor_b32 v14, v14, v15
            v_cmp_le_u32 s[36:37], 10, v14
            v_cndmask_b32 v15, 0, 10, s[36:37]
            v_sub_u32 v14, v14, v15
            v_lshlrev_b32 v14, 2, v14
            v_lshrrev_b64 v[16:17], v14, s[32:33]
            v_and_b32 v16, 15, v16
            v_lshlrev_b32 v15, 3, v15
            v_lshl_add_u32 v15, v16, 4, v15
            v_cmp_le_u32 s[36:37], 5, v16
            v_mov_b32 v17, 1200
            v_cndmask_b32 v17, 0, v17, s[36:37]
            v_add_u32 v13, s25, v13
            v_mul_u32_u24 v13, 3840, v13
            v_add3_u32 v13, v13, v15, v17
            v_add_u32 v{4+q}, s23, v13
            """)
        a.I("s_mul_i32 s27, s24, 5120")
        nw, wst = 5, 20480
        wreg = lambda q: 4 + q
        woff = lambda q: 0
    def issue_stage(b):
        st = b % 3
        def dx(qq):
            a.I(f"s_add_u32 m0, s26, {st*32768 + qq*1024}")
            a.I(f"s_mov_b32 s35, {qq*10240 + b*128}")
            a.I(f"buffer_load_dwordx4 v{3 if qq & 1 else 2}, s[8:11], s35 offen lds")
        def dw(qq):
            a.I(f"s_add_u32 m0, s27, {st*wst + qq*1024}")
            a.I(f"s_mov_b32 s35, {woff(qq) + b*245760}")
            a.I(f"buffer_load_dwordx4 v{wreg(qq)}, s[12:15], s35 offen lds")
        for q in range(4):
            dw(q); dx(2*q); dx(2*q+1)
        if nw == 5: dw(4)
    per = 8 + nw
    issue_stage(0)
    pf.stamp("l_iss0")
    a.I("s_waitcnt vmcnt(0)")
    pf.stamp("l_land0")
    a.I("s_barrier")
    issue_stage(1)
    issue_stage(2)
    for b in range(1, 10):
        a.I(f"s_waitcnt vmcnt({per if b <= 8 else 0})")
        a.I("s_barrier")
        if b + 2 <= 9: issue_stage(b + 2)
    pf.finish(16, 22)
    a.I("s_endpgm")

def touch_setup(a):
    a.I(f"""
    v_and_b32 v13, 31, v1
    s_and_b32 s23, s3, 1
    s_lshl_b32 s23, s23, 10
    s_lshl_b32 s24, s30, 5
    s_add_u32 s23, s23, s24
    v_add_u32 v13, s23, v13
    v_mul_u32_u24 v13, 1280, v13
    v_mov_b32 v14, {OOB:#x}
    v_cmp_gt_u32 s[48:49], 32, v1
    v_cndmask_b32 v{V_TX}, v14, v13, s[48:49]
    v_and_b32 v15, 15, v1
    v_add_u32 v13, s50, v15
    v_mov_b32 v16, s52
    v_cmp_le_u32 s[36:37], s51, v15
    v_cndmask_b32 v16, 0, v16, s[36:37]
    v_cmp_le_u32 s[36:37], s53, v15
    v_cndmask_b32 v17, 0, 5, s[36:37]
    v_add3_u32 v13, v13, v16, v17
    v_lshlrev_b32 v13, 7, v13
    v_bfe_u32 v15, v1, 4, 1
    s_lshl_b32 s24, s30, 1
    v_add_u32 v15, s24, v15
    v_mul_u32_u24 v15, 3840, v15
    v_add_u32 v13, v13, v15
    v_cndmask_b32 v{V_TW}, v13, v14, s[48:49]
    """)
def touch_ops(a, b, d0=V_TD, d1=V_TD):
    a.I(f"buffer_load_dword v{d0}, v{V_TX}, s[8:11], 0 offen offset:{b*128}")
    a.I(f"s_mov_b32 s35, {b*245760}")
    a.I(f"buffer_load_dword v{d1}, v{V_TW}, s[12:15], s35 offen")
def touch(a, b, wave):
    l = a.newlabel("k1_nt")
    a.I(f"s_cmp_lg_u32 s22, {wave}")
    a.I(f"s_cbranch_scc1 {l}")
    touch_ops(a, b)
    a.L(l)

def phi_regs(a, regs, tm):
    for q, r in enumerate(regs):
        for i in (0, 2): a.I(f"v_pk_mul_f32 {v(tm+4*q+i,2)}, {v(r+i,2)}, s[42:43]")
    for q, r in enumerate(regs):
        for i in range(4): a.I(f"v_exp_f32 v{tm+4*q+i}, v{tm+4*q+i} clamp")
    for q, r in enumerate(regs):
        for i in range(4): a.I(f"v_max_f32 v{r+i}, s44, v{r+i}")
    for q, r in enumerate(regs):
        for i in (0, 2): a.I(f"v_pk_add_f32 {v(r+i,2)}, {v(r+i,2)}, {v(tm+4*q+i,2)}")
def phi_consts(a):
    a.I(f"s_mov_b32 s42, {f2u(LOG2E):#x}")
    a.I(f"s_mov_b32 s43, {f2u(LOG2E):#x}")
    a.I(f"s_mov_b32 s44, {f2u(1e-6):#x}")
def pack(a, d, r0, r1):
    for rt, r in enumerate((r0, r1)):
        a.I(f"v_cvt_pk_bf16_f32 v{d+2*rt}, v{r}, v{r+1}")
        a.I(f"v_cvt_pk_bf16_f32 v{d+2*rt+1}, v{r+2}, v{r+3}")

def epilogue_flat(a, mode, sfx_):
    P = V_F + 16
    if mode == "phi": phi_consts(a)
    if mode == "scale":
        a.I(f"s_mov_b32 s42, {f2u(QSCALE):#x}")
        a.I(f"s_mov_b32 s43, {f2u(QSCALE):#x}")
    k = 0
    for p in range(2):
        for j in range(4):
            d = P + (k % 8)*4; tm = V_F + (k % 2)*8; k += 1
            regs = [acc("row", 2*p, j), acc("row", 2*p+1, j)]
            if mode == "phi": phi_regs(a, regs, tm)
            if mode == "scale":
                for q, r in enumerate(regs):
                    for i in (0, 2): a.I(f"v_pk_mul_f32 {v(r+i,2)}, {v(r+i,2)}, s[42:43]")
            pack(a, d, regs[0], regs[1])
            a.I(f"buffer_store_dwordx4 {v(d,4)}, v{V_A+j}, s[16:19], 0 offen offset:{p*1280}{sfx(sfx_)}")

def epilogue_kv(a, pf):
    PK0=V_F; PK1=V_F+4; VV0=V_F+8; VV1=V_F+12; T6P=V_F+16; T6O=V_F+20
    M = V_F + 24; tm = V_F + 56
    phi_consts(a)
    a.I("v_and_b32 v13, 15, v1")
    a.I("v_cmp_gt_u32 s[40:41], 8, v13")
    a.I("v_mov_b32 v14, 0x3f803f80")
    for p in range(2):
        i0, i1 = 2*p, 2*p+1
        A = lambda i, t: acc("kv", i, t)
        pack(a, VV0, A(i0,2), A(i1,2)); pack(a, VV1, A(i0,3), A(i1,3))
        pack(a, T6O, A(i0,4), A(i1,4))
        for k in range(4): a.I(f"v_cndmask_b32 v{T6O+k}, v{T6O+k}, v14, s[40:41]")
        for t, dst in ((0, PK0), (1, PK1), (4, T6P)):
            phi_regs(a, [A(i0,t), A(i1,t)], tm)
            pack(a, dst, A(i0,t), A(i1,t))
        pairs = [(PK0,VV0),(PK1,VV1),(PK0,T6O),(PK1,T6O),(T6P,VV0),(T6P,VV1),(T6P,T6O)]
        for k, (x, y) in enumerate(pairs):
            c = "0" if p == 0 else v(M+4*k,4)
            a.I(f"v_mfma_f32_16x16x32_bf16 {v(M+4*k,4)}, {v(x,4)}, {v(y,4)}, {c}")
    pf.stamp("kvm")
    a.I("s_barrier")
    a.I("s_mul_i32 s45, s22, 7168")
    a.I("v_lshlrev_b32 v12, 4, v1")
    a.I("v_add_u32 v12, s45, v12")
    for k in range(7): a.I(f"ds_write_b128 v12, {v(M+4*k,4)} offset:{k*1024}")
    a.I("s_waitcnt lgkmcnt(0)")
    a.I("s_barrier")
    R = V_F
    def task(st):
        a.I(f"""
        s_cmp_ge_u32 {st}, 6
        s_cselect_b32 s54, 1, 0
        s_mul_i32 s55, s54, 6
        s_sub_u32 s55, {st}, s55
        s_cmp_ge_u32 s55, 3
        s_cselect_b32 s45, 1, 0
        s_mul_i32 s46, s45, 3
        s_sub_u32 s46, s55, s46
        v_lshrrev_b32 v12, 5, v1
        v_and_b32 v13, 31, v1
        s_lshl_b32 s47, s46, 1
        v_add_u32 v14, s47, v12
        v_mov_b32 v15, s45
        s_cmp_eq_u32 s46, 2
        s_cselect_b64 s[48:49], -1, 0
        v_cndmask_b32 v14, v14, v15, s[48:49]
        s_add_u32 s50, s45, 4
        s_add_u32 s51, s45, 2
        s_cmp_eq_u32 s46, 2
        s_cselect_b32 s50, s50, s45
        s_cselect_b32 s51, 6, s51
        v_mov_b32 v8, s51
        v_mov_b32 v9, s50
        v_cmp_gt_u32 s[52:53], 16, v13
        v_cndmask_b32 v8, v8, v9, s[52:53]
        s_lshl_b32 s56, s45, 2
        s_sub_u32 s56, s56, 8
        v_add_u32 v9, s56, v13
        v_cmp_gt_u32 s[58:59], 20, v13
        v_cndmask_b32 v9, 0, v9, s[58:59]
        v_cndmask_b32 v9, v9, v13, s[52:53]
        v_lshl_add_u32 v9, v14, 4, v9
        v_lshlrev_b32 v9, 4, v9
        v_lshl_add_u32 v9, v8, 10, v9
        s_mul_i32 s57, s54, 7168
        v_add_u32 v9, s57, v9
        """)
        for w_ in range(4): a.I(f"ds_read_b128 {v(R+4*w_,4)}, v9 offset:{w_*2*7168}")
        a.I(f"""
        s_lshl_b32 s55, s21, 2
        s_lshl_b32 s57, s54, 1
        s_add_u32 s55, s55, s57
        s_add_u32 s55, s55, s45
        s_lshl_b32 s55, s55, 3
        s_add_u32 s55, s55, s20
        s_mul_i32 s55, s55, 3
        s_add_u32 s55, s55, s46
        s_lshl_b32 s55, s55, 10
        s_add_u32 s55, s55, {WS_KVP}
        v_lshlrev_b32 v10, 4, v1
        v_add_u32 v10, s55, v10
        """)
        for w_ in range(1, 4):
            a.I(f"s_waitcnt lgkmcnt({3-w_})")
            for i in range(4): a.I(f"v_add_f32 v{R+i}, v{R+i}, v{R+4*w_+i}")
        a.I(f"buffer_store_dwordx4 {v(R,4)}, v10, s[16:19], 0 offen{sfx(ST_K1)}")
    task("s22")
    l2 = a.newlabel("k1_kv2")
    a.I("s_cmp_ge_u32 s22, 4")
    a.I(f"s_cbranch_scc1 {l2}")
    a.I("s_add_u32 s60, s22, 8")
    a.I("s_nop 1")
    task("s60")
    a.L(l2)

def gen_k1(a, name):
    a.raw(f".globl {name}\n.p2align 8\n.type {name},@function")
    a.L(name)
    le = a.newlabel("k1_end")
    pf = Prof(a, 0)
    a.I("s_cmp_ge_u32 s2, 256")
    a.I(f"s_cbranch_scc1 {le}")
    pf.start()
    a.I("s_load_dwordx4 s[4:7], s[0:1], 0")
    a.I("s_load_dwordx4 s[44:47], s[0:1], 24")
    a.I("s_load_dwordx2 s[28:29], s[0:1], 64")
    lB = a.newlabel("k1_decB"); lD = a.newlabel("k1_dec")
    a.I("""
    s_and_b32 s3, s2, 7
    s_lshr_b32 s30, s2, 3
    s_lshr_b32 s31, s3, 2
    s_and_b32 s20, s3, 1
    s_lshl_b32 s20, s20, 2
    s_and_b32 s23, s30, 3
    s_add_u32 s20, s20, s23
    s_lshr_b32 s38, s3, 1
    s_and_b32 s38, s38, 1
    s_lshr_b32 s34, s30, 2
    v_lshrrev_b32 v13, 6, v0
    v_and_b32 v1, 63, v0
    s_cmp_eq_u32 s31, 0
    """)
    a.I(f"s_cbranch_scc0 {lB}")
    a.I("""
    s_sub_u32 s23, 3, s38
    s_mul_i32 s24, s38, 3
    s_add_u32 s21, s34, s24
    s_sub_u32 s25, s34, s23
    s_lshl_b32 s24, s38, 2
    s_add_u32 s24, s24, s25
    s_cmp_lt_u32 s34, s23
    s_cselect_b32 s21, s21, s24
    s_cselect_b32 s61, 0, 1
    s_add_u32 s23, s23, 4
    s_cmp_ge_u32 s34, s23
    s_cselect_b32 s61, 2, s61
    s_mul_i32 s50, s38, 6
    s_lshl_b32 s24, s38, 1
    s_sub_u32 s51, 6, s24
    s_add_u32 s52, s38, 4
    s_add_u32 s53, s51, 5
    """)
    a.I(f"s_branch {lD}")
    a.L(lB)
    a.I("""
    s_lshl_b32 s21, s38, 3
    s_add_u32 s21, s21, s34
    s_cmp_ge_u32 s21, 15
    s_cselect_b32 s61, 2, 0
    s_lshl_b32 s50, s38, 4
    s_mov_b32 s51, 16
    s_mov_b32 s52, 0
    s_mov_b32 s53, 16
    """)
    a.L(lD)
    a.I("v_readfirstlane_b32 s22, v13")
    a.I("s_waitcnt lgkmcnt(0)")
    pf.stamp("kernarg")
    a.I("s_cmp_eq_u32 s31, 0")
    for i in range(4): a.I(f"s_cselect_b32 s{4+i}, s{4+i}, s{44+i}")
    srd(a, 8, 4, 5, 2621440)
    srd(a, 12, 6, 7, 2457600)
    srd(a, 16, 28, 29, WS_REC, WS0)
    lx = a.newlabel("k1_spare"); lh = a.newlabel("k1_mfma"); lkl = a.newlabel("k1_ldkv"); lkv = a.newlabel("k1_kv")
    a.I("s_cmp_eq_u32 s61, 2")
    a.I(f"s_cbranch_scc1 {lx}")
    n0 = (pf.n, list(pf.names))
    def reset(): pf.n, pf.names = n0[0], list(n0[1])
    a.I("s_cmp_lt_u32 s22, 8")
    a.I(f"s_cbranch_scc1 {lh}")
    a.I("s_cmp_eq_u32 s61, 1")
    a.I(f"s_cbranch_scc1 {lkl}")
    loader_wave(a, False, pf); reset()
    a.L(lkl)
    loader_wave(a, True, pf); reset()
    a.L(lh)
    a.I("s_cmp_eq_u32 s61, 1")
    a.I(f"s_cbranch_scc1 {lkv}")
    a.I("""
    s_mul_i32 s32, s21, 52
    s_lshr_b32 s32, s32, 8
    s_mul_i32 s23, s32, 5
    s_sub_u32 s33, s21, s23
    """)
    lcol = a.newlabel("k1_col"); lepi = a.newlabel("k1_epi")
    def x_addr():
        a.I(f"""
        v_lshrrev_b32 v13, 4, v1
        v_and_b32 v14, 15, v1
        v_lshrrev_b32 v15, 1, v14
        v_xor_b32 v15, v15, v13
        s_lshl_b32 s39, s36, 13
        s_add_u32 s39, s39, {XB}
        v_lshlrev_b32 v16, 7, v14
        v_add_u32 v16, s39, v16
        v_lshl_add_u32 v{V_XR}, v15, 4, v16
        v_xor_b32 v{V_XR+1}, 64, v{V_XR}
        v_add_u32 v{V_XR2}, 0x10000, v{V_XR}
        v_add_u32 v{V_XR2+1}, 0x10000, v{V_XR+1}
        """)
    def addr_setup_flat():
        a.I(f"""
        s_lshr_b32 s36, s22, 1
        s_and_b32 s37, s22, 1
        v_lshrrev_b32 v13, 4, v1
        v_bfe_u32 v14, v1, 2, 2
        v_lshl_add_u32 v15, v13, 3, v14
        v_lshlrev_b32 v15, 8, v15
        v_and_b32 v16, 3, v1
        v_lshl_add_u32 v15, v16, 3, v15
        v_and_b32 v16, 1, v13
        v_lshl_or_b32 v16, v16, 2, v14
        s_lshl_b32 s40, s37, 2
        """)
        for j in range(4):
            a.I(f"s_add_u32 s39, s40, {j}")
            a.I(f"v_xor_b32 v17, s39, v16")
            a.I(f"v_lshl_add_u32 v{V_T+j}, v17, 5, v15")
        x_addr()
        a.I(f"""
        s_mul_i32 s40, s32, {BUF}
        s_cmp_eq_u32 s31, 0
        s_cselect_b32 s40, {WS_PQ}, s40
        s_lshl_b32 s41, s20, 3
        s_lshl_b32 s39, s36, 1
        s_add_u32 s41, s41, s39
        s_mul_i32 s41, s41, 1280
        s_add_u32 s40, s40, s41
        """)
    def addr_row():
        a.I(f"""
        s_lshl_b32 s39, s33, 5
        s_lshl_b32 s41, s37, 4
        s_add_u32 s39, s39, s41
        v_lshrrev_b32 v19, 4, v1
        v_add_u32 v15, s39, v19
        v_lshlrev_b32 v16, 4, v14
        v_add_u32 v16, s40, v16
        """)
        for j in range(4):
            a.I(f"""
            v_add_u32 v17, {4*j}, v15
            v_mul_u32_u24 v18, 205, v17
            v_lshrrev_b32 v18, 10, v18
            v_mul_u32_u24 v18, 80640, v18
            v_lshl_add_u32 v17, v17, 8, v16
            v_add_u32 v{V_A+j}, v17, v18
            """)
    def addr_col():
        a.I(f"""
        s_lshl_b32 s39, s33, 7
        s_lshl_b32 s41, s37, 6
        s_add_u32 s39, s39, s41
        v_add_u32 v15, s39, v14
        v_lshrrev_b32 v19, 4, v1
        v_mul_u32_u24 v16, 320, v19
        v_add_u32 v16, s40, v16
        """)
        for j in range(4):
            a.I(f"""
            v_add_u32 v17, {16*j}, v15
            v_mul_u32_u24 v18, 3277, v17
            v_lshrrev_b32 v18, 16, v18
            v_mul_u32_u24 v18, 81600, v18
            v_lshl_add_u32 v17, v17, 4, v16
            v_add_u32 v{V_A+j}, v17, v18
            """)
    a.I("s_cmp_eq_u32 s32, 2")
    a.I(f"s_cbranch_scc1 {lcol}")
    ldn = a.newlabel("k1_done")
    g = main_loop(a, "row", pf); next(g)
    addr_setup_flat(); addr_row()
    for _ in g: pass
    a.I("s_waitcnt vmcnt(0)")
    pf.stamp("mainend")
    lnp = a.newlabel("k1_nophi"); lst = a.newlabel("k1_plain")
    a.I("s_cmp_lg_u32 s31, 0")
    a.I(f"s_cbranch_scc1 {lnp}")
    epilogue_flat(a, "phi", ST_K1)
    a.I(f"s_branch {ldn}")
    a.L(lnp)
    a.I("s_cmp_lg_u32 s32, 0")
    a.I(f"s_cbranch_scc1 {lst}")
    epilogue_flat(a, "scale", ST_K1)
    a.I(f"s_branch {ldn}")
    a.L(lst)
    epilogue_flat(a, "none", ST_K1)
    a.I(f"s_branch {ldn}")
    reset()
    a.L(lcol)
    g = main_loop(a, "col", pf); next(g)
    addr_setup_flat(); addr_col()
    for _ in g: pass
    a.I("s_waitcnt vmcnt(0)")
    pf.stamp("mainend")
    epilogue_flat(a, "none", os.environ.get("ST_K1V", ST_K1))
    a.I(f"s_branch {ldn}")
    reset()
    a.L(lkv)
    g = main_loop(a, "kv", pf); next(g)
    a.I(f"""
    s_lshr_b32 s36, s22, 1
    s_and_b32 s37, s22, 1
    v_lshrrev_b32 v13, 4, v1
    v_bfe_u32 v14, v1, 2, 2
    v_lshl_add_u32 v15, v13, 3, v14
    v_mul_u32_u24 v15, 320, v15
    v_and_b32 v16, 3, v1
    v_lshl_add_u32 v15, v16, 3, v15
    v_and_b32 v16, 1, v13
    s_mul_i32 s40, s37, 5
    """)
    for t in range(5):
        a.I(f"s_add_u32 s39, s40, {t}")
        a.I(f"v_xor_b32 v17, s39, v16")
        a.I(f"v_lshl_add_u32 v{V_T+t}, v17, 5, v15")
    x_addr()
    for _ in g: pass
    a.I("s_waitcnt vmcnt(0)")
    pf.stamp("mainend")
    epilogue_kv(a, pf)
    a.L(ldn)
    pf.stamp("stored")
    if PROFILE: a.I("s_waitcnt vmcnt(0)")
    pf.finish(16, 22)
    a.I("s_endpgm")
    a.L(lx)
    lnt = a.newlabel("k1_spare_nt")
    a.I("s_lshl_b32 s23, s22, 6")
    a.I("v_add_u32 v7, s23, v1")
    a.I("s_cmp_lg_u32 s22, 0")
    a.I(f"s_cbranch_scc1 {lnt}")
    touch_setup(a)
    touch_ops(a, 0, 8, 9)
    touch_ops(a, 1, 10, 11)
    for b in range(2, 10):
        a.I("s_waitcnt vmcnt(2)")
        touch_ops(a, b, 8 + 2*(b & 1), 9 + 2*(b & 1))
    a.I("s_waitcnt vmcnt(0)")
    a.L(lnt)
    lnf = a.newlabel("k1_noflag")
    a.I("s_cmp_lg_u32 s2, 255")
    a.I(f"s_cbranch_scc1 {lnf}")
    a.I("s_cmp_lt_u32 s22, 1")
    a.I(f"s_cbranch_scc1 {lnf}")
    a.I("s_cmp_gt_u32 s22, 4")
    a.I(f"s_cbranch_scc1 {lnf}")
    a.I("v_subrev_u32 v6, 64, v7")
    a.I(f"v_lshlrev_b32 v6, {FLAG_SH}, v6")
    a.I(f"v_add_u32 v6, {WS_FLAG}, v6")
    a.I("v_mov_b32 v8, 0")
    a.I("buffer_store_dword v8, v6, s[16:19], 0 offen")
    a.L(lnf)
    if os.environ.get("WO_PF", "1") == "1":
        lz2 = a.newlabel("k1_nopf")
        a.I("s_cmp_lt_u32 s30, 28")
        a.I(f"s_cbranch_scc1 {lz2}")
        a.I("s_add_u32 s23, s3, 2")
        a.I("s_and_b32 s23, s23, 7")
        a.I("s_cmp_ge_u32 s23, 4")
        a.I(f"s_cbranch_scc1 {lz2}")
        a.I("s_load_dwordx2 s[48:49], s[0:1], 16")
        a.I("s_load_dwordx2 s[50:51], s[0:1], 40")
        a.I("""
        s_and_b32 s20, s3, 1
        s_and_b32 s21, s30, 3
        s_lshl_b32 s21, s21, 1
        s_add_u32 s20, s20, s21
        s_mul_i32 s20, s20, 102400
        v_lshlrev_b32 v2, 7, v7
        v_add_u32 v2, s20, v2
        """)
        a.I("s_waitcnt lgkmcnt(0)")
        a.I("s_cmp_eq_u32 s31, 0")
        a.I("s_cselect_b32 s4, s48, s50")
        a.I("s_cselect_b32 s5, s49, s51")
        srd(a, 8, 4, 5, 819200)
        a.I("buffer_load_dword v4, v2, s[8:11], 0 offen")
        a.I("s_mov_b32 s21, 73728")
        a.I("v_cmp_gt_u32 vcc, 224, v7")
        a.I("s_and_saveexec_b64 s[22:23], vcc")
        lz = a.newlabel("k1_pfz")
        a.I(f"s_cbranch_execz {lz}")
        a.I("buffer_load_dword v5, v2, s[8:11], s21 offen")
        a.L(lz)
        a.I("s_mov_b64 exec, -1")
        a.I("s_waitcnt vmcnt(0)")
        a.L(lz2)
    a.L(le)
    a.I("s_endpgm")
    a.raw(kd(name, K1_VGPRS))
```

```python
from common import *

LK = 0
LV = 16*1280
LKV = 32*1280
LW = 43008
K2_LDS = LW + 102400 + 512
VAKM=2; VAKT=3; VAV=4; VAO=5; VAOT=6; VL=7
VC=16; VS=(32,48); VO=64; VQM=80; VQT=84
VKM=(86,90); VKT=(94,96); VV=(98,102); VP=106
VPQM=114; VPQT=118; VKVM=120; VKVT=124
VR=128
V_WM=160
K2_VGPRS=240
V_OM=2; V_OT=3; V_T0=4; V_T1=5; V_OUT=6; V_OUT2=7
V_RING=20; V_ACC=36; V_O=76; RING=4
def acc3(t, rt): return V_ACC + (t*2+rt)*4
def oreg(s_, rt): return V_O + (s_*2+rt)*4
POLL_SLEEP = int(os.environ.get('POLL_SLEEP', '1'))
AI = 4
MASK20 = (0x000FFFFF, 0x000FFFFF)

def kappa_code(a, m, dst, tmp):
    a.I(f"""
    v_and_b32 v{dst}, 7, v{m}
    v_bfe_u32 v{tmp}, v{m}, 3, 1
    v_lshl_or_b32 v{dst}, v{tmp}, 4, v{dst}
    v_bfe_u32 v{tmp}, v{m}, 4, 1
    v_lshl_or_b32 v{dst}, v{tmp}, 3, v{dst}
    """)

def key_of_reg(r):
    s_, b, i = r >> 3, (r >> 2) & 1, r & 3
    return 16*b + 8*s_ + i

def normalize_store(a, O, P, add_eps, so, off=0, check=None):
    a.I(f"v_cndmask_b32 v{VL}, v{O+8}, v{O+12}, s[38:39]")
    if add_eps: a.I(f"v_add_f32 v{VL}, s43, v{VL}")
    if check: check()
    a.I(f"v_rcp_f32 v8, v{VL}")
    for i in range(12): a.I(f"v_mul_f32 v{O+i}, v8, v{O+i}")
    for i in range(6): a.I(f"v_cvt_pk_bf16_f32 v{P+i}, v{O+2*i}, v{O+2*i+1}")
    a.I(f"buffer_store_dwordx4 {v(P,4)}, v{VAO}, s[16:19], {so} offen offset:{off}{sfx(ST_K2)}")
    a.I(f"buffer_store_dwordx2 {v(P+4,2)}, v{VAOT}, s[16:19], {so} offen offset:{off}{sfx(ST_K2)}")

def out_addr(a, stile):
    a.I(f"""
    s_mul_i32 s36, {stile}, 1280
    v_lshlrev_b32 v14, 4, v1
    v_add_u32 v{VAO}, s36, v14
    v_lshlrev_b32 v14, 3, v12
    v_add_u32 v14, s36, v14
    v_add_u32 v14, 1024, v14
    v_mov_b32 v15, {OOB:#x}
    v_cndmask_b32 v{VAOT}, v15, v14, s[38:39]
    """)

def q_addr(a, dst):
    a.I(f"""
    v_and_b32 v13, 15, v1
    v_lshlrev_b32 v13, 4, v13
    v_bfe_u32 v14, v1, 4, 1
    v_lshl_add_u32 v13, v14, 3, v13
    v_lshl_add_u32 v13, v11, 8, v13
    v_add_u32 v{dst}, s36, v13
    """)

def q_addr4(a, dst, dst_t):
    a.I(f"""
    v_and_b32 v13, 15, v1
    v_lshlrev_b32 v13, 4, v13
    v_add_u32 v13, s36, v13
    v_bfe_u32 v14, v1, 4, 1
    v_lshl_add_u32 v{dst_t}, v14, 3, v13
    v_lshl_add_u32 v13, v14, 9, v13
    v_lshl_add_u32 v{dst}, v11, 8, v13
    """)
def q_swap(a, r):
    a.I(f"v_permlane16_swap_b32 v{r}, v{r+2}")
    a.I(f"v_permlane16_swap_b32 v{r+1}, v{r+3}")

def projection(a, pf):
    a.I(f"""
    s_lshl_b32 s31, s63, 2
    s_add_u32 s31, s31, s22
    s_mul_i32 s32, s31, 1280
    s_cmp_eq_u32 s62, 0
    s_mov_b32 s33, {WS_OA}
    s_mov_b32 s34, {WS_OB}
    s_cselect_b32 s33, s33, s34
    s_add_u32 s32, s32, s33
    v_lshrrev_b32 v18, 4, v1
    v_and_b32 v19, 15, v1
    v_lshrrev_b32 v16, 1, v18
    v_mul_u32_u24 v16, 81920, v16
    v_and_b32 v17, 1, v18
    v_lshl_add_u32 v16, v17, 9, v16
    v_lshl_add_u32 v16, v19, 4, v16
    v_add_u32 v{V_OM}, s32, v16
    v_mul_u32_u24 v16, {2*81920}, v18
    v_lshl_add_u32 v16, v19, 3, v16
    v_add_u32 v16, s32, v16
    v_add_u32 v{V_OT}, 1024, v16
    """)
    vm = VmTrack()
    def ops_o(s_):
        out = []
        if s_ < 16:
            for rt in range(2):
                t = [f"s_mov_b32 s40, {s_*163840}"] if rt == 0 else []
                t.append(f"buffer_load_dwordx4 {v(oreg(s_,rt),4)}, v{V_OM}, s[16:19], s40 offen offset:{rt*256} sc1")
                out.append((t, ("O", s_)))
        else:
            for u in range(2):
                for rt in range(2):
                    t = [f"s_mov_b32 s40, {(s_-16)*655360 + u*81920}"] if rt == 0 else []
                    t.append(f"buffer_load_dwordx2 {v(oreg(s_,rt)+2*u,2)}, v{V_OT}, s[16:19], s40 offen offset:{rt*128} sc1")
                    out.append((t, ("O", s_)))
        return out
    def emit_op(op):
        for t in op[0]: a.I(t)
        vm.add(op[1])
    NPRE = int(os.environ.get("K3_NPRE", "8"))
    for s_ in range(NPRE):
        for op in ops_o(s_): emit_op(op)
    pending = []
    for s_ in range(NPRE, 20): pending += ops_o(s_)
    pf.stamp("o_issued")
    a.I(f"""
    v_lshrrev_b32 v18, 5, v1
    v_lshlrev_b32 v18, 4, v18
    v_bfe_u32 v19, v1, 4, 1
    v_lshl_add_u32 v18, v19, 2, v18
    v_bfe_u32 v19, v1, 2, 2
    v_add_u32 v18, v18, v19
    v_mul_u32_u24 v18, 160, v18
    v_and_b32 v19, 3, v1
    v_lshl_add_u32 v18, v19, 3, v18
    v_add_u32 v{V_T0}, {LW}, v18
    v_add_u32 v{V_T1}, {12*5120}, v{V_T0}
    v_lshrrev_b32 v18, 4, v1
    v_and_b32 v19, 15, v1
    s_lshl_b32 s41, s31, 5
    v_add_u32 v19, s41, v19
    v_mul_u32_u24 v19, 2560, v19
    s_mul_i32 s42, s62, 1280
    s_add_u32 s42, s42, s73
    v_add_u32 v19, s42, v19
    v_and_b32 v16, 1, v18
    v_lshlrev_b32 v16, 5, v16
    v_lshrrev_b32 v17, 1, v18
    v_lshl_add_u32 v16, v17, 4, v16
    v_add_u32 v{V_OUT}, v19, v16
    v_lshl_add_u32 v{V_OUT2}, v18, 3, v19
    s_mov_b32 s43, {16*2560}
    """)
    def issue_tr(n):
        s_, t = divmod(n, 5)
        base = V_T0 if s_ < 12 else V_T1
        off = (s_ % 12) * 5120 + 32*t
        r = V_RING + (n % RING)*4
        a.I(f"ds_read_b64_tr_b16 {v(r,2)}, v{base} offset:{off}")
        a.I(f"ds_read_b64_tr_b16 {v(r+2,2)}, v{base} offset:{off+1280}")
    NT = 100
    for n in range(RING-1): issue_tr(n)
    for n in range(NT):
        s_, t = divmod(n, 5)
        if n in (0, 40): pf.stamp(f"p{n}")
        if t == 0:
            while pending and not any(x == ("O", s_) for x in vm.ops): emit_op(pending.pop(0))
            while pending and pending[0][1] == ("O", s_): emit_op(pending.pop(0))
            nw_, _ = vm.wait_n(lambda x: x == ("O", s_))
            a.I(f"s_waitcnt vmcnt({nw_})")
        m = n + RING - 1
        if m < NT:
            issue_tr(m)
            a.I(f"s_waitcnt lgkmcnt({2*(RING-1)})")
        else:
            a.I(f"s_waitcnt lgkmcnt({2*(NT-1-n)})")
        wf = v(V_RING + (n % RING)*4, 4)
        for rt in range(2):
            d = v(acc3(t, rt), 4)
            c = "0" if s_ == 0 else d
            a.I(f"v_mfma_f32_16x16x32_bf16 {d}, {wf}, {v(oreg(s_,rt),4)}, {c}")
        if pending: emit_op(pending.pop(0))
    pf.stamp("pend")
    P = V_O
    for rt in range(2):
        so = "s43" if rt else "0"
        for pr in range(2):
            p = P + rt*12 + pr*4
            for k, t in enumerate((2*pr, 2*pr+1)):
                r = acc3(t, rt)
                a.I(f"v_cvt_pk_bf16_f32 v{p+2*k}, v{r}, v{r+1}")
                a.I(f"v_cvt_pk_bf16_f32 v{p+2*k+1}, v{r+2}, v{r+3}")
            a.I(f"v_permlane16_swap_b32 v{p}, v{p+2}")
            a.I(f"v_permlane16_swap_b32 v{p+1}, v{p+3}")
            a.I(f"buffer_store_dwordx4 {v(p,4)}, v{V_OUT}, s[12:15], {so} offen offset:{pr*64}{sfx(ST_K3)}")
        p = P + rt*12 + 8
        r = acc3(4, rt)
        a.I(f"v_cvt_pk_bf16_f32 v{p}, v{r}, v{r+1}")
        a.I(f"v_cvt_pk_bf16_f32 v{p+1}, v{r+2}, v{r+3}")
        a.I(f"buffer_store_dwordx2 {v(p,2)}, v{V_OUT2}, s[12:15], {so} offen offset:128{sfx(ST_K3)}")

def gen_k2(a, name):
    a.raw(f".globl {name}\n.p2align 8\n.type {name},@function")
    a.L(name)
    le = a.newlabel("k2_end")
    a.I("s_cmp_ge_u32 s2, 256")
    a.I(f"s_cbranch_scc1 {le}")
    pf = Prof(a, 1); pf.start()
    a.I("s_load_dwordx2 s[28:29], s[0:1], 64")
    a.I("s_load_dwordx4 s[4:7], s[0:1], 40")
    a.I("s_load_dwordx2 s[12:13], s[0:1], 16")
    a.I("""
    s_and_b32 s3, s2, 7
    s_lshr_b32 s30, s2, 3
    s_lshr_b32 s62, s3, 2
    s_and_b32 s63, s3, 3
    s_lshl_b32 s63, s63, 2
    s_and_b32 s23, s30, 3
    s_add_u32 s63, s63, s23
    s_lshr_b32 s72, s30, 2
    """)
    a.I("""
    s_mov_b32 s3, s2
    s_and_b32 s20, s3, 7
    s_lshr_b32 s23, s3, 6
    s_lshl_b32 s23, s23, 3
    s_add_u32 s20, s20, s23
    s_lshr_b32 s21, s3, 3
    s_and_b32 s21, s21, 7
    v_lshrrev_b32 v12, 6, v0
    v_and_b32 v1, 63, v0
    """)
    a.I("v_readfirstlane_b32 s22, v12")
    a.I("""
    s_lshl_b32 s24, s20, 6
    s_lshl_b32 s23, s21, 3
    s_add_u32 s24, s24, s23
    s_cmp_eq_u32 s21, 0
    s_cselect_b32 s23, 0, 8
    s_sub_u32 s25, s24, s23
    s_add_u32 s26, s24, s22
    v_lshlrev_b32 v8, 4, v1
    v_lshrrev_b32 v11, 5, v1
    v_and_b32 v12, 31, v1
    s_mul_i32 s36, s26, 1280
    """)
    q_addr4(a, 10, 9)
    a.I("s_waitcnt lgkmcnt(0)")
    pf.stamp('kernarg')
    srd(a, 16, 28, 29, WS_REC, WS0)
    a.I("s_cmp_eq_u32 s62, 0")
    a.I("s_cselect_b32 s4, s12, s4")
    a.I("s_cselect_b32 s5, s13, s5")
    srd(a, 8, 4, 5, 819200)
    srd(a, 12, 6, 7, 5242880)
    a.I(f"v_mov_b32 v{VQT}, 0")
    a.I(f"v_mov_b32 v{VQT+1}, 0")
    a.I(f"buffer_load_dwordx4 {v(VQM,4)}, v10, s[16:19], 0 offen")
    a.I("s_mov_b32 exec_hi, 0")
    a.I(f"buffer_load_dwordx2 {v(VQT,2)}, v9, s[16:19], 0 offen offset:1024")
    a.I("s_mov_b32 exec_hi, -1")
    a.I(f"""
    s_mul_i32 s30, s25, 1280
    s_mul_i32 s31, s24, 1280
    """)
    for j in range(5):
        a.I(f"""
        s_add_u32 s32, s22, {8*j}
        s_mul_i32 s33, s32, 52
        s_lshr_b32 s33, s33, 9
        s_mul_i32 s34, s33, 10
        s_sub_u32 s34, s32, s34
        s_lshl_b32 s34, s34, 10
        s_bitcmp1_b32 s33, 0
        s_cselect_b32 s35, s31, s30
        s_add_u32 s34, s34, s35
        s_cmp_ge_u32 s33, 2
        s_mov_b32 s35, {WS_KB}
        s_mov_b32 s37, {WS_VB}
        s_cselect_b32 s35, s37, s35
        s_add_u32 s34, s34, s35
        s_lshl_b32 m0, s32, 10
        """)
        a.I("buffer_load_dwordx4 v8, s[16:19], s34 offen lds")
    pf.stamp("issued")
    a.I("v_cmp_gt_u32 s[38:39], 32, v1")
    kappa_code(a, 12, 13, 14)
    a.I(f"""
    s_mul_i32 s41, s22, 1280
    v_and_b32 v14, 15, v13
    v_lshlrev_b32 v14, 4, v14
    v_lshrrev_b32 v15, 4, v13
    v_lshl_add_u32 v14, v15, 3, v14
    v_add_u32 v{VAKT}, s41, v14
    v_lshl_add_u32 v{VAKM}, v11, 8, v{VAKT}
    """)
    a.I(f"""
    v_mul_u32_u24 v15, 320, v11
    v_lshl_add_u32 v14, v12, 4, v15
    s_add_u32 s41, s41, {LV}
    v_add_u32 v{VAV}, s41, v14
    """)
    out_addr(a, "s26")
    for k in range(8): a.I(f"v_mov_b32 v{VV[0]+k}, 0x3f803f80")
    a.I("""
    s_mul_i32 s73, s72, 160
    s_cmp_eq_u32 s62, 0
    s_cselect_b32 s74, 8, 4
    s_cselect_b32 s75, 4, 20
    """)
    for q in range(5):
        a.I(f"""
        v_add_u32 v16, {64*q}, v1
        v_mul_u32_u24 v17, 6554, v16
        v_lshrrev_b32 v17, 16, v17
        v_mul_u32_u24 v18, 10, v17
        v_sub_u32 v18, v16, v18
        v_lshlrev_b32 v18, 4, v18
        v_add_u32 v18, s73, v18
        v_lshrrev_b32 v19, 4, v17
        v_mul_u32_u24 v20, s74, v19
        v_add_u32 v20, v20, v17
        v_mul_u32_u24 v20, 1280, v20
        v_add_u32 v{V_WM+q}, v20, v18
        v_lshlrev_b32 v19, 1, v19
        v_bfe_u32 v20, v17, 2, 1
        v_add_u32 v19, v19, v20
        v_mul_u32_u24 v19, 40, v19
        v_bfe_u32 v20, v17, 3, 1
        v_mul_u32_u24 v20, s75, v20
        v_add_u32 v19, v19, v20
        v_and_b32 v20, 3, v17
        v_add3_u32 v19, v19, v20, 16
        v_mul_u32_u24 v19, 1280, v19
        v_add_u32 v{V_WM+5+q}, v19, v18
        """)
    a.I(f"""
    s_mul_i32 s76, s22, 51200
    s_add_u32 s77, s76, {8*51200}
    s_mul_i32 s78, s22, 204800
    s_mul_i32 s79, s22, 5120
    s_add_u32 s79, s79, {LW}
    s_add_u32 s80, s79, {8*5120}
    s_add_u32 s81, s79, {16*5120}
    """)
    def wdma(n):
        g, q = divmod(n, 5)
        skip = None
        if g == 2:
            skip = a.newlabel("k23_nw")
            a.I("s_cmp_ge_u32 s22, 4")
            a.I(f"s_cbranch_scc1 {skip}")
        a.I(f"s_add_u32 m0, s{79+g}, {q*1024}")
        a.I(f"buffer_load_dwordx4 v{V_WM + q + (5 if g == 2 else 0)}, s[8:11], s{76+g} offen lds")
        if skip: a.L(skip)
    def make_mask(first):
        a.I(f"""
        v_lshlrev_b32 v14, 2, v11
        v_sub_u32 v14, v12, v14
        v_mov_b32 v15, {NEG_INF:#x}
        """)
        for r in range(16):
            pr = 46 + 2*(r & 1)
            a.I(f"v_cmp_gt_i32 s[{pr}:{pr+1}], {key_of_reg(r)}, v14")
            if first: a.I(f"v_cndmask_b32 v{VC+r}, v15, 0, s[{pr}:{pr+1}]")
            else:     a.I(f"v_cndmask_b32 v{VC+r}, 0, v15, s[{pr}:{pr+1}]")
    l0 = a.newlabel("k2_r0"); l1 = a.newlabel("k2_r1")
    a.I("s_mov_b32 s27, 0")
    a.I("s_cmp_lg_u32 s21, 0")
    a.I(f"s_cbranch_scc1 {l0}")
    a.I("s_sub_u32 s27, 8, s22")
    for r in range(16): a.I(f"v_mov_b32 v{VC+r}, {NEG_INF:#x}")
    a.I(f"s_branch {l1}")
    a.L(l0)
    make_mask(True)
    a.L(l1)
    pf.stamp("masks")
    a.I("s_waitcnt vmcnt(0)")
    a.I("s_barrier")
    q_swap(a, VQM)
    a.I(f"""
    s_and_b32 s44, s20, 1
    s_lshl_b32 s45, s44, 8
    s_add_u32 s45, s45, {WS_PQ}
    s_xor_b32 s46, s44, 1
    s_lshl_b32 s46, s46, 10
    s_add_u32 s46, s46, {WS_PQ}
    v_mov_b32 v{VPQT}, 0
    v_mov_b32 v{VPQT+1}, 0
    """)
    a.I(f"buffer_load_dwordx4 {v(VPQM,4)}, v10, s[16:19], s45 offen")
    a.I("s_mov_b32 exec_hi, 0")
    a.I(f"buffer_load_dwordx2 {v(VPQT,2)}, v9, s[16:19], s46 offen")
    a.I("s_mov_b32 exec_hi, -1")
    nokv = a.newlabel("k2_nokv")
    a.I("s_cmp_ge_u32 s22, 3")
    a.I(f"s_cbranch_scc1 {nokv}")
    a.I(f"""
    s_mul_i32 s40, s20, 24
    s_add_u32 s40, s40, s22
    s_lshl_b32 s40, s40, 10
    s_add_u32 s40, s40, {WS_KVP}
    """)
    for i in range(8):
        a.I(f"buffer_load_dwordx4 {v(VR+4*i,4)}, v8, s[16:19], s40 offen")
        if i < 7: a.I("s_add_u32 s40, s40, 3072")
    a.L(nokv)
    pf.stamp("first")
    def rdK(i):
        a.I(f"ds_read_b64 {v(VKM[i&1],2)}, v{VAKM} offset:{LK + i*1280}")
        a.I(f"ds_read_b64 {v(VKM[i&1]+2,2)}, v{VAKM} offset:{LK + i*1280 + 512}")
        a.I(f"ds_read_b64 {v(VKT[i&1],2)}, v{VAKT} offset:{LK + i*1280 + 1024}")
    def rdV(i):
        a.I(f"s_mov_b32 exec_lo, {MASK20[0]:#x}")
        a.I(f"s_mov_b32 exec_hi, {MASK20[1]:#x}")
        a.I(f"ds_read_b128 {v(VV[0],4)}, v{VAV} offset:{i*1280}")
        a.I(f"ds_read_b128 {v(VV[1],4)}, v{VAV} offset:{i*1280 + 640}")
        a.I("s_mov_b64 exec, -1")
    def qk(i, wn=0):
        S = VS[i & 1]
        a.I(f"s_waitcnt lgkmcnt({wn})")
        if i == 0 or i == 8:
            a.I(f"v_mfma_f32_32x32x16_bf16 {v(S,16)}, {v(VKM[i&1],4)}, {v(VQM,4)}, {v(VC,16)}")
        else:
            ln = a.newlabel("k2_neg"); lj = a.newlabel("k2_join")
            a.I(f"s_cmp_gt_u32 s27, {i}")
            a.I(f"s_cbranch_scc1 {ln}")
            a.I(f"v_mfma_f32_32x32x16_bf16 {v(S,16)}, {v(VKM[i&1],4)}, {v(VQM,4)}, 0")
            a.I(f"s_branch {lj}")
            a.L(ln)
            a.I(f"v_mfma_f32_32x32x16_bf16 {v(S,16)}, {v(VKM[i&1],4)}, {v(VQM,4)}, {v(VC,16)}")
            a.L(lj)
        a.I(f"v_mfma_f32_32x32x8bf16_1k {v(S,16)}, {v(VKT[i&1],2)}, {v(VQT,2)}, {v(S,16)}")
    rdK(0); rdK(1); rdV(0)
    qk(0, 5)
    def a_reduce():
        a.I("s_waitcnt vmcnt(8)")
        nokv2 = a.newlabel("k2_nokv2")
        a.I("s_cmp_ge_u32 s22, 3")
        a.I(f"s_cbranch_scc1 {nokv2}")
        for i in range(1, 8):
            for k in range(4): a.I(f"v_add_f32 v{VR+k}, v{VR+k}, v{VR+4*i+k}")
        a.I(f"v_cvt_pk_bf16_f32 v{VR}, v{VR}, v{VR+1}")
        a.I(f"v_cvt_pk_bf16_f32 v{VR+1}, v{VR+2}, v{VR+3}")
        a.I(f"""
        s_lshl_b32 s41, s22, 3
        s_add_u32 s41, s41, {LKV}
        v_lshlrev_b32 v14, 4, v1
        v_add_u32 v14, s41, v14
        v_lshlrev_b32 v15, 3, v1
        v_add_u32 v15, {LKV + 1024}, v15
        s_cmp_eq_u32 s22, 2
        s_cselect_b64 s[46:47], -1, 0
        v_cndmask_b32 v14, v14, v15, s[46:47]
    """)
        a.I(f"ds_write_b64 v14, {v(VR,2)}")
        a.L(nokv2)
        q_swap(a, VPQM)

        a.I("s_waitcnt lgkmcnt(0)")
        a.I("s_barrier")
    def a_apply():
        AO = VR; AP = VR + 16
        a.I(f"v_lshlrev_b32 v14, 4, v1")
        a.I(f"v_lshlrev_b32 v15, 3, v1")
        a.I(f"ds_read_b128 {v(VKVM,4)}, v14 offset:{LKV}")
        a.I(f"ds_read_b64 {v(VKVT,2)}, v15 offset:{LKV+1024}")
        a.I(f"s_mov_b32 s43, {f2u(1e-6):#x}")
        a.I(f"s_mov_b32 s61, {WS_OA}")
        a.I("s_waitcnt lgkmcnt(0)")
        a.I(f"v_mfma_f32_32x32x16_bf16 {v(AO,16)}, {v(VKVM,4)}, {v(VPQM,4)}, 0")
        a.I(f"v_mfma_f32_32x32x8bf16_1k {v(AO,16)}, {v(VKVT,2)}, {v(VPQT,2)}, {v(AO,16)}")
    def a_store():
        normalize_store(a, VR, VR + 16, True, "s61")
    for i in range(9):
        S = VS[i & 1]
        if i == 7:
            make_mask(False)
        if i == AI: a_apply()
        if i < 8:
            qk(i+1, 2)
            if i + 2 <= 8: rdK(i+2)
        if i == AI: a_store()
        for hfs in range(2):
            for k in range(8): a.I(f"v_exp_f32 v{S+8*hfs+k}, v{S+8*hfs+k}")
            for k in range(4): a.I(f"v_cvt_pk_bf16_f32 v{VP+4*hfs+k}, v{S+8*hfs+2*k}, v{S+8*hfs+2*k+1}")
            if hfs == 0: a.I(f"s_waitcnt lgkmcnt({3 if i + 2 <= 8 else 0})")
            c = "0" if (i == 0 and hfs == 0) else v(VO,16)
            a.I(f"v_mfma_f32_32x32x16_bf16 {v(VO,16)}, {v(VV[hfs],4)}, {v(VP+4*hfs,4)}, {c}")
            if i < 8 and 2*i + hfs < 15: wdma(2*i + hfs)
        if i < 8: rdV(i+1)
        if i == AI - 1: a_reduce()
    pf.stamp("mainend")
    slow = a.newlabel("k2_slow"); fin = a.newlabel("k2_fin")
    def check():
        a.I(f"v_mov_b32 v9, 0")
        for i in range(12): a.I(f"v_fma_f32 v9, v{VO+i}, 0, v9")
        a.I(f"s_mov_b32 s50, {f2u(2.0**-64):#x}")
        a.I(f"s_mov_b32 s51, {f2u(2.0**64):#x}")
        a.I(f"v_cmp_nge_f32 s[52:53], v{VL}, s50")
        a.I(f"v_cmp_nle_f32 s[54:55], v{VL}, s51")
        a.I(f"v_cmp_u_f32 s[56:57], v9, v9")
        a.I("s_or_b64 s[52:53], s[52:53], s[54:55]")
        a.I("s_or_b64 s[52:53], s[52:53], s[56:57]")
        a.I("s_cmp_lg_u64 s[52:53], 0")
        if os.environ.get("FORCE_SLOW") == "1": a.I("s_cmp_eq_u32 s22, s22")
        a.I(f"s_cbranch_scc1 {slow}")
        a.L(fin)
    a.I(f"s_mov_b32 s60, {WS_OB}")
    normalize_store(a, VO, VP, False, "s60", 0, check)
    pf.stamp("bstore")
    a.I("s_waitcnt vmcnt(0)")
    a.I("s_barrier")
    lrest = a.newlabel("k23_rest"); lgo = a.newlabel("k23_go")
    a.I("s_cmp_ge_u32 s22, 4")
    a.I(f"s_cbranch_scc1 {lrest}")
    lnp = a.newlabel("k23_nopoll")
    a.I("s_cmp_lg_u32 s22, 0")
    a.I(f"s_cbranch_scc1 {lnp}")
    a.I(f"""
    s_lshl_b32 s23, s21, 5
    s_add_u32 s23, s23, s20
    s_lshl_b32 s23, s23, {FLAG_SH}
    s_add_u32 s23, s23, {WS_FLAG}
    v_mov_b32 v8, s23
    v_mov_b32 v9, 1
    s_mov_b64 exec, 1
    """)
    a.I("buffer_store_dword v9, v8, s[16:19], 0 offen sc1")
    a.I(f"""
    s_mov_b64 exec, -1
    s_lshr_b32 s23, s63, 1
    s_lshl_b32 s23, s23, {5 + FLAG_SH}
    s_add_u32 s23, s23, {WS_FLAG}
    v_and_b32 v8, 31, v1
    v_lshlrev_b32 v8, {FLAG_SH}, v8
    v_add_u32 v8, s23, v8
    s_mov_b32 s24, 0
    """)
    lp = a.newlabel("k23_poll"); lok = a.newlabel("k23_ok")
    a.L(lp)
    a.I("buffer_load_dword v9, v8, s[16:19], 0 offen sc1")
    a.I("s_add_u32 s24, s24, 1")
    a.I("s_waitcnt vmcnt(0)")
    a.I("v_cmp_ne_u32 s[46:47], 1, v9")
    a.I("s_cmp_eq_u64 s[46:47], 0")
    a.I(f"s_cbranch_scc1 {lok}")
    a.I(f"s_sleep {POLL_SLEEP}")
    a.I("s_cmp_lt_u32 s24, 0x8000")
    a.I(f"s_cbranch_scc1 {lp}")
    a.L(lok)
    a.L(lnp)
    a.I("s_barrier")
    pf.stamp("synced")
    projection(a, pf)
    a.L(lrest)
    if PROFILE: a.I("s_waitcnt vmcnt(0)")
    pf.finish(16, 22)
    a.I("s_endpgm")
    a.L(slow)
    a.I("s_waitcnt vmcnt(0)")
    S = VS[0]
    def slow_scores():
        lm = a.newlabel("k2s_m"); lf = a.newlabel("k2s_f"); ll = a.newlabel("k2s_l"); ln = a.newlabel("k2s_n"); lj = a.newlabel("k2s_j")
        a.I(f"s_mul_i32 s59, s58, 1280")
        a.I(f"v_add_u32 v9, s59, v{VAKM}")
        a.I(f"v_add_u32 v10, s59, v{VAKT}")
        a.I(f"ds_read_b64 {v(VKM[0],2)}, v9 offset:{LK}")
        a.I(f"ds_read_b64 {v(VKM[0]+2,2)}, v9 offset:{LK+512}")
        a.I(f"ds_read_b64 {v(VKT[0],2)}, v10 offset:{LK+1024}")
        a.I("s_cmp_eq_u32 s58, 8")
        a.I(f"s_cbranch_scc1 {ll}")
        a.I("s_cmp_gt_u32 s27, s58")
        a.I(f"s_cbranch_scc1 {ln}")
        a.I("s_cmp_eq_u32 s58, 0")
        a.I(f"s_cbranch_scc1 {lf}")
        for r in range(16): a.I(f"v_mov_b32 v{VC+r}, 0")
        a.I(f"s_branch {lj}")
        a.L(ln)
        for r in range(16): a.I(f"v_mov_b32 v{VC+r}, {NEG_INF:#x}")
        a.I(f"s_branch {lj}")
        a.L(lf)
        make_mask(True)
        a.I(f"s_branch {lj}")
        a.L(ll)
        make_mask(False)
        a.L(lj)
        a.I("s_waitcnt lgkmcnt(0)")
        a.I("s_nop 1")
        a.I(f"v_mfma_f32_32x32x16_bf16 {v(S,16)}, {v(VKM[0],4)}, {v(VQM,4)}, {v(VC,16)}")
        a.I(f"v_mfma_f32_32x32x8bf16_1k {v(S,16)}, {v(VKT[0],2)}, {v(VQT,2)}, {v(S,16)}")
        a.I("s_nop 15")
    VM = 13
    a.I(f"v_mov_b32 v{VM}, {NEG_INF:#x}")
    a.I("s_mov_b32 s58, 0")
    lp1 = a.newlabel("k2s_p1")
    a.L(lp1)
    slow_scores()
    for r in range(16): a.I(f"v_max_f32 v{VM}, v{VM}, v{S+r}")
    a.I("s_add_u32 s58, s58, 1")
    a.I("s_cmp_le_u32 s58, 8")
    a.I(f"s_cbranch_scc1 {lp1}")
    a.I(f"v_mov_b32 v9, v{VM}")
    a.I("s_nop 1")
    a.I(f"v_permlane32_swap_b32 v9, v{VM}")
    a.I("s_nop 1")
    a.I(f"v_max_f32 v{VM}, v{VM}, v9")
    for r in range(16): a.I(f"v_mov_b32 v{VO+r}, 0")
    a.I("s_mov_b32 s58, 0")
    lp2 = a.newlabel("k2s_p2")
    a.L(lp2)
    slow_scores()
    a.I(f"s_mul_i32 s59, s58, 1280")
    a.I(f"v_add_u32 v9, s59, v{VAV}")
    a.I(f"s_mov_b32 exec_lo, {MASK20[0]:#x}")
    a.I(f"s_mov_b32 exec_hi, {MASK20[1]:#x}")
    a.I(f"ds_read_b128 {v(VV[0],4)}, v9")
    a.I(f"ds_read_b128 {v(VV[1],4)}, v9 offset:640")
    a.I("s_mov_b64 exec, -1")
    for r in range(16): a.I(f"v_sub_f32 v{S+r}, v{S+r}, v{VM}")
    for r in range(16): a.I(f"v_exp_f32 v{S+r}, v{S+r}")
    a.I("s_nop 0")
    for k in range(8): a.I(f"v_cvt_pk_bf16_f32 v{VP+k}, v{S+2*k}, v{S+2*k+1}")
    a.I("s_waitcnt lgkmcnt(0)")
    a.I("s_nop 1")
    for hfs in range(2):
        a.I(f"v_mfma_f32_32x32x16_bf16 {v(VO,16)}, {v(VV[hfs],4)}, {v(VP+4*hfs,4)}, {v(VO,16)}")
    a.I("s_nop 15")
    a.I("s_add_u32 s58, s58, 1")
    a.I("s_cmp_le_u32 s58, 8")
    a.I(f"s_cbranch_scc1 {lp2}")
    a.I(f"v_cndmask_b32 v{VL}, v{VO+8}, v{VO+12}, s[38:39]")
    a.I("s_nop 1")
    a.I(f"s_branch {fin}")
    a.L(le)
    a.I("s_endpgm")
    a.raw(kd(name, K2_VGPRS))
```

```python
from common import *

K3_TOUCH = os.environ.get('K3_TOUCH', '1') == '1'
K3_LDS = 102400 + 512
RING = 4
V_OM=2; V_OT=3; V_T0=4; V_T1=5; V_OUT=6; V_OUT2=7
V_WM=8
V_RING=20
V_ACC=36
V_O=76
K3_VGPRS=240
def acc(t, rt): return V_ACC + (t*2+rt)*4
def oreg(s_, rt): return V_O + (s_*2+rt)*4

def gen_k3(a, name):
    a.raw(f".globl {name}\n.p2align 8\n.type {name},@function")
    a.L(name)
    le = a.newlabel("k3_end"); lb = a.newlabel("k3_b"); lj = a.newlabel("k3_j")
    a.I("s_cmp_ge_u32 s2, 256")
    a.I(f"s_cbranch_scc1 {le}")
    pf = Prof(a, 2); pf.start()
    a.I("s_load_dwordx4 s[24:27], s[0:1], 40")
    a.I("s_load_dwordx2 s[4:5], s[0:1], 16")
    a.I("s_load_dwordx2 s[28:29], s[0:1], 64")
    a.I("""
    s_and_b32 s3, s2, 7
    s_lshr_b32 s30, s2, 3
    s_lshr_b32 s44, s3, 2
    s_and_b32 s20, s3, 3
    s_lshl_b32 s20, s20, 2
    s_and_b32 s23, s30, 3
    s_add_u32 s20, s20, s23
    s_lshr_b32 s21, s30, 2
    v_lshrrev_b32 v18, 6, v0
    v_and_b32 v1, 63, v0
    """)
    a.I("v_readfirstlane_b32 s22, v18")
    a.I(f"""
    s_lshl_b32 s31, s20, 2
    s_add_u32 s31, s31, s22
    s_mul_i32 s32, s31, 1280
    s_cmp_eq_u32 s44, 0
    s_mov_b32 s33, {WS_OA}
    s_mov_b32 s34, {WS_OB}
    s_cselect_b32 s33, s33, s34
    s_add_u32 s32, s32, s33
    v_lshrrev_b32 v18, 4, v1
    v_and_b32 v19, 15, v1
    """)
    a.I(f"""
    v_lshrrev_b32 v20, 1, v18
    v_mul_u32_u24 v20, 81920, v20
    v_and_b32 v21, 1, v18
    v_lshl_add_u32 v20, v21, 9, v20
    v_lshl_add_u32 v20, v19, 4, v20
    v_add_u32 v{V_OM}, s32, v20
    v_mul_u32_u24 v20, {2*81920}, v18
    v_lshl_add_u32 v20, v19, 3, v20
    v_add_u32 v20, s32, v20
    v_add_u32 v{V_OT}, 1024, v20
    s_mul_i32 s35, s21, 160
    s_cmp_eq_u32 s44, 0
    s_cselect_b32 s45, 8, 4
    s_cselect_b32 s46, 4, 20
    """)
    for q in range(5):
        a.I(f"""
        v_add_u32 v20, {64*q}, v1
        v_mul_u32_u24 v21, 6554, v20
        v_lshrrev_b32 v21, 16, v21
        v_mul_u32_u24 v22, 10, v21
        v_sub_u32 v22, v20, v22
        v_lshlrev_b32 v22, 4, v22
        v_add_u32 v22, s35, v22
        v_lshrrev_b32 v23, 4, v21
        v_mul_u32_u24 v24, s45, v23
        v_add_u32 v24, v24, v21
        v_mul_u32_u24 v24, 1280, v24
        v_add_u32 v{V_WM+q}, v24, v22
        v_lshlrev_b32 v23, 1, v23
        v_bfe_u32 v24, v21, 2, 1
        v_add_u32 v23, v23, v24
        v_mul_u32_u24 v23, 40, v23
        v_bfe_u32 v24, v21, 3, 1
        v_mul_u32_u24 v24, s46, v24
        v_add_u32 v23, v23, v24
        v_and_b32 v24, 3, v21
        v_add3_u32 v23, v23, v24, 16
        v_mul_u32_u24 v23, 1280, v23
        v_add_u32 v{V_WM+5+q}, v23, v22
        """)
    a.I("s_waitcnt lgkmcnt(0)")
    pf.stamp("kernarg")
    a.I("s_cmp_eq_u32 s44, 0")
    a.I("s_cselect_b32 s4, s4, s24")
    a.I("s_cselect_b32 s5, s5, s25")
    srd(a, 8, 4, 5, 819200)
    srd(a, 16, 28, 29, WS_REC, WS0)
    srd(a, 12, 26, 27, 5242880)
    if K3_TOUCH:
        lmain = a.newlabel("k3_main")
        a.I("s_cmp_lt_u32 s22, 4")
        a.I(f"s_cbranch_scc1 {lmain}")
        a.I(f"""
        s_and_b32 s23, s3, 3
        s_lshl_b32 s23, s23, 4
        s_lshl_b32 s36, s30, 6
        s_add_u32 s23, s23, s36
        s_mul_i32 s23, s23, 1280
        s_add_u32 s23, s23, s33
        v_lshlrev_b32 v2, 7, v1
        s_mul_i32 s36, s30, 25600
        v_mov_b32 v3, {OOB:#x}
        v_cmp_gt_u32 s[38:39], 32, v1
        v_cndmask_b32 v4, v3, v2, s[38:39]
        v_cmp_gt_u32 s[38:39], 8, v1
        v_cndmask_b32 v5, v3, v2, s[38:39]
        """)
        a.I("buffer_load_dword v8, v2, s[8:11], s36 offen")
        a.I("buffer_load_dword v9, v2, s[16:19], s23 offen")
        a.I("s_add_u32 s36, s36, 8192")
        a.I("s_add_u32 s23, s23, 8192")
        a.I("buffer_load_dword v10, v2, s[8:11], s36 offen")
        a.I("buffer_load_dword v11, v2, s[16:19], s23 offen")
        a.I("s_add_u32 s36, s36, 8192")
        a.I("s_add_u32 s23, s23, 8192")
        a.I("buffer_load_dword v12, v2, s[8:11], s36 offen")
        a.I("buffer_load_dword v13, v4, s[16:19], s23 offen")
        a.I("s_add_u32 s36, s36, 8192")
        a.I("buffer_load_dword v14, v5, s[8:11], s36 offen")
        a.I("s_waitcnt vmcnt(0)")
        a.I("s_endpgm")
        a.L(lmain)
    vm = VmTrack()
    a.I("s_mul_i32 s36, s22, 5120")
    a.I("s_mul_i32 s37, s22, 51200")
    a.I("s_mul_i32 s38, s22, 204800")
    def ops_w(g):
        out = []
        for q in range(5):
            t = []
            if g < 4 and q == 0: t.append(f"s_add_u32 s39, s37, {g*4*51200}")
            t.append(f"s_add_u32 m0, s36, {g*4*5120 + q*1024}")
            so = "s39" if g < 4 else "s38"
            vw = V_WM + q + (0 if g < 4 else 5)
            t.append(f"buffer_load_dwordx4 v{vw}, s[8:11], {so} offen lds")
            out.append((t, ("W", g)))
        return out
    def ops_o(s_):
        out = []
        if s_ < 16:
            for rt in range(2):
                t = [f"s_mov_b32 s40, {s_*163840}"] if rt == 0 else []
                t.append(f"buffer_load_dwordx4 {v(oreg(s_,rt),4)}, v{V_OM}, s[16:19], s40 offen offset:{rt*256}")
                out.append((t, ("O", s_)))
        else:
            for u in range(2):
                for rt in range(2):
                    t = [f"s_mov_b32 s40, {(s_-16)*655360 + u*81920}"] if rt == 0 else []
                    t.append(f"buffer_load_dwordx2 {v(oreg(s_,rt)+2*u,2)}, v{V_OT}, s[16:19], s40 offen offset:{rt*128}")
                    out.append((t, ("O", s_)))
        return out
    def group_ops(g):
        out = ops_w(g)
        for s_ in range(4*g, 4*g+4): out += ops_o(s_)
        return out
    def emit_op(op):
        for t in op[0]: a.I(t)
        vm.add(op[1])
    for op in group_ops(0): emit_op(op)
    a.I(f"""
    v_lshrrev_b32 v18, 5, v1
    v_lshlrev_b32 v18, 4, v18
    v_bfe_u32 v19, v1, 4, 1
    v_lshl_add_u32 v18, v19, 2, v18
    v_bfe_u32 v19, v1, 2, 2
    v_add_u32 v18, v18, v19
    v_mul_u32_u24 v18, 160, v18
    v_and_b32 v19, 3, v1
    v_lshl_add_u32 v{V_T0}, v19, 3, v18
    v_add_u32 v{V_T1}, {12*5120}, v{V_T0}
    """)
    a.I(f"""
    v_lshrrev_b32 v18, 4, v1
    v_and_b32 v19, 15, v1
    s_lshl_b32 s41, s31, 5
    v_add_u32 v19, s41, v19
    v_mul_u32_u24 v19, 2560, v19
    s_mul_i32 s42, s44, 1280
    s_add_u32 s42, s42, s35
    v_add_u32 v19, s42, v19
    v_and_b32 v20, 1, v18
    v_lshlrev_b32 v20, 5, v20
    v_lshrrev_b32 v21, 1, v18
    v_lshl_add_u32 v20, v21, 4, v20
    v_add_u32 v{V_OUT}, v19, v20
    v_lshl_add_u32 v{V_OUT2}, v18, 3, v19
    s_mov_b32 s43, {16*2560}
    """)
    for op in group_ops(1): emit_op(op)
    pf.stamp("issued")
    visible = set()
    def point(s_):
        g = s_ // 4
        need_bar = g not in visible
        n, last = vm.wait_n(lambda t: t == ("O", s_) or (need_bar and t == ("W", g)))
        a.I(f"s_waitcnt vmcnt({n})")
        if need_bar:
            a.I("s_barrier")
            for t in vm.ops[:last+1]:
                if t[0] == "W": visible.add(t[1])
    def issue_tr(n):
        s_, t = divmod(n, 5)
        base = V_T0 if s_ < 12 else V_T1
        off = (s_ % 12) * 5120 + 32*t
        r = V_RING + (n % RING)*4
        a.I(f"ds_read_b64_tr_b16 {v(r,2)}, v{base} offset:{off}")
        a.I(f"ds_read_b64_tr_b16 {v(r+2,2)}, v{base} offset:{off+1280}")
    NT = 100
    point(0)
    pf.stamp("first")
    for n in range(RING-1): issue_tr(n)
    pending = []
    for n in range(NT):
        s_, t = divmod(n, 5)
        if n in (20, 40, 60, 80): pf.stamp(f"n{n}")
        m = n + RING - 1
        if m < NT:
            if m % 5 == 0: point(m // 5)
            issue_tr(m)
            a.I(f"s_waitcnt lgkmcnt({2*(RING-1)})")
        else:
            a.I(f"s_waitcnt lgkmcnt({2*(NT-1-n)})")
        wf = v(V_RING + (n % RING)*4, 4)
        for rt in range(2):
            d = v(acc(t, rt), 4)
            c = "0" if s_ == 0 else d
            a.I(f"v_mfma_f32_16x16x32_bf16 {d}, {wf}, {v(oreg(s_,rt),4)}, {c}")
        if n % 20 == 0 and n // 20 + 2 <= 4: pending = group_ops(n // 20 + 2)
        k = 2 if len(pending) > 19 - (n % 20) else 1
        for _ in range(k):
            if pending: emit_op(pending.pop(0))
    pf.stamp("mainend")
    P = V_O
    for rt in range(2):
        so = "s43" if rt else "0"
        for pr in range(2):
            p = P + rt*12 + pr*4
            for k, t in enumerate((2*pr, 2*pr+1)):
                r = acc(t, rt)
                a.I(f"v_cvt_pk_bf16_f32 v{p+2*k}, v{r}, v{r+1}")
                a.I(f"v_cvt_pk_bf16_f32 v{p+2*k+1}, v{r+2}, v{r+3}")
            a.I(f"v_permlane16_swap_b32 v{p}, v{p+2}")
            a.I(f"v_permlane16_swap_b32 v{p+1}, v{p+3}")
            a.I(f"buffer_store_dwordx4 {v(p,4)}, v{V_OUT}, s[12:15], {so} offen offset:{pr*64}{sfx(ST_K3)}")
        p = P + rt*12 + 8
        r = acc(4, rt)
        a.I(f"v_cvt_pk_bf16_f32 v{p}, v{r}, v{r+1}")
        a.I(f"v_cvt_pk_bf16_f32 v{p+1}, v{r+2}, v{r+3}")
        a.I(f"buffer_store_dwordx2 {v(p,2)}, v{V_OUT2}, s[12:15], {so} offen offset:128{sfx(ST_K3)}")
    pf.stamp("stored")
    if PROFILE: a.I("s_waitcnt vmcnt(0)")
    pf.finish(16, 22)
    a.L(le)
    a.I("s_endpgm")
    a.raw(kd(name, K3_VGPRS))
```

```python
from common import *

WB = 0; XB = 61440
K1_LDS = XB + 3*32768
KVD = XB + 32768
STAMPS = eval(os.environ.get('K1_STAMPS', '(4, 10, 16)'))
V_TX=2; V_TW=3; V_TD=4
V_T=5
V_XR=10; V_XR2=12
V_F=16
V_ACC=88
V_A=152
K1_VGPRS=168
NCOL = {"row": 4, "col": 4, "kv": 5}
def acc(kind, i, j): return V_ACC + (i*NCOL[kind] + j)*4
def fx(n, i): return V_F + (n & 1)*36 + i*4
def fw(n, j): return V_F + (n & 1)*36 + 16 + j*4
WST = {"row": 16384, "col": 16384, "kv": 20480}
WROW = {"row": 256, "col": 256, "kv": 320}

def main_loop(a, kind, pf):
    nc = NCOL[kind]; wst = WST[kind]; wr_ = WROW[kind]
    def reads(n):
        b, sp = n >> 1, n & 1
        st = b % 3
        xb = (V_XR2 if st == 2 else V_XR) + sp
        xo = 0 if st == 2 else st*32768
        def rw(j):
            off = WB + st*wst + sp*32*wr_
            return [f"ds_read_b64_tr_b16 {v(fw(n,j),2)}, v{V_T+j} offset:{off}",
                    f"ds_read_b64_tr_b16 {v(fw(n,j)+2,2)}, v{V_T+j} offset:{off+4*wr_}"]
        def rx(i): return [f"ds_read_b128 {v(fx(n,i),4)}, v{xb} offset:{xo + i*2048}"]
        out = []
        for k in range(4): out += rw(k) + rx(k)
        if nc == 5: out += rw(4)
        return out
    sched = eval(os.environ.get("K1_TOUCH", "{-1:[0,1,2,3], 0:[4,5], 2:[6,7], 4:[8,9]}"))
    tw = [0]
    seen = {}
    def do_touch(k):
        for b in sched.get(k, []):
            if isinstance(b, tuple):
                touch(a, b[0], seen[b[1]], True); seen[b[0]] = seen[b[1]]
            else:
                touch(a, b, tw[0] % 8); seen[b] = tw[0] % 8; tw[0] += 1
    touch_setup(a)
    do_touch(-1)
    yield "prologue"
    do_touch(-0.5)
    a.I("s_barrier")
    do_touch(0)
    pf.stamp("first")
    for t in reads(0): a.I(t)
    for n in range(20):
        b, sp = n >> 1, n & 1
        if n in STAMPS: pf.stamp(f"n{n}")
        a.I("s_waitcnt lgkmcnt(0)")
        if sp == 1 and b + 1 <= 9:
            a.I("s_barrier")
            do_touch(b + 1)
        rd = reads(n+1) if n < 19 else []
        for k in range(4*nc):
            i, j = divmod(k, nc)
            d = v(acc(kind, i, j), 4); c = "0" if n == 0 else d
            if kind == "row": a.I(f"v_mfma_f32_16x16x32_bf16 {d}, {v(fw(n,j),4)}, {v(fx(n,i),4)}, {c}")
            else:             a.I(f"v_mfma_f32_16x16x32_bf16 {d}, {v(fx(n,i),4)}, {v(fw(n,j),4)}, {c}")
            if k < len(rd): a.I(rd[k])

def loader_wave(a, kv, pf):
    a.I(f"""
    s_sub_u32 s24, s22, 8
    v_lshrrev_b32 v13, 3, v1
    v_and_b32 v14, 7, v1
    v_lshrrev_b32 v15, 1, v13
    v_xor_b32 v14, v14, v15
    s_lshl_b32 s23, s20, 8
    s_lshl_b32 s25, s24, 6
    s_add_u32 s23, s23, s25
    v_add_u32 v13, s23, v13
    v_mul_u32_u24 v13, 1280, v13
    v_lshl_add_u32 v2, v14, 4, v13
    v_xor_b32 v3, 64, v2
    s_lshl_b32 s26, s24, 13
    s_add_u32 s26, s26, {XB}
    """)
    if not kv:
        a.I(f"""
        v_lshrrev_b32 v13, 4, v1
        v_lshlrev_b32 v14, 1, v13
        v_and_b32 v15, 15, v1
        v_xor_b32 v14, v14, v15
        s_lshl_b32 s25, s24, 4
        v_add_u32 v13, s25, v13
        v_mul_u32_u24 v13, 3840, v13
        v_lshl_add_u32 v13, v14, 4, v13
        s_lshl_b32 s25, s21, 8
        v_add_u32 v4, s25, v13
        v_xor_b32 v5, 128, v4
        s_lshl_b32 s27, s24, 12
        s_add_u32 s27, s27, {WB}
        """)
        nw, wst = 4, 16384
        wreg = lambda q: 5 if q & 2 else 4
        woff = lambda q: q*15360
    else:
        tbl = 0
        for i, x in enumerate([0,1,3,4,5,6,8,9,2,7]): tbl |= x << (4*i)
        a.I(f"s_mov_b32 s32, {tbl & 0xffffffff:#x}")
        a.I(f"s_mov_b32 s33, {tbl >> 32:#x}")
        a.I("s_mul_i32 s23, s21, 160")
        a.I("s_add_u32 s23, s23, 1280")
        a.I("s_lshl_b32 s25, s24, 4")
        for q in range(5):
            a.I(f"""
            v_add_u32 v12, {64*q}, v1
            v_mul_u32_u24 v13, 3277, v12
            v_lshrrev_b32 v13, 16, v13
            v_mul_u32_u24 v14, 20, v13
            v_sub_u32 v14, v12, v14
            v_lshrrev_b32 v15, 3, v13
            v_lshlrev_b32 v15, 1, v15
            v_xor_b32 v14, v14, v15
            v_cmp_le_u32 s[36:37], 10, v14
            v_cndmask_b32 v15, 0, 10, s[36:37]
            v_sub_u32 v14, v14, v15
            v_lshlrev_b32 v14, 2, v14
            v_lshrrev_b64 v[16:17], v14, s[32:33]
            v_and_b32 v16, 15, v16
            v_lshlrev_b32 v15, 3, v15
            v_lshl_add_u32 v15, v16, 4, v15
            v_cmp_le_u32 s[36:37], 5, v16
            v_mov_b32 v17, 1200
            v_cndmask_b32 v17, 0, v17, s[36:37]
            v_add_u32 v13, s25, v13
            v_mul_u32_u24 v13, 3840, v13
            v_add3_u32 v13, v13, v15, v17
            v_add_u32 v{4+q}, s23, v13
            """)
        a.I("s_mul_i32 s27, s24, 5120")
        nw, wst = 5, 20480
        wreg = lambda q: 4 + q
        woff = lambda q: 0
    def issue_stage(b):
        st = b % 3
        def dx(qq):
            a.I(f"s_add_u32 m0, s26, {st*32768 + qq*1024}")
            a.I(f"s_mov_b32 s35, {qq*10240 + b*128}")
            a.I(f"buffer_load_dwordx4 v{3 if qq & 1 else 2}, s[8:11], s35 offen lds")
        def dw(qq):
            a.I(f"s_add_u32 m0, s27, {st*wst + qq*1024}")
            a.I(f"s_mov_b32 s35, {woff(qq) + b*245760}")
            a.I(f"buffer_load_dwordx4 v{wreg(qq)}, s[12:15], s35 offen lds")
        for q in range(4):
            dw(q); dx(2*q); dx(2*q+1)
        if nw == 5: dw(4)
    per = 8 + nw
    if os.environ.get("LD_PRIO"): a.I(f"s_setprio {os.environ['LD_PRIO']}")
    issue_stage(0)
    pf.stamp("l_iss0")
    issue_stage(1)
    pf.stamp("l_iss1")
    for b in range(0, 10):
        a.I(f"s_waitcnt vmcnt({per if b <= 8 else 0})")
        if b <= 2: pf.stamp(f"l_land{b}")
        a.I("s_barrier")
        if b + 2 <= 9: issue_stage(b + 2)
    pf.finish(16, 22)
    a.I("s_endpgm")

def touch_setup(a):
    a.I(f"""
    v_and_b32 v13, 31, v1
    s_and_b32 s23, s3, 1
    s_lshl_b32 s23, s23, 10
    s_lshl_b32 s24, s30, 5
    s_add_u32 s23, s23, s24
    v_add_u32 v13, s23, v13
    v_mul_u32_u24 v13, 1280, v13
    v_mov_b32 v14, {OOB:#x}
    v_cmp_gt_u32 s[48:49], 32, v1
    v_cndmask_b32 v{V_TX}, v14, v13, s[48:49]
    v_and_b32 v15, 15, v1
    v_add_u32 v13, s50, v15
    v_mov_b32 v16, s52
    v_cmp_le_u32 s[36:37], s51, v15
    v_cndmask_b32 v16, 0, v16, s[36:37]
    v_cmp_le_u32 s[36:37], s53, v15
    v_cndmask_b32 v17, 0, 5, s[36:37]
    v_add3_u32 v13, v13, v16, v17
    v_lshlrev_b32 v13, 7, v13
    v_bfe_u32 v15, v1, 4, 1
    s_lshl_b32 s24, s30, 1
    v_add_u32 v15, s24, v15
    v_mul_u32_u24 v15, 3840, v15
    v_add_u32 v13, v13, v15
    v_cndmask_b32 v{V_TW}, v13, v14, s[48:49]
    """)
def touch_ops(a, b, d0=V_TD, d1=V_TD):
    a.I(f"buffer_load_dword v{d0}, v{V_TX}, s[8:11], 0 offen offset:{b*128}")
    a.I(f"s_mov_b32 s35, {b*245760}")
    a.I(f"buffer_load_dword v{d1}, v{V_TW}, s[12:15], s35 offen")
def touch(a, b, wave, wait=False):
    l = a.newlabel("k1_nt")
    a.I(f"s_cmp_lg_u32 s22, {wave}")
    a.I(f"s_cbranch_scc1 {l}")
    if wait: a.I("s_waitcnt vmcnt(0)")
    touch_ops(a, b)
    a.L(l)

def phi_regs(a, regs, tm):
    for q, r in enumerate(regs):
        for i in (0, 2): a.I(f"v_pk_mul_f32 {v(tm+4*q+i,2)}, {v(r+i,2)}, s[42:43]")
    for q, r in enumerate(regs):
        for i in range(4): a.I(f"v_exp_f32 v{tm+4*q+i}, v{tm+4*q+i} clamp")
    for q, r in enumerate(regs):
        for i in range(4): a.I(f"v_max_f32 v{r+i}, s44, v{r+i}")
    for q, r in enumerate(regs):
        for i in (0, 2): a.I(f"v_pk_add_f32 {v(r+i,2)}, {v(r+i,2)}, {v(tm+4*q+i,2)}")
def phi_consts(a):
    a.I(f"s_mov_b32 s42, {f2u(LOG2E):#x}")
    a.I(f"s_mov_b32 s43, {f2u(LOG2E):#x}")
    a.I(f"s_mov_b32 s44, {f2u(1e-6):#x}")
def pack(a, d, r0, r1):
    for rt, r in enumerate((r0, r1)):
        a.I(f"v_cvt_pk_bf16_f32 v{d+2*rt}, v{r}, v{r+1}")
        a.I(f"v_cvt_pk_bf16_f32 v{d+2*rt+1}, v{r+2}, v{r+3}")

def epilogue_flat(a, mode, sfx_):
    P = V_F + 16
    if mode == "phi": phi_consts(a)
    if mode == "scale":
        a.I(f"s_mov_b32 s42, {f2u(QSCALE):#x}")
        a.I(f"s_mov_b32 s43, {f2u(QSCALE):#x}")
    k = 0
    for p in range(2):
        for j in range(4):
            d = P + (k % 8)*4; tm = V_F + (k % 2)*8; k += 1
            regs = [acc("row", 2*p, j), acc("row", 2*p+1, j)]
            if mode == "phi": phi_regs(a, regs, tm)
            if mode == "scale":
                for q, r in enumerate(regs):
                    for i in (0, 2): a.I(f"v_pk_mul_f32 {v(r+i,2)}, {v(r+i,2)}, s[42:43]")
            pack(a, d, regs[0], regs[1])
            a.I(f"buffer_store_dwordx4 {v(d,4)}, v{V_A+j}, s[16:19], 0 offen offset:{p*1280}{sfx(sfx_)}")

def epilogue_kv(a, pf):
    PK0=V_F; PK1=V_F+4; VV0=V_F+8; VV1=V_F+12; T6P=V_F+16; T6O=V_F+20
    M = V_F + 24; tm = V_F + 56
    phi_consts(a)
    a.I("v_and_b32 v13, 15, v1")
    a.I("v_cmp_gt_u32 s[40:41], 8, v13")
    a.I("v_mov_b32 v14, 0x3f803f80")
    for p in range(2):
        i0, i1 = 2*p, 2*p+1
        A = lambda i, t: acc("kv", i, t)
        pack(a, VV0, A(i0,2), A(i1,2)); pack(a, VV1, A(i0,3), A(i1,3))
        pack(a, T6O, A(i0,4), A(i1,4))
        for k in range(4): a.I(f"v_cndmask_b32 v{T6O+k}, v{T6O+k}, v14, s[40:41]")
        for t, dst in ((0, PK0), (1, PK1), (4, T6P)):
            phi_regs(a, [A(i0,t), A(i1,t)], tm)
            pack(a, dst, A(i0,t), A(i1,t))
        pairs = [(PK0,VV0),(PK1,VV1),(PK0,T6O),(PK1,T6O),(T6P,VV0),(T6P,VV1),(T6P,T6O)]
        for k, (x, y) in enumerate(pairs):
            c = "0" if p == 0 else v(M+4*k,4)
            a.I(f"v_mfma_f32_16x16x32_bf16 {v(M+4*k,4)}, {v(x,4)}, {v(y,4)}, {c}")
    pf.stamp("kvm")
    a.I("s_mul_i32 s45, s22, 7168")
    a.I(f"s_add_u32 s45, s45, {KVD}")
    a.I("v_lshlrev_b32 v12, 4, v1")
    a.I("v_add_u32 v12, s45, v12")
    for k in range(7): a.I(f"ds_write_b128 v12, {v(M+4*k,4)} offset:{k*1024}")
    a.I("s_waitcnt lgkmcnt(0)")
    a.I("s_barrier")
    R = V_F
    def task(st):
        a.I(f"""
        s_cmp_ge_u32 {st}, 6
        s_cselect_b32 s54, 1, 0
        s_mul_i32 s55, s54, 6
        s_sub_u32 s55, {st}, s55
        s_cmp_ge_u32 s55, 3
        s_cselect_b32 s45, 1, 0
        s_mul_i32 s46, s45, 3
        s_sub_u32 s46, s55, s46
        v_lshrrev_b32 v12, 5, v1
        v_and_b32 v13, 31, v1
        s_lshl_b32 s47, s46, 1
        v_add_u32 v14, s47, v12
        v_mov_b32 v15, s45
        s_cmp_eq_u32 s46, 2
        s_cselect_b64 s[48:49], -1, 0
        v_cndmask_b32 v14, v14, v15, s[48:49]
        s_add_u32 s50, s45, 4
        s_add_u32 s51, s45, 2
        s_cmp_eq_u32 s46, 2
        s_cselect_b32 s50, s50, s45
        s_cselect_b32 s51, 6, s51
        v_mov_b32 v8, s51
        v_mov_b32 v9, s50
        v_cmp_gt_u32 s[52:53], 16, v13
        v_cndmask_b32 v8, v8, v9, s[52:53]
        s_lshl_b32 s56, s45, 2
        s_sub_u32 s56, s56, 8
        v_add_u32 v9, s56, v13
        v_cmp_gt_u32 s[58:59], 20, v13
        v_cndmask_b32 v9, 0, v9, s[58:59]
        v_cndmask_b32 v9, v9, v13, s[52:53]
        v_lshl_add_u32 v9, v14, 4, v9
        v_lshlrev_b32 v9, 4, v9
        v_lshl_add_u32 v9, v8, 10, v9
        s_mul_i32 s57, s54, 7168
        s_add_u32 s57, s57, {KVD}
        v_add_u32 v9, s57, v9
        """)
        for w_ in range(4): a.I(f"ds_read_b128 {v(R+4*w_,4)}, v9 offset:{w_*2*7168}")
        a.I(f"""
        s_lshl_b32 s55, s21, 2
        s_lshl_b32 s57, s54, 1
        s_add_u32 s55, s55, s57
        s_add_u32 s55, s55, s45
        s_lshl_b32 s55, s55, 3
        s_add_u32 s55, s55, s20
        s_mul_i32 s55, s55, 3
        s_add_u32 s55, s55, s46
        s_lshl_b32 s55, s55, 10
        s_add_u32 s55, s55, {WS_KVP}
        v_lshlrev_b32 v10, 4, v1
        v_add_u32 v10, s55, v10
        """)
        for w_ in range(1, 4):
            a.I(f"s_waitcnt lgkmcnt({3-w_})")
            for i in range(4): a.I(f"v_add_f32 v{R+i}, v{R+i}, v{R+4*w_+i}")
        a.I(f"buffer_store_dwordx4 {v(R,4)}, v10, s[16:19], 0 offen{sfx(ST_K1)}")
    task("s22")
    l2 = a.newlabel("k1_kv2")
    a.I("s_cmp_ge_u32 s22, 4")
    a.I(f"s_cbranch_scc1 {l2}")
    a.I("s_add_u32 s60, s22, 8")
    a.I("s_nop 1")
    task("s60")
    a.L(l2)

def gen_k1(a, name):
    a.raw(f".globl {name}\n.p2align 8\n.type {name},@function")
    a.L(name)
    le = a.newlabel("k1_end")
    pf = Prof(a, 0)
    a.I("s_cmp_ge_u32 s2, 256")
    a.I(f"s_cbranch_scc1 {le}")
    pf.start()
    a.I("s_load_dwordx4 s[4:7], s[0:1], 0")
    a.I("s_load_dwordx4 s[44:47], s[0:1], 24")
    a.I("s_load_dwordx2 s[28:29], s[0:1], 64")
    lB = a.newlabel("k1_decB"); lD = a.newlabel("k1_dec")
    a.I("""
    s_and_b32 s3, s2, 7
    s_lshr_b32 s30, s2, 3
    s_lshr_b32 s31, s3, 2
    s_and_b32 s20, s3, 1
    s_lshl_b32 s20, s20, 2
    s_and_b32 s23, s30, 3
    s_add_u32 s20, s20, s23
    s_lshr_b32 s38, s3, 1
    s_and_b32 s38, s38, 1
    s_lshr_b32 s34, s30, 2
    v_lshrrev_b32 v13, 6, v0
    v_and_b32 v1, 63, v0
    s_cmp_eq_u32 s31, 0
    """)
    a.I(f"s_cbranch_scc0 {lB}")
    a.I("""
    s_sub_u32 s23, 3, s38
    s_mul_i32 s24, s38, 3
    s_add_u32 s21, s34, s24
    s_sub_u32 s25, s34, s23
    s_lshl_b32 s24, s38, 2
    s_add_u32 s24, s24, s25
    s_cmp_lt_u32 s34, s23
    s_cselect_b32 s21, s21, s24
    s_cselect_b32 s61, 0, 1
    s_add_u32 s23, s23, 4
    s_cmp_ge_u32 s34, s23
    s_cselect_b32 s61, 2, s61
    s_mul_i32 s50, s38, 6
    s_lshl_b32 s24, s38, 1
    s_sub_u32 s51, 6, s24
    s_add_u32 s52, s38, 4
    s_add_u32 s53, s51, 5
    """)
    a.I(f"s_branch {lD}")
    a.L(lB)
    a.I("""
    s_lshl_b32 s21, s38, 3
    s_add_u32 s21, s21, s34
    s_cmp_ge_u32 s21, 15
    s_cselect_b32 s61, 2, 0
    s_lshl_b32 s50, s38, 4
    s_mov_b32 s51, 16
    s_mov_b32 s52, 0
    s_mov_b32 s53, 16
    """)
    a.L(lD)
    a.I("v_readfirstlane_b32 s22, v13")
    a.I("s_waitcnt lgkmcnt(0)")
    pf.stamp("kernarg")
    a.I("s_cmp_eq_u32 s31, 0")
    for i in range(4): a.I(f"s_cselect_b32 s{4+i}, s{4+i}, s{44+i}")
    srd(a, 8, 4, 5, 2621440)
    srd(a, 12, 6, 7, 2457600)
    srd(a, 16, 28, 29, WS_REC, WS0)
    lx = a.newlabel("k1_spare"); lh = a.newlabel("k1_mfma"); lkl = a.newlabel("k1_ldkv"); lkv = a.newlabel("k1_kv")
    a.I("s_cmp_eq_u32 s61, 2")
    a.I(f"s_cbranch_scc1 {lx}")
    n0 = (pf.n, list(pf.names))
    def reset(): pf.n, pf.names = n0[0], list(n0[1])
    a.I("s_cmp_lt_u32 s22, 8")
    a.I(f"s_cbranch_scc1 {lh}")
    a.I("s_cmp_eq_u32 s61, 1")
    a.I(f"s_cbranch_scc1 {lkl}")
    loader_wave(a, False, pf); reset()
    a.L(lkl)
    loader_wave(a, True, pf); reset()
    a.L(lh)
    if os.environ.get("CODE_PF", "1") == "1":
        lc = a.newlabel("k1_nocode"); lpc = a.newlabel("k1_pc")
        a.I("s_cmp_lg_u32 s30, 0")
        a.I(f"s_cbranch_scc1 {lc}")
        a.I("s_cmp_ge_u32 s22, 6")
        a.I(f"s_cbranch_scc1 {lc}")
        a.I("s_getpc_b64 s[84:85]")
        a.L(lpc)
        a.raw(f"    s_sub_u32 s84, s84, {lpc}-{name}")
        a.I("s_subb_u32 s85, s85, 0")
        a.I("s_lshl_b32 s86, s22, 6")
        a.I("v_add_u32 v14, s86, v1")
        a.I("v_lshlrev_b32 v14, 7, v14")
        a.raw(f"    s_mov_b32 s87, code_end_label-{name}")
        a.I("v_cmp_gt_u32 vcc, s87, v14")
        a.I("s_and_saveexec_b64 s[88:89], vcc")
        lz = a.newlabel("k1_codez")
        a.I(f"s_cbranch_execz {lz}")
        a.I("v_mov_b32 v17, s85")
        a.I("v_add_co_u32 v16, vcc, s84, v14")
        a.I("v_addc_co_u32 v17, vcc, 0, v17, vcc")
        a.I("global_load_dword v4, v[16:17], off")
        a.L(lz)
        a.I("s_mov_b64 exec, -1")
        a.L(lc)
    a.I("s_cmp_eq_u32 s61, 1")
    a.I(f"s_cbranch_scc1 {lkv}")
    a.I("""
    s_mul_i32 s32, s21, 52
    s_lshr_b32 s32, s32, 8
    s_mul_i32 s23, s32, 5
    s_sub_u32 s33, s21, s23
    """)
    lcol = a.newlabel("k1_col"); lepi = a.newlabel("k1_epi")
    def x_addr():
        a.I(f"""
        v_lshrrev_b32 v13, 4, v1
        v_and_b32 v14, 15, v1
        v_lshrrev_b32 v15, 1, v14
        v_xor_b32 v15, v15, v13
        s_lshl_b32 s39, s36, 13
        s_add_u32 s39, s39, {XB}
        v_lshlrev_b32 v16, 7, v14
        v_add_u32 v16, s39, v16
        v_lshl_add_u32 v{V_XR}, v15, 4, v16
        v_xor_b32 v{V_XR+1}, 64, v{V_XR}
        v_add_u32 v{V_XR2}, 0x10000, v{V_XR}
        v_add_u32 v{V_XR2+1}, 0x10000, v{V_XR+1}
        """)
    def addr_setup_flat():
        a.I(f"""
        s_lshr_b32 s36, s22, 1
        s_and_b32 s37, s22, 1
        v_lshrrev_b32 v13, 4, v1
        v_bfe_u32 v14, v1, 2, 2
        v_lshl_add_u32 v15, v13, 3, v14
        v_lshlrev_b32 v15, 8, v15
        v_and_b32 v16, 3, v1
        v_lshl_add_u32 v15, v16, 3, v15
        v_and_b32 v16, 1, v13
        v_lshl_or_b32 v16, v16, 2, v14
        s_lshl_b32 s40, s37, 2
        """)
        for j in range(4):
            a.I(f"s_add_u32 s39, s40, {j}")
            a.I(f"v_xor_b32 v17, s39, v16")
            a.I(f"v_lshl_add_u32 v{V_T+j}, v17, 5, v15")
        x_addr()
        a.I(f"""
        s_mul_i32 s40, s32, {BUF}
        s_cmp_eq_u32 s31, 0
        s_cselect_b32 s40, {WS_PQ}, s40
        s_lshl_b32 s41, s20, 3
        s_lshl_b32 s39, s36, 1
        s_add_u32 s41, s41, s39
        s_mul_i32 s41, s41, 1280
        s_add_u32 s40, s40, s41
        """)
    def addr_row():
        a.I(f"""
        s_lshl_b32 s39, s33, 5
        s_lshl_b32 s41, s37, 4
        s_add_u32 s39, s39, s41
        v_lshrrev_b32 v19, 4, v1
        v_add_u32 v15, s39, v19
        v_lshlrev_b32 v16, 4, v14
        v_add_u32 v16, s40, v16
        """)
        for j in range(4):
            a.I(f"""
            v_add_u32 v17, {4*j}, v15
            v_mul_u32_u24 v18, 205, v17
            v_lshrrev_b32 v18, 10, v18
            v_mul_u32_u24 v18, 80640, v18
            v_lshl_add_u32 v17, v17, 8, v16
            v_add_u32 v{V_A+j}, v17, v18
            """)
    def addr_col():
        a.I(f"""
        s_lshl_b32 s39, s33, 7
        s_lshl_b32 s41, s37, 6
        s_add_u32 s39, s39, s41
        v_add_u32 v15, s39, v14
        v_lshrrev_b32 v19, 4, v1
        v_mul_u32_u24 v16, 320, v19
        v_add_u32 v16, s40, v16
        """)
        for j in range(4):
            a.I(f"""
            v_add_u32 v17, {16*j}, v15
            v_mul_u32_u24 v18, 3277, v17
            v_lshrrev_b32 v18, 16, v18
            v_mul_u32_u24 v18, 81600, v18
            v_lshl_add_u32 v17, v17, 4, v16
            v_add_u32 v{V_A+j}, v17, v18
            """)
    a.I("s_cmp_eq_u32 s32, 2")
    a.I(f"s_cbranch_scc1 {lcol}")
    ldn = a.newlabel("k1_done")
    g = main_loop(a, "row", pf); next(g)
    addr_setup_flat(); addr_row()
    for _ in g: pass
    a.I("s_waitcnt vmcnt(0)")
    pf.stamp("mainend")
    lnp = a.newlabel("k1_nophi"); lst = a.newlabel("k1_plain")
    a.I("s_cmp_lg_u32 s31, 0")
    a.I(f"s_cbranch_scc1 {lnp}")
    epilogue_flat(a, "phi", ST_K1)
    a.I(f"s_branch {ldn}")
    a.L(lnp)
    a.I("s_cmp_lg_u32 s32, 0")
    a.I(f"s_cbranch_scc1 {lst}")
    epilogue_flat(a, "scale", ST_K1)
    a.I(f"s_branch {ldn}")
    a.L(lst)
    epilogue_flat(a, "none", ST_K1)
    a.I(f"s_branch {ldn}")
    reset()
    a.L(lcol)
    g = main_loop(a, "col", pf); next(g)
    addr_setup_flat(); addr_col()
    for _ in g: pass
    a.I("s_waitcnt vmcnt(0)")
    pf.stamp("mainend")
    epilogue_flat(a, "none", os.environ.get("ST_K1V", ST_K1))
    a.I(f"s_branch {ldn}")
    reset()
    a.L(lkv)
    g = main_loop(a, "kv", pf); next(g)
    a.I(f"""
    s_lshr_b32 s36, s22, 1
    s_and_b32 s37, s22, 1
    v_lshrrev_b32 v13, 4, v1
    v_bfe_u32 v14, v1, 2, 2
    v_lshl_add_u32 v15, v13, 3, v14
    v_mul_u32_u24 v15, 320, v15
    v_and_b32 v16, 3, v1
    v_lshl_add_u32 v15, v16, 3, v15
    v_and_b32 v16, 1, v13
    s_mul_i32 s40, s37, 5
    """)
    for t in range(5):
        a.I(f"s_add_u32 s39, s40, {t}")
        a.I(f"v_xor_b32 v17, s39, v16")
        a.I(f"v_lshl_add_u32 v{V_T+t}, v17, 5, v15")
    x_addr()
    for _ in g: pass
    a.I("s_waitcnt vmcnt(0)")
    pf.stamp("mainend")
    epilogue_kv(a, pf)
    a.L(ldn)
    pf.stamp("stored")
    if PROFILE: a.I("s_waitcnt vmcnt(0)")
    pf.finish(16, 22)
    a.I("s_endpgm")
    a.L(lx)
    lnt = a.newlabel("k1_spare_nt")
    a.I("s_lshl_b32 s23, s22, 6")
    a.I("v_add_u32 v7, s23, v1")
    a.I("s_cmp_lg_u32 s22, 0")
    a.I(f"s_cbranch_scc1 {lnt}")
    touch_setup(a)
    touch_ops(a, 0, 8, 9)
    touch_ops(a, 1, 10, 11)
    for b in range(2, 10):
        a.I("s_waitcnt vmcnt(2)")
        touch_ops(a, b, 8 + 2*(b & 1), 9 + 2*(b & 1))
    a.I("s_waitcnt vmcnt(0)")
    a.L(lnt)
    lnf = a.newlabel("k1_noflag")
    a.I("s_cmp_lg_u32 s2, 255")
    a.I(f"s_cbranch_scc1 {lnf}")
    a.I("s_cmp_lt_u32 s22, 1")
    a.I(f"s_cbranch_scc1 {lnf}")
    a.I("s_cmp_gt_u32 s22, 4")
    a.I(f"s_cbranch_scc1 {lnf}")
    a.I("v_subrev_u32 v6, 64, v7")
    a.I(f"v_lshlrev_b32 v6, {FLAG_SH}, v6")
    a.I(f"v_add_u32 v6, {WS_FLAG}, v6")
    a.I("v_mov_b32 v8, 0")
    a.I("buffer_store_dword v8, v6, s[16:19], 0 offen")
    a.L(lnf)
    if os.environ.get("WO_PF", "1") == "1":
        lz2 = a.newlabel("k1_nopf")
        a.I("s_cmp_lt_u32 s30, 28")
        a.I(f"s_cbranch_scc1 {lz2}")
        a.I("s_add_u32 s23, s3, 2")
        a.I("s_and_b32 s23, s23, 7")
        a.I("s_cmp_ge_u32 s23, 4")
        a.I(f"s_cbranch_scc1 {lz2}")
        a.I("s_load_dwordx2 s[48:49], s[0:1], 16")
        a.I("s_load_dwordx2 s[50:51], s[0:1], 40")
        a.I("""
        s_and_b32 s20, s3, 1
        s_and_b32 s21, s30, 3
        s_lshl_b32 s21, s21, 1
        s_add_u32 s20, s20, s21
        s_mul_i32 s20, s20, 102400
        v_lshlrev_b32 v2, 7, v7
        v_add_u32 v2, s20, v2
        """)
        a.I("s_waitcnt lgkmcnt(0)")
        a.I("s_cmp_eq_u32 s31, 0")
        a.I("s_cselect_b32 s4, s48, s50")
        a.I("s_cselect_b32 s5, s49, s51")
        srd(a, 8, 4, 5, 819200)
        a.I("buffer_load_dword v4, v2, s[8:11], 0 offen")
        a.I("s_mov_b32 s21, 73728")
        a.I("v_cmp_gt_u32 vcc, 224, v7")
        a.I("s_and_saveexec_b64 s[22:23], vcc")
        lz = a.newlabel("k1_pfz")
        a.I(f"s_cbranch_execz {lz}")
        a.I("buffer_load_dword v5, v2, s[8:11], s21 offen")
        a.L(lz)
        a.I("s_mov_b64 exec, -1")
        a.I("s_waitcnt vmcnt(0)")
        a.L(lz2)
    a.L(le)
    a.I("s_endpgm")
    a.raw(kd(name, K1_VGPRS))
```

```python
from common import *

LK = 0
LV = 16*1280
LKV = 32*1280
LW = 43008
K2_LDS = LW + 102400 + 512
VAKM=2; VAKT=3; VAV=4; VAO=5; VAOT=6; VL=7
VC=16; VS=(32,48); VO=64; VQM=80; VQT=84
VKM=(86,90); VKT=(94,96); VV=(98,102); VP=106
VPQM=114; VPQT=118; VKVM=120; VKVT=124
VR=128
V_WM=160
K2_VGPRS=240
V_OM=2; V_OT=3; V_T0=4; V_T1=5; V_OUT=6; V_OUT2=7
V_RING=20; V_ACC=36; V_O=76; RING=4
def acc3(t, rt): return V_ACC + (t*2+rt)*4
def oreg(s_, rt): return V_O + (s_*2+rt)*4
POLL_SLEEP = int(os.environ.get('POLL_SLEEP', '8'))
WO_TOUCH = os.environ.get('WO_TOUCH', '0') == '1'
O_TOUCH = os.environ.get('O_TOUCH', '0') == '1'
AI = int(os.environ.get('AI', '4'))
MASK20 = (0x000FFFFF, 0x000FFFFF)

def kappa_code(a, m, dst, tmp):
    a.I(f"""
    v_and_b32 v{dst}, 7, v{m}
    v_bfe_u32 v{tmp}, v{m}, 3, 1
    v_lshl_or_b32 v{dst}, v{tmp}, 4, v{dst}
    v_bfe_u32 v{tmp}, v{m}, 4, 1
    v_lshl_or_b32 v{dst}, v{tmp}, 3, v{dst}
    """)

def key_of_reg(r):
    s_, b, i = r >> 3, (r >> 2) & 1, r & 3
    return 16*b + 8*s_ + i

def normalize_store(a, O, P, add_eps, so, off=0, check=None):
    a.I(f"v_cndmask_b32 v{VL}, v{O+8}, v{O+12}, s[38:39]")
    if add_eps: a.I(f"v_add_f32 v{VL}, s43, v{VL}")
    if check: check()
    a.I(f"v_rcp_f32 v8, v{VL}")
    for i in range(12): a.I(f"v_mul_f32 v{O+i}, v8, v{O+i}")
    for i in range(6): a.I(f"v_cvt_pk_bf16_f32 v{P+i}, v{O+2*i}, v{O+2*i+1}")
    a.I(f"buffer_store_dwordx4 {v(P,4)}, v{VAO}, s[16:19], {so} offen offset:{off}{sfx(ST_K2)}")
    a.I(f"buffer_store_dwordx2 {v(P+4,2)}, v{VAOT}, s[16:19], {so} offen offset:{off}{sfx(ST_K2)}")

def out_addr(a, stile):
    a.I(f"""
    s_mul_i32 s36, {stile}, 1280
    v_lshlrev_b32 v14, 4, v1
    v_add_u32 v{VAO}, s36, v14
    v_lshlrev_b32 v14, 3, v12
    v_add_u32 v14, s36, v14
    v_add_u32 v14, 1024, v14
    v_mov_b32 v15, {OOB:#x}
    v_cndmask_b32 v{VAOT}, v15, v14, s[38:39]
    """)

def q_addr(a, dst):
    a.I(f"""
    v_and_b32 v13, 15, v1
    v_lshlrev_b32 v13, 4, v13
    v_bfe_u32 v14, v1, 4, 1
    v_lshl_add_u32 v13, v14, 3, v13
    v_lshl_add_u32 v13, v11, 8, v13
    v_add_u32 v{dst}, s36, v13
    """)

def q_addr4(a, dst, dst_t):
    a.I(f"""
    v_and_b32 v13, 15, v1
    v_lshlrev_b32 v13, 4, v13
    v_add_u32 v13, s36, v13
    v_bfe_u32 v14, v1, 4, 1
    v_lshl_add_u32 v{dst_t}, v14, 3, v13
    v_lshl_add_u32 v13, v14, 9, v13
    v_lshl_add_u32 v{dst}, v11, 8, v13
    """)
def q_swap(a, r):
    a.I(f"v_permlane16_swap_b32 v{r}, v{r+2}")
    a.I(f"v_permlane16_swap_b32 v{r+1}, v{r+3}")

def projection_setup(a):
    a.I(f"""
    s_lshl_b32 s31, s63, 2
    s_add_u32 s31, s31, s22
    s_mul_i32 s32, s31, 1280
    s_cmp_eq_u32 s62, 0
    s_mov_b32 s33, {WS_OA}
    s_mov_b32 s34, {WS_OB}
    s_cselect_b32 s33, s33, s34
    s_add_u32 s32, s32, s33
    v_lshrrev_b32 v18, 4, v1
    v_and_b32 v19, 15, v1
    v_lshrrev_b32 v16, 1, v18
    v_mul_u32_u24 v16, 81920, v16
    v_and_b32 v17, 1, v18
    v_lshl_add_u32 v16, v17, 9, v16
    v_lshl_add_u32 v16, v19, 4, v16
    v_add_u32 v{V_OM}, s32, v16
    v_mul_u32_u24 v16, {2*81920}, v18
    v_lshl_add_u32 v16, v19, 3, v16
    v_add_u32 v16, s32, v16
    v_add_u32 v{V_OT}, 1024, v16
    """)
    a.I(f"""
    v_lshrrev_b32 v18, 5, v1
    v_lshlrev_b32 v18, 4, v18
    v_bfe_u32 v19, v1, 4, 1
    v_lshl_add_u32 v18, v19, 2, v18
    v_bfe_u32 v19, v1, 2, 2
    v_add_u32 v18, v18, v19
    v_mul_u32_u24 v18, 160, v18
    v_and_b32 v19, 3, v1
    v_lshl_add_u32 v18, v19, 3, v18
    v_add_u32 v{V_T0}, {LW}, v18
    v_add_u32 v{V_T1}, {12*5120}, v{V_T0}
    v_lshrrev_b32 v18, 4, v1
    v_and_b32 v19, 15, v1
    s_lshl_b32 s41, s31, 5
    v_add_u32 v19, s41, v19
    v_mul_u32_u24 v19, 2560, v19
    s_mul_i32 s42, s62, 1280
    s_add_u32 s42, s42, s73
    v_add_u32 v19, s42, v19
    v_and_b32 v16, 1, v18
    v_lshlrev_b32 v16, 5, v16
    v_lshrrev_b32 v17, 1, v18
    v_lshl_add_u32 v16, v17, 4, v16
    v_add_u32 v{V_OUT}, v19, v16
    v_lshl_add_u32 v{V_OUT2}, v18, 3, v19
    s_mov_b32 s43, {16*2560}
    """)

def projection(a, pf):
    vm = VmTrack()
    def ops_o(s_):
        out = []
        if s_ < 16:
            for rt in range(2):
                t = [f"s_mov_b32 s40, {s_*163840}"] if rt == 0 else []
                t.append(f"buffer_load_dwordx4 {v(oreg(s_,rt),4)}, v{V_OM}, s[16:19], s40 offen offset:{rt*256} sc1")
                out.append((t, ("O", s_)))
        else:
            for u in range(2):
                for rt in range(2):
                    t = [f"s_mov_b32 s40, {(s_-16)*655360 + u*81920}"] if rt == 0 else []
                    t.append(f"buffer_load_dwordx2 {v(oreg(s_,rt)+2*u,2)}, v{V_OT}, s[16:19], s40 offen offset:{rt*128} sc1")
                    out.append((t, ("O", s_)))
        return out
    def emit_op(op):
        for t in op[0]: a.I(t)
        vm.add(op[1])
    NPRE = int(os.environ.get("K3_NPRE", "8"))
    for s_ in range(NPRE):
        for op in ops_o(s_): emit_op(op)
    pending = []
    for s_ in range(NPRE, 20): pending += ops_o(s_)
    pf.stamp("o_issued")
    def issue_tr(n):
        s_, t = divmod(n, 5)
        base = V_T0 if s_ < 12 else V_T1
        off = (s_ % 12) * 5120 + 32*t
        r = V_RING + (n % RING)*4
        a.I(f"ds_read_b64_tr_b16 {v(r,2)}, v{base} offset:{off}")
        a.I(f"ds_read_b64_tr_b16 {v(r+2,2)}, v{base} offset:{off+1280}")
    NT = 100
    for n in range(RING-1): issue_tr(n)
    for n in range(NT):
        s_, t = divmod(n, 5)
        if n in (0, 40): pf.stamp(f"p{n}")
        if t == 0:
            while pending and not any(x == ("O", s_) for x in vm.ops): emit_op(pending.pop(0))
            while pending and pending[0][1] == ("O", s_): emit_op(pending.pop(0))
            nw_, _ = vm.wait_n(lambda x: x == ("O", s_))
            a.I(f"s_waitcnt vmcnt({nw_})")
        m = n + RING - 1
        if m < NT:
            issue_tr(m)
            a.I(f"s_waitcnt lgkmcnt({2*(RING-1)})")
        else:
            a.I(f"s_waitcnt lgkmcnt({2*(NT-1-n)})")
        wf = v(V_RING + (n % RING)*4, 4)
        for rt in range(2):
            d = v(acc3(t, rt), 4)
            c = "0" if s_ == 0 else d
            a.I(f"v_mfma_f32_16x16x32_bf16 {d}, {wf}, {v(oreg(s_,rt),4)}, {c}")
        if pending: emit_op(pending.pop(0))
    pf.stamp("pend")
    P = V_O
    for rt in range(2):
        so = "s43" if rt else "0"
        for pr in range(2):
            p = P + rt*12 + pr*4
            for k, t in enumerate((2*pr, 2*pr+1)):
                r = acc3(t, rt)
                a.I(f"v_cvt_pk_bf16_f32 v{p+2*k}, v{r}, v{r+1}")
                a.I(f"v_cvt_pk_bf16_f32 v{p+2*k+1}, v{r+2}, v{r+3}")
            a.I(f"v_permlane16_swap_b32 v{p}, v{p+2}")
            a.I(f"v_permlane16_swap_b32 v{p+1}, v{p+3}")
            a.I(f"buffer_store_dwordx4 {v(p,4)}, v{V_OUT}, s[12:15], {so} offen offset:{pr*64}{sfx(ST_K3)}")
        p = P + rt*12 + 8
        r = acc3(4, rt)
        a.I(f"v_cvt_pk_bf16_f32 v{p}, v{r}, v{r+1}")
        a.I(f"v_cvt_pk_bf16_f32 v{p+1}, v{r+2}, v{r+3}")
        a.I(f"buffer_store_dwordx2 {v(p,2)}, v{V_OUT2}, s[12:15], {so} offen offset:128{sfx(ST_K3)}")

def gen_k2(a, name):
    a.raw(f".globl {name}\n.p2align 8\n.type {name},@function")
    a.L(name)
    le = a.newlabel("k2_end")
    a.I("s_cmp_ge_u32 s2, 256")
    a.I(f"s_cbranch_scc1 {le}")
    pf = Prof(a, 1); pf.start()
    a.I("s_load_dwordx2 s[28:29], s[0:1], 64")
    a.I("s_load_dwordx4 s[4:7], s[0:1], 40")
    a.I("s_load_dwordx2 s[12:13], s[0:1], 16")
    a.I("""
    s_and_b32 s3, s2, 7
    s_lshr_b32 s30, s2, 3
    s_lshr_b32 s62, s3, 2
    s_and_b32 s63, s3, 3
    s_lshl_b32 s63, s63, 2
    s_and_b32 s23, s30, 3
    s_add_u32 s63, s63, s23
    s_lshr_b32 s72, s30, 2
    """)
    a.I("""
    s_mov_b32 s3, s2
    s_and_b32 s20, s3, 7
    s_lshr_b32 s23, s3, 6
    s_lshl_b32 s23, s23, 3
    s_add_u32 s20, s20, s23
    s_lshr_b32 s21, s3, 3
    s_and_b32 s21, s21, 7
    v_lshrrev_b32 v12, 6, v0
    v_and_b32 v1, 63, v0
    """)
    a.I("v_readfirstlane_b32 s22, v12")
    a.I("""
    s_lshl_b32 s24, s20, 6
    s_lshl_b32 s23, s21, 3
    s_add_u32 s24, s24, s23
    s_cmp_eq_u32 s21, 0
    s_cselect_b32 s23, 0, 8
    s_sub_u32 s25, s24, s23
    s_add_u32 s26, s24, s22
    v_lshlrev_b32 v8, 4, v1
    v_lshrrev_b32 v11, 5, v1
    v_and_b32 v12, 31, v1
    s_mul_i32 s36, s26, 1280
    """)
    q_addr4(a, 10, 9)
    a.I("s_waitcnt lgkmcnt(0)")
    pf.stamp('kernarg')
    srd(a, 16, 28, 29, WS_REC, WS0)
    a.I("s_cmp_eq_u32 s62, 0")
    a.I("s_cselect_b32 s4, s12, s4")
    a.I("s_cselect_b32 s5, s13, s5")
    srd(a, 8, 4, 5, 819200)
    srd(a, 12, 6, 7, 5242880)
    a.I(f"v_mov_b32 v{VQT}, 0")
    a.I(f"v_mov_b32 v{VQT+1}, 0")
    a.I(f"buffer_load_dwordx4 {v(VQM,4)}, v10, s[16:19], 0 offen")
    a.I("s_mov_b32 exec_hi, 0")
    a.I(f"buffer_load_dwordx2 {v(VQT,2)}, v9, s[16:19], 0 offen offset:1024")
    a.I("s_mov_b32 exec_hi, -1")
    a.I(f"""
    s_mul_i32 s30, s25, 1280
    s_mul_i32 s31, s24, 1280
    """)
    for j in range(5):
        a.I(f"""
        s_add_u32 s32, s22, {8*j}
        s_mul_i32 s33, s32, 52
        s_lshr_b32 s33, s33, 9
        s_mul_i32 s34, s33, 10
        s_sub_u32 s34, s32, s34
        s_lshl_b32 s34, s34, 10
        s_bitcmp1_b32 s33, 0
        s_cselect_b32 s35, s31, s30
        s_add_u32 s34, s34, s35
        s_cmp_ge_u32 s33, 2
        s_mov_b32 s35, {WS_KB}
        s_mov_b32 s37, {WS_VB}
        s_cselect_b32 s35, s37, s35
        s_add_u32 s34, s34, s35
        s_lshl_b32 m0, s32, 10
        """)
        a.I("buffer_load_dwordx4 v8, s[16:19], s34 offen lds")
    if WO_TOUCH:
        lt = a.newlabel("k23_nt")
        a.I("s_cmp_lt_u32 s22, 4")
        a.I(f"s_cbranch_scc1 {lt}")
        a.I(f"""
        s_sub_u32 s32, s22, 4
        s_lshl_b32 s32, s32, 6
        v_add_u32 v13, s32, v1
        s_lshr_b32 s33, s2, 3
        s_mul_i32 s33, s33, 25600
        v_lshlrev_b32 v14, 7, v13
        v_mov_b32 v15, {OOB:#x}
        s_movk_i32 s34, 200
        v_cmp_gt_u32 s[44:45], s34, v13
        v_cndmask_b32 v14, v15, v14, s[44:45]
        """)
        a.I("buffer_load_dword v239, v14, s[8:11], s33 offen")
        a.L(lt)
    pf.stamp("issued")
    a.I("v_cmp_gt_u32 s[38:39], 32, v1")
    kappa_code(a, 12, 13, 14)
    a.I(f"""
    s_mul_i32 s41, s22, 1280
    v_and_b32 v14, 15, v13
    v_lshlrev_b32 v14, 4, v14
    v_lshrrev_b32 v15, 4, v13
    v_lshl_add_u32 v14, v15, 3, v14
    v_add_u32 v{VAKT}, s41, v14
    v_lshl_add_u32 v{VAKM}, v11, 8, v{VAKT}
    """)
    a.I(f"""
    v_mul_u32_u24 v15, 320, v11
    v_lshl_add_u32 v14, v12, 4, v15
    s_add_u32 s41, s41, {LV}
    v_add_u32 v{VAV}, s41, v14
    """)
    out_addr(a, "s26")
    for k in range(8): a.I(f"v_mov_b32 v{VV[0]+k}, 0x3f803f80")
    a.I("""
    s_mul_i32 s73, s72, 160
    s_cmp_eq_u32 s62, 0
    s_cselect_b32 s74, 8, 4
    s_cselect_b32 s75, 4, 20
    """)
    for q in range(5):
        a.I(f"""
        v_add_u32 v16, {64*q}, v1
        v_mul_u32_u24 v17, 6554, v16
        v_lshrrev_b32 v17, 16, v17
        v_mul_u32_u24 v18, 10, v17
        v_sub_u32 v18, v16, v18
        v_lshlrev_b32 v18, 4, v18
        v_add_u32 v18, s73, v18
        v_lshrrev_b32 v19, 4, v17
        v_mul_u32_u24 v20, s74, v19
        v_add_u32 v20, v20, v17
        v_mul_u32_u24 v20, 1280, v20
        v_add_u32 v{V_WM+q}, v20, v18
        v_lshlrev_b32 v19, 1, v19
        v_bfe_u32 v20, v17, 2, 1
        v_add_u32 v19, v19, v20
        v_mul_u32_u24 v19, 40, v19
        v_bfe_u32 v20, v17, 3, 1
        v_mul_u32_u24 v20, s75, v20
        v_add_u32 v19, v19, v20
        v_and_b32 v20, 3, v17
        v_add3_u32 v19, v19, v20, 16
        v_mul_u32_u24 v19, 1280, v19
        v_add_u32 v{V_WM+5+q}, v19, v18
        """)
    a.I(f"""
    s_mul_i32 s76, s22, 51200
    s_add_u32 s77, s76, {8*51200}
    s_mul_i32 s78, s22, 204800
    s_mul_i32 s79, s22, 5120
    s_add_u32 s79, s79, {LW}
    s_add_u32 s80, s79, {8*5120}
    s_add_u32 s81, s79, {16*5120}
    """)
    def wdma(n):
        g, q = divmod(n, 5)
        skip = None
        if g == 2:
            skip = a.newlabel("k23_nw")
            a.I("s_cmp_ge_u32 s22, 4")
            a.I(f"s_cbranch_scc1 {skip}")
        a.I(f"s_add_u32 m0, s{79+g}, {q*1024}")
        a.I(f"buffer_load_dwordx4 v{V_WM + q + (5 if g == 2 else 0)}, s[8:11], s{76+g} offen lds")
        if skip: a.L(skip)
    def make_mask(first):
        a.I(f"""
        v_lshlrev_b32 v14, 2, v11
        v_sub_u32 v14, v12, v14
        v_mov_b32 v15, {NEG_INF:#x}
        """)
        for r in range(16):
            pr = 46 + 2*(r & 1)
            a.I(f"v_cmp_gt_i32 s[{pr}:{pr+1}], {key_of_reg(r)}, v14")
            if first: a.I(f"v_cndmask_b32 v{VC+r}, v15, 0, s[{pr}:{pr+1}]")
            else:     a.I(f"v_cndmask_b32 v{VC+r}, 0, v15, s[{pr}:{pr+1}]")
    l0 = a.newlabel("k2_r0"); l1 = a.newlabel("k2_r1")
    a.I("s_mov_b32 s27, 0")
    a.I("s_cmp_lg_u32 s21, 0")
    a.I(f"s_cbranch_scc1 {l0}")
    a.I("s_sub_u32 s27, 8, s22")
    for r in range(16): a.I(f"v_mov_b32 v{VC+r}, {NEG_INF:#x}")
    a.I(f"s_branch {l1}")
    a.L(l0)
    make_mask(True)
    a.L(l1)
    pf.stamp("masks")
    if WO_TOUCH:
        lw0 = a.newlabel("k2_w0"); lw1 = a.newlabel("k2_w1")
        a.I("s_cmp_lt_u32 s22, 4")
        a.I(f"s_cbranch_scc1 {lw0}")
        a.I("s_waitcnt vmcnt(1)")
        a.I(f"s_branch {lw1}")
        a.L(lw0)
        a.I("s_waitcnt vmcnt(0)")
        a.L(lw1)
    else:
        a.I("s_waitcnt vmcnt(0)")
    a.I("s_barrier")
    q_swap(a, VQM)
    a.I(f"""
    s_and_b32 s44, s20, 1
    s_lshl_b32 s45, s44, 8
    s_add_u32 s45, s45, {WS_PQ}
    s_xor_b32 s46, s44, 1
    s_lshl_b32 s46, s46, 10
    s_add_u32 s46, s46, {WS_PQ}
    v_mov_b32 v{VPQT}, 0
    v_mov_b32 v{VPQT+1}, 0
    """)
    a.I(f"buffer_load_dwordx4 {v(VPQM,4)}, v10, s[16:19], s45 offen")
    a.I("s_mov_b32 exec_hi, 0")
    a.I(f"buffer_load_dwordx2 {v(VPQT,2)}, v9, s[16:19], s46 offen")
    a.I("s_mov_b32 exec_hi, -1")
    nokv = a.newlabel("k2_nokv")
    a.I("s_cmp_ge_u32 s22, 3")
    a.I(f"s_cbranch_scc1 {nokv}")
    a.I(f"""
    s_mul_i32 s40, s20, 24
    s_add_u32 s40, s40, s22
    s_lshl_b32 s40, s40, 10
    s_add_u32 s40, s40, {WS_KVP}
    """)
    for i in range(8):
        a.I(f"buffer_load_dwordx4 {v(VR+4*i,4)}, v8, s[16:19], s40 offen")
        if i < 7: a.I("s_add_u32 s40, s40, 3072")
    a.L(nokv)
    pf.stamp("first")
    def rdK(i):
        a.I(f"ds_read_b64 {v(VKM[i&1],2)}, v{VAKM} offset:{LK + i*1280}")
        a.I(f"ds_read_b64 {v(VKM[i&1]+2,2)}, v{VAKM} offset:{LK + i*1280 + 512}")
        a.I(f"ds_read_b64 {v(VKT[i&1],2)}, v{VAKT} offset:{LK + i*1280 + 1024}")
    def rdV(i):
        a.I(f"s_mov_b32 exec_lo, {MASK20[0]:#x}")
        a.I(f"s_mov_b32 exec_hi, {MASK20[1]:#x}")
        a.I(f"ds_read_b128 {v(VV[0],4)}, v{VAV} offset:{i*1280}")
        a.I(f"ds_read_b128 {v(VV[1],4)}, v{VAV} offset:{i*1280 + 640}")
        a.I("s_mov_b64 exec, -1")
    def qk(i, wn=0):
        S = VS[i & 1]
        a.I(f"s_waitcnt lgkmcnt({wn})")
        if i == 0 or i == 8:
            a.I(f"v_mfma_f32_32x32x16_bf16 {v(S,16)}, {v(VKM[i&1],4)}, {v(VQM,4)}, {v(VC,16)}")
        else:
            ln = a.newlabel("k2_neg"); lj = a.newlabel("k2_join")
            a.I(f"s_cmp_gt_u32 s27, {i}")
            a.I(f"s_cbranch_scc1 {ln}")
            a.I(f"v_mfma_f32_32x32x16_bf16 {v(S,16)}, {v(VKM[i&1],4)}, {v(VQM,4)}, 0")
            a.I(f"s_branch {lj}")
            a.L(ln)
            a.I(f"v_mfma_f32_32x32x16_bf16 {v(S,16)}, {v(VKM[i&1],4)}, {v(VQM,4)}, {v(VC,16)}")
            a.L(lj)
        a.I(f"v_mfma_f32_32x32x8bf16_1k {v(S,16)}, {v(VKT[i&1],2)}, {v(VQT,2)}, {v(S,16)}")
    rdK(0); rdK(1); rdV(0)
    qk(0, 5)
    def a_reduce():
        a.I(f"s_waitcnt vmcnt({2*AI})")
        nokv2 = a.newlabel("k2_nokv2")
        a.I("s_cmp_ge_u32 s22, 3")
        a.I(f"s_cbranch_scc1 {nokv2}")
        for i in range(1, 8):
            for k in range(4): a.I(f"v_add_f32 v{VR+k}, v{VR+k}, v{VR+4*i+k}")
        a.I(f"v_cvt_pk_bf16_f32 v{VR}, v{VR}, v{VR+1}")
        a.I(f"v_cvt_pk_bf16_f32 v{VR+1}, v{VR+2}, v{VR+3}")
        a.I(f"""
        s_lshl_b32 s41, s22, 3
        s_add_u32 s41, s41, {LKV}
        v_lshlrev_b32 v14, 4, v1
        v_add_u32 v14, s41, v14
        v_lshlrev_b32 v15, 3, v1
        v_add_u32 v15, {LKV + 1024}, v15
        s_cmp_eq_u32 s22, 2
        s_cselect_b64 s[46:47], -1, 0
        v_cndmask_b32 v14, v14, v15, s[46:47]
    """)
        a.I(f"ds_write_b64 v14, {v(VR,2)}")
        a.L(nokv2)
        q_swap(a, VPQM)

        a.I("s_waitcnt lgkmcnt(0)")
        a.I("s_barrier")
    def a_apply():
        AO = VR; AP = VR + 16
        a.I(f"v_lshlrev_b32 v14, 4, v1")
        a.I(f"v_lshlrev_b32 v15, 3, v1")
        a.I(f"ds_read_b128 {v(VKVM,4)}, v14 offset:{LKV}")
        a.I(f"ds_read_b64 {v(VKVT,2)}, v15 offset:{LKV+1024}")
        a.I(f"s_mov_b32 s43, {f2u(1e-6):#x}")
        a.I(f"s_mov_b32 s61, {WS_OA}")
        a.I("s_waitcnt lgkmcnt(0)")
        a.I(f"v_mfma_f32_32x32x16_bf16 {v(AO,16)}, {v(VKVM,4)}, {v(VPQM,4)}, 0")
        a.I(f"v_mfma_f32_32x32x8bf16_1k {v(AO,16)}, {v(VKVT,2)}, {v(VPQT,2)}, {v(AO,16)}")
    def a_store():
        normalize_store(a, VR, VR + 16, True, "s61")
    for i in range(9):
        S = VS[i & 1]
        if i == 7:
            make_mask(False)
        if i == AI: a_apply()
        if i < 8:
            qk(i+1, 2)
            if i + 2 <= 8: rdK(i+2)
        if i == AI: a_store()
        for hfs in range(2):
            for k in range(8): a.I(f"v_exp_f32 v{S+8*hfs+k}, v{S+8*hfs+k}")
            for k in range(4): a.I(f"v_cvt_pk_bf16_f32 v{VP+4*hfs+k}, v{S+8*hfs+2*k}, v{S+8*hfs+2*k+1}")
            if hfs == 0: a.I(f"s_waitcnt lgkmcnt({3 if i + 2 <= 8 else 0})")
            c = "0" if (i == 0 and hfs == 0) else v(VO,16)
            a.I(f"v_mfma_f32_32x32x16_bf16 {v(VO,16)}, {v(VV[hfs],4)}, {v(VP+4*hfs,4)}, {c}")
            if i < 8 and 2*i + hfs < 15: wdma(2*i + hfs)
        if i < 8: rdV(i+1)
        if i == AI - 1: a_reduce()
    pf.stamp("mainend")
    slow = a.newlabel("k2_slow"); fin = a.newlabel("k2_fin")
    def check():
        a.I(f"v_mov_b32 v9, 0")
        for i in range(12): a.I(f"v_fma_f32 v9, v{VO+i}, 0, v9")
        a.I(f"s_mov_b32 s50, {f2u(2.0**-64):#x}")
        a.I(f"s_mov_b32 s51, {f2u(2.0**64):#x}")
        a.I(f"v_cmp_nge_f32 s[52:53], v{VL}, s50")
        a.I(f"v_cmp_nle_f32 s[54:55], v{VL}, s51")
        a.I(f"v_cmp_u_f32 s[56:57], v9, v9")
        a.I("s_or_b64 s[52:53], s[52:53], s[54:55]")
        a.I("s_or_b64 s[52:53], s[52:53], s[56:57]")
        a.I("s_cmp_lg_u64 s[52:53], 0")
        if os.environ.get("FORCE_SLOW") == "1": a.I("s_cmp_eq_u32 s22, s22")
        a.I(f"s_cbranch_scc1 {slow}")
        a.L(fin)
    a.I(f"s_mov_b32 s60, {WS_OB}")
    normalize_store(a, VO, VP, False, "s60", 0, check)
    pf.stamp("bstore")
    projection_setup(a)
    a.I("s_waitcnt vmcnt(0)")
    a.I("s_barrier")
    lrest = a.newlabel("k23_rest"); lgo = a.newlabel("k23_go"); lto = a.newlabel("k23_touch")
    a.I("s_cmp_ge_u32 s22, 4")
    a.I(f"s_cbranch_scc1 {lto if O_TOUCH else lrest}")
    lnp = a.newlabel("k23_nopoll")
    a.I("s_cmp_lg_u32 s22, 0")
    a.I(f"s_cbranch_scc1 {lnp}")
    a.I(f"""
    s_lshl_b32 s23, s21, 5
    s_add_u32 s23, s23, s20
    s_lshl_b32 s23, s23, {FLAG_SH}
    s_add_u32 s23, s23, {WS_FLAG}
    v_mov_b32 v8, s23
    v_mov_b32 v9, 1
    s_mov_b64 exec, 1
    """)
    a.I("buffer_store_dword v9, v8, s[16:19], 0 offen sc1")
    a.I(f"""
    s_mov_b64 exec, -1
    s_lshr_b32 s23, s63, 1
    s_lshl_b32 s23, s23, {5 + FLAG_SH}
    s_add_u32 s23, s23, {WS_FLAG}
    v_and_b32 v8, 31, v1
    v_lshlrev_b32 v8, {FLAG_SH}, v8
    v_add_u32 v8, s23, v8
    s_mov_b32 s24, 0
    """)
    lp = a.newlabel("k23_poll"); lok = a.newlabel("k23_ok")
    a.L(lp)
    a.I("buffer_load_dword v9, v8, s[16:19], 0 offen sc1")
    a.I("s_add_u32 s24, s24, 1")
    a.I("s_waitcnt vmcnt(0)")
    a.I("v_cmp_ne_u32 s[46:47], 1, v9")
    a.I("s_cmp_eq_u64 s[46:47], 0")
    a.I(f"s_cbranch_scc1 {lok}")
    a.I(f"s_sleep {POLL_SLEEP}")
    a.I("s_cmp_lt_u32 s24, 0x8000")
    a.I(f"s_cbranch_scc1 {lp}")
    a.L(lok)
    a.L(lnp)
    a.I("s_barrier")
    pf.stamp("synced")
    projection(a, pf)
    if O_TOUCH:
        a.I(f"s_branch {lrest}")
        a.L(lto)
        a.I("s_barrier")
        a.I("s_cmp_eq_u32 s22, 7")
        a.I(f"s_cbranch_scc1 {lrest}")
        a.I(f"""
        s_lshr_b32 s23, s2, 3
        s_and_b32 s24, s23, 1
        s_lshr_b32 s23, s23, 2
        s_lshl_b32 s23, s23, 1
        s_add_u32 s23, s23, s24
        s_lshl_b32 s23, s23, 7
        s_lshr_b32 s24, s63, 1
        s_lshl_b32 s24, s24, 3
        s_add_u32 s23, s23, s24
        s_mul_i32 s23, s23, 1280
        s_add_u32 s23, s23, s33
        s_sub_u32 s32, s22, 4
        s_lshl_b32 s32, s32, 6
        v_add_u32 v13, s32, v1
        s_movk_i32 s34, 80
        v_cmp_le_u32 s[44:45], s34, v13
        v_mov_b32 v14, {81920 - 10240}
        v_cndmask_b32 v14, 0, v14, s[44:45]
        v_lshl_add_u32 v14, v13, 7, v14
        v_mov_b32 v15, {OOB:#x}
        s_movk_i32 s34, 160
        v_cmp_gt_u32 s[44:45], s34, v13
        v_cndmask_b32 v14, v15, v14, s[44:45]
        """)
        a.I("buffer_load_dword v16, v14, s[16:19], s23 offen sc1")
        a.I("s_waitcnt vmcnt(0)")
    a.L(lrest)
    if PROFILE: a.I("s_waitcnt vmcnt(0)")
    pf.finish(16, 22)
    a.I("s_endpgm")
    a.L(slow)
    a.I("s_waitcnt vmcnt(0)")
    S = VS[0]
    def slow_scores():
        lm = a.newlabel("k2s_m"); lf = a.newlabel("k2s_f"); ll = a.newlabel("k2s_l"); ln = a.newlabel("k2s_n"); lj = a.newlabel("k2s_j")
        a.I(f"s_mul_i32 s59, s58, 1280")
        a.I(f"v_add_u32 v9, s59, v{VAKM}")
        a.I(f"v_add_u32 v10, s59, v{VAKT}")
        a.I(f"ds_read_b64 {v(VKM[0],2)}, v9 offset:{LK}")
        a.I(f"ds_read_b64 {v(VKM[0]+2,2)}, v9 offset:{LK+512}")
        a.I(f"ds_read_b64 {v(VKT[0],2)}, v10 offset:{LK+1024}")
        a.I("s_cmp_eq_u32 s58, 8")
        a.I(f"s_cbranch_scc1 {ll}")
        a.I("s_cmp_gt_u32 s27, s58")
        a.I(f"s_cbranch_scc1 {ln}")
        a.I("s_cmp_eq_u32 s58, 0")
        a.I(f"s_cbranch_scc1 {lf}")
        for r in range(16): a.I(f"v_mov_b32 v{VC+r}, 0")
        a.I(f"s_branch {lj}")
        a.L(ln)
        for r in range(16): a.I(f"v_mov_b32 v{VC+r}, {NEG_INF:#x}")
        a.I(f"s_branch {lj}")
        a.L(lf)
        make_mask(True)
        a.I(f"s_branch {lj}")
        a.L(ll)
        make_mask(False)
        a.L(lj)
        a.I("s_waitcnt lgkmcnt(0)")
        a.I("s_nop 1")
        a.I(f"v_mfma_f32_32x32x16_bf16 {v(S,16)}, {v(VKM[0],4)}, {v(VQM,4)}, {v(VC,16)}")
        a.I(f"v_mfma_f32_32x32x8bf16_1k {v(S,16)}, {v(VKT[0],2)}, {v(VQT,2)}, {v(S,16)}")
        a.I("s_nop 15")
    VM = 13
    a.I(f"v_mov_b32 v{VM}, {NEG_INF:#x}")
    a.I("s_mov_b32 s58, 0")
    lp1 = a.newlabel("k2s_p1")
    a.L(lp1)
    slow_scores()
    for r in range(16): a.I(f"v_max_f32 v{VM}, v{VM}, v{S+r}")
    a.I("s_add_u32 s58, s58, 1")
    a.I("s_cmp_le_u32 s58, 8")
    a.I(f"s_cbranch_scc1 {lp1}")
    a.I(f"v_mov_b32 v9, v{VM}")
    a.I("s_nop 1")
    a.I(f"v_permlane32_swap_b32 v9, v{VM}")
    a.I("s_nop 1")
    a.I(f"v_max_f32 v{VM}, v{VM}, v9")
    for r in range(16): a.I(f"v_mov_b32 v{VO+r}, 0")
    a.I("s_mov_b32 s58, 0")
    lp2 = a.newlabel("k2s_p2")
    a.L(lp2)
    slow_scores()
    a.I(f"s_mul_i32 s59, s58, 1280")
    a.I(f"v_add_u32 v9, s59, v{VAV}")
    a.I(f"s_mov_b32 exec_lo, {MASK20[0]:#x}")
    a.I(f"s_mov_b32 exec_hi, {MASK20[1]:#x}")
    a.I(f"ds_read_b128 {v(VV[0],4)}, v9")
    a.I(f"ds_read_b128 {v(VV[1],4)}, v9 offset:640")
    a.I("s_mov_b64 exec, -1")
    for r in range(16): a.I(f"v_sub_f32 v{S+r}, v{S+r}, v{VM}")
    for r in range(16): a.I(f"v_exp_f32 v{S+r}, v{S+r}")
    a.I("s_nop 0")
    for k in range(8): a.I(f"v_cvt_pk_bf16_f32 v{VP+k}, v{S+2*k}, v{S+2*k+1}")
    a.I("s_waitcnt lgkmcnt(0)")
    a.I("s_nop 1")
    for hfs in range(2):
        a.I(f"v_mfma_f32_32x32x16_bf16 {v(VO,16)}, {v(VV[hfs],4)}, {v(VP+4*hfs,4)}, {v(VO,16)}")
    a.I("s_nop 15")
    a.I("s_add_u32 s58, s58, 1")
    a.I("s_cmp_le_u32 s58, 8")
    a.I(f"s_cbranch_scc1 {lp2}")
    a.I(f"v_cndmask_b32 v{VL}, v{VO+8}, v{VO+12}, s[38:39]")
    a.I("s_nop 1")
    a.I(f"s_branch {fin}")
    a.L(le)
    a.I("s_endpgm")
    a.raw(kd(name, K2_VGPRS))
```

```python
from asmlib import *
S_LEN=2048; D=640; H=32
BUF = 2621440
import os
WS0 = int(os.environ.get('WS0', '0'))
WS_QB = 0
WS_KB = BUF
WS_VB = 2*BUF
WS_PQ = 3*BUF
WS_OA = 4*BUF
WS_OB = 5*BUF
WS_KVP = 6*BUF
NKB = 10
WS_FLAG = 6*BUF + 32*NKB*3072
FLAG_SH = int(os.environ.get('FLAG_SH', '7'))
FUSED = os.environ.get('FUSED', '1') == '1'
WS_FLAG1 = WS_FLAG + (512 << FLAG_SH)
WS_END = WS_FLAG + (768 << FLAG_SH)
OOB = 0x7F000000
import struct, math
def f2u(x): return struct.unpack("<I", struct.pack("<f", x))[0]
LOG2E = 1.4426950408889634
QSCALE = (20 ** -0.5) * LOG2E
NEG_INF = 0xFF800000
SRD3 = 0x00020000

def srd(a, dst, lo, hi, nbytes, add=0):
    if add:
        a.I(f"s_add_u32 s{dst}, s{lo}, {add}")
        a.I(f"s_addc_u32 s{dst+1}, s{hi}, 0")
    else:
        a.I(f"s_mov_b32 s{dst}, s{lo}")
        a.I(f"s_mov_b32 s{dst+1}, s{hi}")
    a.I(f"s_mov_b32 s{dst+2}, {nbytes}")
    a.I(f"s_mov_b32 s{dst+3}, {SRD3:#x}")

def kd(name, vgpr, sgpr=102):
    acc = (vgpr + 3) // 4 * 4
    return f""".section .rodata,"a"
.p2align 6
.amdhsa_kernel {name}
  .amdhsa_next_free_vgpr {vgpr}
  .amdhsa_next_free_sgpr {sgpr}
  .amdhsa_accum_offset {acc}
  .amdhsa_group_segment_fixed_size 0
  .amdhsa_kernarg_size 72
  .amdhsa_user_sgpr_count 2
  .amdhsa_user_sgpr_kernarg_segment_ptr 1
  .amdhsa_system_sgpr_workgroup_id_x 1
  .amdhsa_float_denorm_mode_32 3
.end_amdhsa_kernel
.text
"""

class VmTrack:
    def __init__(self): self.ops = []
    def add(self, tag): self.ops.append(tag)
    def wait_n(self, pred):
        last = max((i for i, t in enumerate(self.ops) if pred(t)), default=-1)
        return len(self.ops) - 1 - last, last

import os
PROFILE = os.environ.get("PROFILE", "0") in ("1", "2")
PROF_LIGHT = os.environ.get("PROFILE", "0") == "2"
PROF_BASE = 32 << 20
WS_REC = (64 << 20) if PROFILE else WS_END
class Prof:
    def __init__(self, a, kidx): self.a = a; self.k = kidx; self.n = 0; self.names = []
    def start(self):
        if not PROFILE: return
        self.a.I("s_memrealtime s[66:67]")
        self.a.I("s_memtime s[64:65]")
        self.n = 1; self.names = ["entry"]
    def stamp(self, name):
        if not PROFILE or PROF_LIGHT: return
        only = os.environ.get("PROF_ONLY")
        if only and name not in only.split(","): return
        assert self.n < 15
        self.a.I("s_memtime s[68:69]")
        self.a.I("s_waitcnt lgkmcnt(0)")
        self.a.I(f"v_writelane_b32 v0, s68, {self.n}")
        self.n += 1; self.names.append(name)
    def finish(self, srd0, swave, n_fixed=None):
        if not PROFILE: return
        a = self.a
        a.I("s_memtime s[68:69]")
        a.I("s_memrealtime s[70:71]")
        a.I("s_waitcnt lgkmcnt(0)")
        a.I("v_writelane_b32 v0, s64, 0")
        for l in range(self.n, 16): a.I(f"v_writelane_b32 v0, 0xabababab, {l}") if False else None
        a.I("v_writelane_b32 v0, s68, 16")
        a.I("v_writelane_b32 v0, s66, 17")
        a.I("v_writelane_b32 v0, s70, 18")
        a.I(f"s_mov_b32 s68, {self.n}")
        a.I("v_writelane_b32 v0, s68, 19")
        a.I("s_lshl_b32 s3, s2, 4")
        a.I(f"s_add_u32 s3, s3, s{swave}")
        a.I("s_lshl_b32 s3, s3, 7")
        a.I(f"s_add_u32 s3, s3, {PROF_BASE + self.k*(1<<20)}")
        a.I("s_mov_b32 exec_lo, 0xfffff")
        a.I("s_mov_b32 exec_hi, 0")
        a.I("v_lshlrev_b32 v2, 2, v1")
        a.I("v_add_u32 v2, s3, v2")
        a.I(f"buffer_store_dword v0, v2, s[{srd0}:{srd0+3}], 0 offen")

ST_K1 = os.environ.get("ST_K1", "sc1")
ST_K2 = os.environ.get("ST_K2", "sc1")
ST_K3 = os.environ.get("ST_K3", "")
def sfx(x): return (" " + x) if x else ""
```

```python
from common import *

WB = 0; XB = 61440
K1_LDS = XB + 3*32768
KVD = XB + 32768
STAMPS = eval(os.environ.get('K1_STAMPS', '(4, 10, 16)'))
V_TX=2; V_TW=3; V_TD=4
V_T=5
V_XR=10; V_XR2=12
V_F=16
V_ACC=88
V_A=152
K1_VGPRS=168
NCOL = {"row": 4, "col": 4, "kv": 5}
def acc(kind, i, j): return V_ACC + (i*NCOL[kind] + j)*4
def fx(n, i): return V_F + (n & 1)*36 + i*4
def fw(n, j): return V_F + (n & 1)*36 + 16 + j*4
WST = {"row": 16384, "col": 16384, "kv": 20480}
WROW = {"row": 256, "col": 256, "kv": 320}

def main_loop(a, kind, pf):
    nc = NCOL[kind]; wst = WST[kind]; wr_ = WROW[kind]
    def reads(n):
        b, sp = n >> 1, n & 1
        st = b % 3
        xb = (V_XR2 if st == 2 else V_XR) + sp
        xo = 0 if st == 2 else st*32768
        def rw(j):
            off = WB + st*wst + sp*32*wr_
            return [f"ds_read_b64_tr_b16 {v(fw(n,j),2)}, v{V_T+j} offset:{off}",
                    f"ds_read_b64_tr_b16 {v(fw(n,j)+2,2)}, v{V_T+j} offset:{off+4*wr_}"]
        def rx(i): return [f"ds_read_b128 {v(fx(n,i),4)}, v{xb} offset:{xo + i*2048}"]
        out = []
        for k in range(4): out += rw(k) + rx(k)
        if nc == 5: out += rw(4)
        return out
    sched = eval(os.environ.get("K1_TOUCH", "{-1:[0,1,2,3]}"))
    tw = [0]
    seen = {}
    def do_touch(k):
        for b in sched.get(k, []):
            if isinstance(b, tuple):
                touch(a, b[0], seen[b[1]], True); seen[b[0]] = seen[b[1]]
            else:
                touch(a, b, tw[0] % 8); seen[b] = tw[0] % 8; tw[0] += 1
    touch_setup(a)
    do_touch(-1)
    yield "prologue"
    do_touch(-0.5)
    a.I("s_barrier")
    do_touch(0)
    pf.stamp("first")
    for t in reads(0): a.I(t)
    for n in range(20):
        b, sp = n >> 1, n & 1
        if n in STAMPS: pf.stamp(f"n{n}")
        a.I("s_waitcnt lgkmcnt(0)")
        if sp == 1 and b + 1 <= 9:
            a.I("s_barrier")
            do_touch(b + 1)
        rd = reads(n+1) if n < 19 else []
        for k in range(4*nc):
            i, j = divmod(k, nc)
            d = v(acc(kind, i, j), 4); c = "0" if n == 0 else d
            if kind == "kv" and k == 15:
                lskip = a.newlabel("k1_kv3")
                a.I("s_cmp_ge_u32 s36, 2")
                a.I(f"s_cbranch_scc1 {lskip}")
            if kind == "row": a.I(f"v_mfma_f32_16x16x32_bf16 {d}, {v(fw(n,j),4)}, {v(fx(n,i),4)}, {c}")
            else:             a.I(f"v_mfma_f32_16x16x32_bf16 {d}, {v(fx(n,i),4)}, {v(fw(n,j),4)}, {c}")
            if k < len(rd): a.I(rd[k])
        if kind == "kv": a.L(lskip)

def loader_wave(a, kv, pf):
    nx = 7 if kv else 8
    a.I(f"""
    s_sub_u32 s24, s22, 8
    s_mov_b32 s63, s24
    v_lshrrev_b32 v13, 3, v1
    v_and_b32 v14, 7, v1
    v_lshrrev_b32 v15, 1, v13
    v_xor_b32 v14, v14, v15
    s_mul_i32 s23, s20, {32*nx}
    s_mul_i32 s25, s24, {8*nx}
    s_add_u32 s23, s23, s25
    v_add_u32 v13, s23, v13
    v_mul_u32_u24 v13, 1280, v13
    v_lshl_add_u32 v2, v14, 4, v13
    s_mul_i32 s26, s24, {1024*nx}
    s_add_u32 s26, s26, {XB}
    """)
    if kv:
        a.I("s_and_b32 s25, s24, 1")
        a.I("s_lshl_b32 s25, s25, 6")
        a.I("v_xor_b32 v2, s25, v2")
    a.I("v_xor_b32 v3, 64, v2")
    ROT = os.environ.get("K1_ROT", "0") == "1"
    a.I("s_and_b32 s42, s20, 3")
    a.I("s_mul_i32 s42, s42, 3")
    a.I("s_add_u32 s42, s42, s34b".replace("s34b", "s62"))
    a.I("s_cmp_ge_u32 s42, 10")
    a.I("s_cselect_b32 s43, 10, 0")
    a.I("s_sub_u32 s42, s42, s43")
    if not ROT: a.I("s_mov_b32 s42, 0")
    def kregs():
        a.I("s_lshl_b32 s44, s42, 7")
        a.I("s_mul_i32 s45, s42, 245760")
        a.I("s_add_u32 s42, s42, 1")
        a.I("s_cmp_eq_u32 s42, 10")
        a.I("s_cselect_b32 s42, 0, s42")
    def dx(st, qq):
        a.I(f"s_add_u32 m0, s26, {st*32768 + qq*1024}")
        a.I(f"s_add_u32 s35, s44, {qq*10240}")
        a.I(f"buffer_load_dwordx4 v{3 if qq & 1 else 2}, s[8:11], s35 offen lds")
    if os.environ.get("LD_PRIO"): a.I(f"s_setprio {os.environ['LD_PRIO']}")
    kregs()
    for qq in range(nx): dx(0, qq)
    if not kv:
        a.I(f"""
        v_lshrrev_b32 v13, 4, v1
        v_lshlrev_b32 v14, 1, v13
        v_and_b32 v15, 15, v1
        v_xor_b32 v14, v14, v15
        s_lshl_b32 s25, s24, 4
        v_add_u32 v13, s25, v13
        v_mul_u32_u24 v13, 3840, v13
        v_lshl_add_u32 v13, v14, 4, v13
        s_lshl_b32 s25, s21, 8
        v_add_u32 v4, s25, v13
        v_xor_b32 v5, 128, v4
        s_lshl_b32 s27, s24, 12
        s_add_u32 s27, s27, {WB}
        """)
        nw, wst = 4, 16384
        wreg = lambda q: 5 if q & 2 else 4
        woff = lambda q: q*15360
    else:
        tbl = 0
        for i, x in enumerate([0,1,3,4,5,6,8,9,2,7]): tbl |= x << (4*i)
        a.I(f"s_mov_b32 s32, {tbl & 0xffffffff:#x}")
        a.I(f"s_mov_b32 s33, {tbl >> 32:#x}")
        a.I("s_mul_i32 s23, s21, 160")
        a.I("s_add_u32 s23, s23, 1280")
        a.I("s_lshl_b32 s25, s24, 4")
        for q in range(5):
            a.I(f"""
            v_add_u32 v12, {64*q}, v1
            v_mul_u32_u24 v13, 3277, v12
            v_lshrrev_b32 v13, 16, v13
            v_mul_u32_u24 v14, 20, v13
            v_sub_u32 v14, v12, v14
            v_lshrrev_b32 v15, 3, v13
            v_lshlrev_b32 v15, 1, v15
            v_xor_b32 v14, v14, v15
            v_cmp_le_u32 s[36:37], 10, v14
            v_cndmask_b32 v15, 0, 10, s[36:37]
            v_sub_u32 v14, v14, v15
            v_lshlrev_b32 v14, 2, v14
            v_lshrrev_b64 v[16:17], v14, s[32:33]
            v_and_b32 v16, 15, v16
            v_lshlrev_b32 v15, 3, v15
            v_lshl_add_u32 v15, v16, 4, v15
            v_cmp_le_u32 s[36:37], 5, v16
            v_mov_b32 v17, 1200
            v_cndmask_b32 v17, 0, v17, s[36:37]
            v_add_u32 v13, s25, v13
            v_mul_u32_u24 v13, 3840, v13
            v_add3_u32 v13, v13, v15, v17
            v_add_u32 v{4+q}, s23, v13
            """)
        a.I("s_mul_i32 s27, s24, 5120")
        nw, wst = 5, 20480
        wreg = lambda q: 4 + q
        woff = lambda q: 0
    def dw(st, qq):
        a.I(f"s_add_u32 m0, s27, {st*wst + qq*1024}")
        if woff(qq):
            a.I(f"s_add_u32 s35, s45, {woff(qq)}")
            a.I(f"buffer_load_dwordx4 v{wreg(qq)}, s[12:15], s35 offen lds")
        else:
            a.I(f"buffer_load_dwordx4 v{wreg(qq)}, s[12:15], s45 offen lds")
    def issue_stage(b):
        st = b % 3
        if b == 0:
            for q in range(nw): dw(st, q)
            return
        kregs()
        for q in range(4):
            dw(st, q); dx(st, 2*q)
            if 2*q+1 < nx: dx(st, 2*q+1)
        if nw == 5: dw(st, 4)
    per = nx + nw
    LT = eval(os.environ.get("K1_LTOUCH", "{1:4, 3:6, 5:8}"))
    vm = VmTrack()
    def stage(b):
        issue_stage(b)
        for _ in range(per): vm.add(("S", b))
    stage(0)
    pf.stamp("l_iss0")
    stage(1)
    pf.stamp("l_iss1")
    if LT:
        touch_setup(a, 10, 11)
        a.I("s_bitcmp1_b32 s24l, 1".replace("s24l", "s63"))
        a.I("s_cselect_b32 s60, 1, 0")
    for b in range(0, 10):
        n, _ = vm.wait_n(lambda t: t == ("S", b))
        a.I(f"s_waitcnt vmcnt({n})")
        if b <= 2: pf.stamp(f"l_land{b}")
        a.I("s_barrier")
        if b + 2 <= 9: stage(b + 2)
        if b in LT:
            lw = a.newlabel("k1_ltw"); lj = a.newlabel("k1_ltj")
            a.I(f"s_add_u32 s59, s60, {LT[b]}")
            a.I("s_bitcmp1_b32 s63, 0")
            a.I(f"s_cbranch_scc1 {lw}")
            a.I("s_lshl_b32 s35, s59, 7")
            a.I("buffer_load_dword v12, v10, s[8:11], s35 offen")
            a.I(f"s_branch {lj}")
            a.L(lw)
            a.I("s_mul_i32 s35, s59, 245760")
            a.I("buffer_load_dword v12, v11, s[12:15], s35 offen")
            a.L(lj)
            vm.add(("T", b))
    a.I("s_waitcnt vmcnt(0)")
    pf.finish(16, 22)
    a.I("s_endpgm")

def touch_setup(a, V_TX=V_TX, V_TW=V_TW):
    a.I(f"""
    s_and_b32 s23, s3, 1
    s_lshl_b32 s23, s23, 10
    s_mul_i32 s24, s30, s54
    s_add_u32 s23, s23, s24
    v_add_u32 v13, s23, v1
    v_mul_u32_u24 v13, 1280, v13
    v_mov_b32 v14, {OOB:#x}
    v_cmp_gt_u32 s[48:49], s54, v1
    v_cndmask_b32 v{V_TX}, v14, v13, s[48:49]
    v_cmp_gt_u32 s[48:49], 32, v1
    v_and_b32 v15, 15, v1
    v_add_u32 v13, s50, v15
    v_mov_b32 v16, s52
    v_cmp_le_u32 s[36:37], s51, v15
    v_cndmask_b32 v16, 0, v16, s[36:37]
    v_cmp_le_u32 s[36:37], s53, v15
    v_cndmask_b32 v17, 0, 5, s[36:37]
    v_add3_u32 v13, v13, v16, v17
    v_lshlrev_b32 v13, 7, v13
    v_bfe_u32 v15, v1, 4, 1
    s_lshl_b32 s24, s30, 1
    v_add_u32 v15, s24, v15
    v_mul_u32_u24 v15, 3840, v15
    v_add_u32 v13, v13, v15
    v_cndmask_b32 v{V_TW}, v13, v14, s[48:49]
    """)
def touch_ops(a, b, d0=V_TD, d1=V_TD):
    a.I(f"buffer_load_dword v{d0}, v{V_TX}, s[8:11], 0 offen offset:{b*128}")
    a.I(f"s_mov_b32 s35, {b*245760}")
    a.I(f"buffer_load_dword v{d1}, v{V_TW}, s[12:15], s35 offen")
def touch(a, b, wave, wait=False):
    l = a.newlabel("k1_nt")
    a.I(f"s_cmp_lg_u32 s22, {wave}")
    a.I(f"s_cbranch_scc1 {l}")
    if wait: a.I("s_waitcnt vmcnt(0)")
    touch_ops(a, b)
    a.L(l)

def phi_regs(a, regs, tm):
    for q, r in enumerate(regs):
        for i in (0, 2): a.I(f"v_pk_mul_f32 {v(tm+4*q+i,2)}, {v(r+i,2)}, s[42:43]")
    for q, r in enumerate(regs):
        for i in range(4): a.I(f"v_exp_f32 v{tm+4*q+i}, v{tm+4*q+i} clamp")
    for q, r in enumerate(regs):
        for i in range(4): a.I(f"v_max_f32 v{r+i}, s44, v{r+i}")
    for q, r in enumerate(regs):
        for i in (0, 2): a.I(f"v_pk_add_f32 {v(r+i,2)}, {v(r+i,2)}, {v(tm+4*q+i,2)}")
def phi_consts(a):
    a.I(f"s_mov_b32 s42, {f2u(LOG2E):#x}")
    a.I(f"s_mov_b32 s43, {f2u(LOG2E):#x}")
    a.I(f"s_mov_b32 s44, {f2u(1e-6):#x}")
def pack(a, d, r0, r1):
    for rt, r in enumerate((r0, r1)):
        a.I(f"v_cvt_pk_bf16_f32 v{d+2*rt}, v{r}, v{r+1}")
        a.I(f"v_cvt_pk_bf16_f32 v{d+2*rt+1}, v{r+2}, v{r+3}")

def epilogue_flat(a, mode, sfx_):
    P = V_F + 16
    if mode == "phi": phi_consts(a)
    if mode == "scale":
        a.I(f"s_mov_b32 s42, {f2u(QSCALE):#x}")
        a.I(f"s_mov_b32 s43, {f2u(QSCALE):#x}")
    k = 0
    for p in range(2):
        for j in range(4):
            d = P + (k % 8)*4; tm = V_F + (k % 2)*8; k += 1
            regs = [acc("row", 2*p, j), acc("row", 2*p+1, j)]
            if mode == "phi": phi_regs(a, regs, tm)
            if mode == "scale":
                for q, r in enumerate(regs):
                    for i in (0, 2): a.I(f"v_pk_mul_f32 {v(r+i,2)}, {v(r+i,2)}, s[42:43]")
            pack(a, d, regs[0], regs[1])
            a.I(f"buffer_store_dwordx4 {v(d,4)}, v{V_A+j}, s[16:19], 0 offen offset:{p*1280}{sfx(sfx_)}")

def epilogue_kv(a, pf):
    PK0=V_F; PK1=V_F+4; VV0=V_F+8; VV1=V_F+12; T6P=V_F+16; T6O=V_F+20
    M = V_F + 24; tm = V_F + 56
    phi_consts(a)
    a.I("v_and_b32 v13, 15, v1")
    a.I("v_cmp_gt_u32 s[40:41], 8, v13")
    a.I("v_mov_b32 v14, 0x3f803f80")
    A = lambda i, t: acc("kv", i, t)
    pairs = [(PK0,VV0),(PK1,VV1),(PK0,T6O),(PK1,T6O),(T6P,VV0),(T6P,VV1),(T6P,T6O)]
    def rows32(i0, i1, first):
        pack(a, VV0, A(i0,2), A(i1,2)); pack(a, VV1, A(i0,3), A(i1,3))
        pack(a, T6O, A(i0,4), A(i1,4))
        for k in range(4): a.I(f"v_cndmask_b32 v{T6O+k}, v{T6O+k}, v14, s[40:41]")
        for t, dst in ((0, PK0), (1, PK1), (4, T6P)):
            phi_regs(a, [A(i0,t), A(i1,t)], tm)
            pack(a, dst, A(i0,t), A(i1,t))
        for k, (x, y) in enumerate(pairs):
            c = "0" if first else v(M+4*k,4)
            a.I(f"v_mfma_f32_16x16x32_bf16 {v(M+4*k,4)}, {v(x,4)}, {v(y,4)}, {c}")
    def rows16(i0):
        def pack1(d, r):
            a.I(f"v_cvt_pk_bf16_f32 v{d}, v{r}, v{r+1}")
            a.I(f"v_cvt_pk_bf16_f32 v{d+1}, v{r+2}, v{r+3}")
        pack1(VV0, A(i0,2)); pack1(VV1, A(i0,3)); pack1(T6O, A(i0,4))
        for k in range(2): a.I(f"v_cndmask_b32 v{T6O+k}, v{T6O+k}, v14, s[40:41]")
        for t, dst in ((0, PK0), (1, PK1), (4, T6P)):
            phi_regs(a, [A(i0,t)], tm)
            pack1(dst, A(i0,t))
        for k, (x, y) in enumerate(pairs):
            a.I(f"v_mfma_f32_16x16x16bf16_1k {v(M+4*k,4)}, {v(x,2)}, {v(y,2)}, {v(M+4*k,4)}")
    lz = a.newlabel("k1_kvz"); l16 = a.newlabel("k1_kv16"); lend = a.newlabel("k1_kvend")
    a.I("s_mul_i32 s45, s20, 224")
    a.I("s_add_u32 s45, s45, s63")
    a.I("s_cmp_ge_u32 s45, 2048")
    a.I(f"s_cbranch_scc1 {lz}")
    rows32(0, 1, True)
    a.I("s_add_u32 s45, s45, 32")
    a.I("s_cmp_ge_u32 s45, 2048")
    a.I(f"s_cbranch_scc1 {lend}")
    a.I("s_cmp_ge_u32 s36, 2")
    a.I(f"s_cbranch_scc1 {l16}")
    rows32(2, 3, False)
    a.I(f"s_branch {lend}")
    a.L(l16)
    rows16(2)
    a.I(f"s_branch {lend}")
    a.L(lz)
    for k in range(28): a.I(f"v_mov_b32 v{M+k}, 0")
    a.L(lend)
    pf.stamp("kvm")
    a.I("s_mul_i32 s45, s22, 7168")
    a.I(f"s_add_u32 s45, s45, {KVD}")
    a.I("v_lshlrev_b32 v12, 4, v1")
    a.I("v_add_u32 v12, s45, v12")
    for k in range(7): a.I(f"ds_write_b128 v12, {v(M+4*k,4)} offset:{k*1024}")
    a.I("s_waitcnt lgkmcnt(0)")
    a.I("s_barrier")
    R = V_F
    def task(st):
        a.I(f"""
        s_cmp_ge_u32 {st}, 6
        s_cselect_b32 s54, 1, 0
        s_mul_i32 s55, s54, 6
        s_sub_u32 s55, {st}, s55
        s_cmp_ge_u32 s55, 3
        s_cselect_b32 s45, 1, 0
        s_mul_i32 s46, s45, 3
        s_sub_u32 s46, s55, s46
        v_lshrrev_b32 v12, 5, v1
        v_and_b32 v13, 31, v1
        s_lshl_b32 s47, s46, 1
        v_add_u32 v14, s47, v12
        v_mov_b32 v15, s45
        s_cmp_eq_u32 s46, 2
        s_cselect_b64 s[48:49], -1, 0
        v_cndmask_b32 v14, v14, v15, s[48:49]
        s_add_u32 s50, s45, 4
        s_add_u32 s51, s45, 2
        s_cmp_eq_u32 s46, 2
        s_cselect_b32 s50, s50, s45
        s_cselect_b32 s51, 6, s51
        v_mov_b32 v8, s51
        v_mov_b32 v9, s50
        v_cmp_gt_u32 s[52:53], 16, v13
        v_cndmask_b32 v8, v8, v9, s[52:53]
        s_lshl_b32 s56, s45, 2
        s_sub_u32 s56, s56, 8
        v_add_u32 v9, s56, v13
        v_cmp_gt_u32 s[58:59], 20, v13
        v_cndmask_b32 v9, 0, v9, s[58:59]
        v_cndmask_b32 v9, v9, v13, s[52:53]
        v_lshl_add_u32 v9, v14, 4, v9
        v_lshlrev_b32 v9, 4, v9
        v_lshl_add_u32 v9, v8, 10, v9
        s_mul_i32 s57, s54, 7168
        s_add_u32 s57, s57, {KVD}
        v_add_u32 v9, s57, v9
        """)
        for w_ in range(4): a.I(f"ds_read_b128 {v(R+4*w_,4)}, v9 offset:{w_*2*7168}")
        a.I(f"""
        s_lshl_b32 s55, s21, 2
        s_lshl_b32 s57, s54, 1
        s_add_u32 s55, s55, s57
        s_add_u32 s55, s55, s45
        s_mul_i32 s55, s55, 10
        s_add_u32 s55, s55, s20
        s_mul_i32 s55, s55, 3
        s_add_u32 s55, s55, s46
        s_lshl_b32 s55, s55, 10
        s_add_u32 s55, s55, {WS_KVP}
        v_lshlrev_b32 v10, 4, v1
        v_add_u32 v10, s55, v10
        """)
        for w_ in range(1, 4):
            a.I(f"s_waitcnt lgkmcnt({3-w_})")
            for i in range(4): a.I(f"v_add_f32 v{R+i}, v{R+i}, v{R+4*w_+i}")
        a.I(f"buffer_store_dwordx4 {v(R,4)}, v10, s[16:19], 0 offen{sfx(ST_K1)}")
    task("s22")
    l2 = a.newlabel("k1_kv2")
    a.I("s_cmp_ge_u32 s22, 4")
    a.I(f"s_cbranch_scc1 {l2}")
    a.I("s_add_u32 s60, s22, 8")
    a.I("s_nop 1")
    task("s60")
    a.L(l2)

def gen_k1(a, name):
    a.raw(f".globl {name}\n.p2align 8\n.type {name},@function")
    a.L(name)
    le = a.newlabel("k1_end")
    pf = Prof(a, 0)
    a.I("s_cmp_ge_u32 s2, 256")
    a.I(f"s_cbranch_scc1 {le}")
    pf.start()
    a.I("s_load_dwordx4 s[4:7], s[0:1], 0")
    a.I("s_load_dwordx4 s[44:47], s[0:1], 24")
    a.I("s_load_dwordx2 s[28:29], s[0:1], 64")
    lB = a.newlabel("k1_decB"); lD = a.newlabel("k1_dec")
    a.I("""
    s_and_b32 s3, s2, 7
    s_lshr_b32 s30, s2, 3
    s_lshr_b32 s31, s3, 2
    s_and_b32 s20, s3, 1
    s_lshl_b32 s20, s20, 2
    s_and_b32 s23, s30, 3
    s_add_u32 s20, s20, s23
    s_lshr_b32 s38, s3, 1
    s_and_b32 s38, s38, 1
    s_lshr_b32 s34, s30, 2
    s_mov_b32 s62, s34
    v_lshrrev_b32 v13, 6, v0
    v_and_b32 v1, 63, v0
    s_cmp_eq_u32 s31, 0
    """)
    a.I(f"s_cbranch_scc0 {lB}")
    a.I("""
    s_lshl_b32 s24, s38, 2
    s_sub_u32 s23, 12, s24
    s_mul_i32 s25, s38, 3
    s_add_u32 s21, s34, s25
    s_mov_b32 s61, 0
    s_cmp_lt_u32 s30, s23
    """)
    lAq = a.newlabel("k1_decAq")
    a.I(f"s_cbranch_scc1 {lAq}")
    a.I("""
    s_sub_u32 s25, s30, s23
    s_mul_i32 s23, s25, 52
    s_lshr_b32 s23, s23, 8
    s_add_u32 s21, s24, s23
    s_mul_i32 s23, s23, 5
    s_sub_u32 s23, s25, s23
    s_and_b32 s20, s3, 1
    s_mul_i32 s20, s20, 5
    s_add_u32 s20, s20, s23
    s_cmp_ge_u32 s25, 20
    s_cselect_b32 s61, 2, 1
    """)
    a.L(lAq)
    a.I("""
    s_mul_i32 s50, s38, 6
    s_lshl_b32 s24, s38, 1
    s_sub_u32 s51, 6, s24
    s_add_u32 s52, s38, 4
    s_add_u32 s53, s51, 5
    s_bitcmp1_b32 s3, 0
    s_cselect_b32 s54, 32, 35
    """)
    a.I(f"s_branch {lD}")
    a.L(lB)
    a.I("""
    s_lshl_b32 s21, s38, 3
    s_add_u32 s21, s21, s34
    s_cmp_ge_u32 s21, 15
    s_cselect_b32 s61, 2, 0
    s_lshl_b32 s50, s38, 4
    s_mov_b32 s51, 16
    s_mov_b32 s52, 0
    s_mov_b32 s53, 16
    s_mov_b32 s54, 32
    """)
    a.L(lD)
    a.I("v_readfirstlane_b32 s22, v13")
    a.I("s_waitcnt lgkmcnt(0)")
    pf.stamp("kernarg")
    a.I("s_cmp_eq_u32 s31, 0")
    for i in range(4): a.I(f"s_cselect_b32 s{4+i}, s{4+i}, s{44+i}")
    srd(a, 8, 4, 5, 2621440)
    srd(a, 12, 6, 7, 2457600)
    srd(a, 16, 28, 29, WS_REC, WS0)
    lx = a.newlabel("k1_spare"); lh = a.newlabel("k1_mfma"); lkl = a.newlabel("k1_ldkv"); lkv = a.newlabel("k1_kv")
    a.I("s_cmp_eq_u32 s61, 2")
    a.I(f"s_cbranch_scc1 {lx}")
    n0 = (pf.n, list(pf.names))
    def reset(): pf.n, pf.names = n0[0], list(n0[1])
    a.I("s_cmp_lt_u32 s22, 8")
    a.I(f"s_cbranch_scc1 {lh}")
    a.I("s_cmp_eq_u32 s61, 1")
    a.I(f"s_cbranch_scc1 {lkl}")
    loader_wave(a, False, pf); reset()
    a.L(lkl)
    loader_wave(a, True, pf); reset()
    a.L(lh)
    if os.environ.get("CODE_PF", "1") == "1":
        lc = a.newlabel("k1_nocode"); lpc = a.newlabel("k1_pc")
        a.I("s_cmp_lg_u32 s30, 0")
        a.I(f"s_cbranch_scc1 {lc}")
        a.I("s_cmp_ge_u32 s22, 6")
        a.I(f"s_cbranch_scc1 {lc}")
        a.I("s_getpc_b64 s[84:85]")
        a.L(lpc)
        a.raw(f"    s_sub_u32 s84, s84, {lpc}-{name}")
        a.I("s_subb_u32 s85, s85, 0")
        a.I("s_lshl_b32 s86, s22, 6")
        a.I("v_add_u32 v14, s86, v1")
        a.I("v_lshlrev_b32 v14, 7, v14")
        a.raw(f"    s_mov_b32 s87, code_end_label-{name}")
        a.I("v_cmp_gt_u32 vcc, s87, v14")
        a.I("s_and_saveexec_b64 s[88:89], vcc")
        lz = a.newlabel("k1_codez")
        a.I(f"s_cbranch_execz {lz}")
        a.I("v_mov_b32 v17, s85")
        a.I("v_add_co_u32 v16, vcc, s84, v14")
        a.I("v_addc_co_u32 v17, vcc, 0, v17, vcc")
        a.I("global_load_dword v4, v[16:17], off")
        a.L(lz)
        a.I("s_mov_b64 exec, -1")
        a.L(lc)
    a.I("s_cmp_eq_u32 s61, 1")
    a.I(f"s_cbranch_scc1 {lkv}")
    a.I("""
    s_mul_i32 s32, s21, 52
    s_lshr_b32 s32, s32, 8
    s_mul_i32 s23, s32, 5
    s_sub_u32 s33, s21, s23
    """)
    lcol = a.newlabel("k1_col"); lepi = a.newlabel("k1_epi")
    def x_addr(kv=False):
        a.I("s_lshl_b32 s63, s36, 6")
        if kv:
            a.I("s_cmp_eq_u32 s36, 3")
            a.I("s_cselect_b32 s63, 176, s63")
        a.I(f"""
        v_lshrrev_b32 v13, 4, v1
        v_and_b32 v14, 15, v1
        v_lshrrev_b32 v15, 1, v14
        v_xor_b32 v15, v15, v13
        s_lshl_b32 s39, s63, 7
        s_add_u32 s39, s39, {XB}
        v_lshlrev_b32 v16, 7, v14
        v_add_u32 v16, s39, v16
        v_lshl_add_u32 v{V_XR}, v15, 4, v16
        v_xor_b32 v{V_XR+1}, 64, v{V_XR}
        v_add_u32 v{V_XR2}, 0x10000, v{V_XR}
        v_add_u32 v{V_XR2+1}, 0x10000, v{V_XR+1}
        """)
    def addr_setup_flat():
        a.I(f"""
        s_lshr_b32 s36, s22, 1
        s_and_b32 s37, s22, 1
        v_lshrrev_b32 v13, 4, v1
        v_bfe_u32 v14, v1, 2, 2
        v_lshl_add_u32 v15, v13, 3, v14
        v_lshlrev_b32 v15, 8, v15
        v_and_b32 v16, 3, v1
        v_lshl_add_u32 v15, v16, 3, v15
        v_and_b32 v16, 1, v13
        v_lshl_or_b32 v16, v16, 2, v14
        s_lshl_b32 s40, s37, 2
        """)
        for j in range(4):
            a.I(f"s_add_u32 s39, s40, {j}")
            a.I(f"v_xor_b32 v17, s39, v16")
            a.I(f"v_lshl_add_u32 v{V_T+j}, v17, 5, v15")
        x_addr()
        a.I(f"""
        s_mul_i32 s40, s32, {BUF}
        s_cmp_eq_u32 s31, 0
        s_cselect_b32 s40, {WS_PQ}, s40
        s_lshl_b32 s41, s20, 3
        s_lshl_b32 s39, s36, 1
        s_add_u32 s41, s41, s39
        s_mul_i32 s41, s41, 1280
        s_add_u32 s40, s40, s41
        """)
    def addr_row():
        a.I(f"""
        s_lshl_b32 s39, s33, 5
        s_lshl_b32 s41, s37, 4
        s_add_u32 s39, s39, s41
        v_lshrrev_b32 v19, 4, v1
        v_add_u32 v15, s39, v19
        v_lshlrev_b32 v16, 4, v14
        v_add_u32 v16, s40, v16
        """)
        for j in range(4):
            a.I(f"""
            v_add_u32 v17, {4*j}, v15
            v_mul_u32_u24 v18, 205, v17
            v_lshrrev_b32 v18, 10, v18
            v_mul_u32_u24 v18, 80640, v18
            v_lshl_add_u32 v17, v17, 8, v16
            v_add_u32 v{V_A+j}, v17, v18
            """)
    def addr_col():
        a.I(f"""
        s_lshl_b32 s39, s33, 7
        s_lshl_b32 s41, s37, 6
        s_add_u32 s39, s39, s41
        v_add_u32 v15, s39, v14
        v_lshrrev_b32 v19, 4, v1
        v_mul_u32_u24 v16, 320, v19
        v_add_u32 v16, s40, v16
        """)
        for j in range(4):
            a.I(f"""
            v_add_u32 v17, {16*j}, v15
            v_mul_u32_u24 v18, 3277, v17
            v_lshrrev_b32 v18, 16, v18
            v_mul_u32_u24 v18, 81600, v18
            v_lshl_add_u32 v17, v17, 4, v16
            v_add_u32 v{V_A+j}, v17, v18
            """)
    a.I("s_cmp_eq_u32 s32, 2")
    a.I(f"s_cbranch_scc1 {lcol}")
    ldn = a.newlabel("k1_done")
    g = main_loop(a, "row", pf); next(g)
    addr_setup_flat(); addr_row()
    for _ in g: pass
    a.I("s_waitcnt vmcnt(0)")
    pf.stamp("mainend")
    lnp = a.newlabel("k1_nophi"); lst = a.newlabel("k1_plain")
    a.I("s_cmp_lg_u32 s31, 0")
    a.I(f"s_cbranch_scc1 {lnp}")
    epilogue_flat(a, "phi", ST_K1)
    a.I(f"s_branch {ldn}")
    a.L(lnp)
    a.I("s_cmp_lg_u32 s32, 0")
    a.I(f"s_cbranch_scc1 {lst}")
    epilogue_flat(a, "scale", ST_K1)
    a.I(f"s_branch {ldn}")
    a.L(lst)
    epilogue_flat(a, "none", ST_K1)
    a.I(f"s_branch {ldn}")
    reset()
    a.L(lcol)
    g = main_loop(a, "col", pf); next(g)
    addr_setup_flat(); addr_col()
    for _ in g: pass
    a.I("s_waitcnt vmcnt(0)")
    pf.stamp("mainend")
    epilogue_flat(a, "none", os.environ.get("ST_K1V", ST_K1))
    a.I(f"s_branch {ldn}")
    reset()
    a.L(lkv)
    g = main_loop(a, "kv", pf); next(g)
    a.I(f"""
    s_lshr_b32 s36, s22, 1
    s_and_b32 s37, s22, 1
    v_lshrrev_b32 v13, 4, v1
    v_bfe_u32 v14, v1, 2, 2
    v_lshl_add_u32 v15, v13, 3, v14
    v_mul_u32_u24 v15, 320, v15
    v_and_b32 v16, 3, v1
    v_lshl_add_u32 v15, v16, 3, v15
    v_and_b32 v16, 1, v13
    s_mul_i32 s40, s37, 5
    """)
    for t in range(5):
        a.I(f"s_add_u32 s39, s40, {t}")
        a.I(f"v_xor_b32 v17, s39, v16")
        a.I(f"v_lshl_add_u32 v{V_T+t}, v17, 5, v15")
    x_addr(True)
    for _ in g: pass
    a.I("s_waitcnt vmcnt(0)")
    pf.stamp("mainend")
    epilogue_kv(a, pf)
    a.L(ldn)
    pf.stamp("stored")
    if PROFILE: a.I("s_waitcnt vmcnt(0)")
    pf.finish(16, 22)
    a.I("s_endpgm")
    a.L(lx)
    lnt = a.newlabel("k1_spare_nt")
    a.I("s_lshl_b32 s23, s22, 6")
    a.I("v_add_u32 v7, s23, v1")
    a.I("s_cmp_lg_u32 s22, 0")
    a.I(f"s_cbranch_scc1 {lnt}")
    touch_setup(a)
    touch_ops(a, 0, 8, 9)
    touch_ops(a, 1, 10, 11)
    for b in range(2, 10):
        a.I("s_waitcnt vmcnt(2)")
        touch_ops(a, b, 8 + 2*(b & 1), 9 + 2*(b & 1))
    a.I("s_waitcnt vmcnt(0)")
    a.L(lnt)
    if os.environ.get("WO_LATE", "1") == "1": a.I("s_barrier")
    lnf = a.newlabel("k1_noflag")
    a.I("s_cmp_lg_u32 s2, 255")
    a.I(f"s_cbranch_scc1 {lnf}")
    a.I("s_cmp_lt_u32 s22, 1")
    a.I(f"s_cbranch_scc1 {lnf}")
    a.I("s_cmp_gt_u32 s22, 8")
    a.I(f"s_cbranch_scc1 {lnf}")
    a.I("v_subrev_u32 v6, 64, v7")
    a.I(f"v_lshlrev_b32 v6, {FLAG_SH}, v6")
    a.I(f"v_add_u32 v6, {WS_FLAG}, v6")
    a.I("v_mov_b32 v8, 0")
    a.I("buffer_store_dword v8, v6, s[16:19], 0 offen")
    a.L(lnf)
    if os.environ.get("WO_PF", "1") == "1":
        lz2 = a.newlabel("k1_nopf")
        a.I("s_load_dwordx2 s[48:49], s[0:1], 16")
        a.I("s_load_dwordx2 s[50:51], s[0:1], 40")
        a.I("""
        s_and_b32 s20, s3, 1
        s_and_b32 s21, s30, 3
        s_lshl_b32 s21, s21, 1
        s_add_u32 s20, s20, s21
        s_mul_i32 s20, s20, 102400
        v_lshlrev_b32 v2, 7, v7
        v_add_u32 v2, s20, v2
        """)
        a.I("s_waitcnt lgkmcnt(0)")
        a.I("s_cmp_eq_u32 s31, 0")
        a.I("s_cselect_b32 s4, s48, s50")
        a.I("s_cselect_b32 s5, s49, s51")
        srd(a, 8, 4, 5, 819200)
        a.I("buffer_load_dword v4, v2, s[8:11], 0 offen")
        a.I("s_mov_b32 s21, 73728")
        a.I("v_cmp_gt_u32 vcc, 224, v7")
        a.I("s_and_saveexec_b64 s[22:23], vcc")
        lz = a.newlabel("k1_pfz")
        a.I(f"s_cbranch_execz {lz}")
        a.I("buffer_load_dword v5, v2, s[8:11], s21 offen")
        a.L(lz)
        a.I("s_mov_b64 exec, -1")
        a.I("s_waitcnt vmcnt(0)")
        a.L(lz2)
    a.L(le)
    a.I("s_endpgm")
    a.raw(kd(name, K1_VGPRS))
```

```python
from common import *

LK = 0
LV = 16*1280
LKV = 32*1280
LW = 43008
K2_LDS = LW + 102400 + 512
VAKM=2; VAKT=3; VAV=4; VAO=5; VAOT=6; VL=7
VC=16; VS=(32,48); VO=64; VQM=80; VQT=84
VKM=(86,90); VKT=(94,96); VV=(98,102); VP=106
VPQM=114; VPQT=118; VKVM=120; VKVT=124
VR=128
V_WM=170
K2_VGPRS=240
V_OM=2; V_OT=3; V_T0=4; V_T1=5; V_OUT=6; V_OUT2=7; V_T1B=10; V_T2=11
V_RING=20; V_ACC=36; V_O=76; RING=4
def acc3(t, rt): return V_ACC + (t*2+rt)*4
def oreg(s_, rt): return V_O + (s_*2+rt)*4
POLL_SLEEP = int(os.environ.get('POLL_SLEEP', '8'))
WO_TOUCH = os.environ.get('WO_TOUCH', '0') == '1'
O_TOUCH = os.environ.get('O_TOUCH', '0') == '1'
POLL_ALL = os.environ.get('POLL_ALL', '1') == '1'
assert not (O_TOUCH and POLL_ALL)
AI = int(os.environ.get('AI', '4'))
MASK20 = (0x000FFFFF, 0x000FFFFF)

def kappa_code(a, m, dst, tmp):
    a.I(f"""
    v_and_b32 v{dst}, 7, v{m}
    v_bfe_u32 v{tmp}, v{m}, 3, 1
    v_lshl_or_b32 v{dst}, v{tmp}, 4, v{dst}
    v_bfe_u32 v{tmp}, v{m}, 4, 1
    v_lshl_or_b32 v{dst}, v{tmp}, 3, v{dst}
    """)

def key_of_reg(r):
    s_, b, i = r >> 3, (r >> 2) & 1, r & 3
    return 16*b + 8*s_ + i

def normalize_store(a, O, P, add_eps, so, off=0, check=None):
    a.I(f"v_cndmask_b32 v{VL}, v{O+8}, v{O+12}, s[38:39]")
    if add_eps: a.I(f"v_add_f32 v{VL}, s43, v{VL}")
    if check: check()
    a.I(f"v_rcp_f32 v8, v{VL}")
    for i in range(12): a.I(f"v_mul_f32 v{O+i}, v8, v{O+i}")
    for i in range(6): a.I(f"v_cvt_pk_bf16_f32 v{P+i}, v{O+2*i}, v{O+2*i+1}")
    a.I(f"buffer_store_dwordx4 {v(P,4)}, v{VAO}, s[16:19], {so} offen offset:{off}{sfx(ST_K2)}")
    a.I(f"buffer_store_dwordx2 {v(P+4,2)}, v{VAOT}, s[16:19], {so} offen offset:{off}{sfx(ST_K2)}")

def out_addr(a, stile):
    a.I(f"""
    s_mul_i32 s36, {stile}, 1280
    v_lshlrev_b32 v14, 4, v1
    v_add_u32 v{VAO}, s36, v14
    v_lshlrev_b32 v14, 3, v12
    v_add_u32 v14, s36, v14
    v_add_u32 v14, 1024, v14
    v_mov_b32 v15, {OOB:#x}
    v_cndmask_b32 v{VAOT}, v15, v14, s[38:39]
    """)

def q_addr(a, dst):
    a.I(f"""
    v_and_b32 v13, 15, v1
    v_lshlrev_b32 v13, 4, v13
    v_bfe_u32 v14, v1, 4, 1
    v_lshl_add_u32 v13, v14, 3, v13
    v_lshl_add_u32 v13, v11, 8, v13
    v_add_u32 v{dst}, s36, v13
    """)

def q_addr4(a, dst, dst_t):
    a.I(f"""
    v_and_b32 v13, 15, v1
    v_lshlrev_b32 v13, 4, v13
    v_add_u32 v13, s36, v13
    v_bfe_u32 v14, v1, 4, 1
    v_lshl_add_u32 v{dst_t}, v14, 3, v13
    v_lshl_add_u32 v13, v14, 9, v13
    v_lshl_add_u32 v{dst}, v11, 8, v13
    """)
def q_swap(a, r):
    a.I(f"v_permlane16_swap_b32 v{r}, v{r+2}")
    a.I(f"v_permlane16_swap_b32 v{r+1}, v{r+3}")

def projection_setup(a):
    a.I(f"""
    s_lshl_b32 s31, s63, 2
    s_add_u32 s31, s31, s22
    s_mul_i32 s32, s31, 1280
    s_cmp_eq_u32 s62, 0
    s_mov_b32 s33, {WS_OA}
    s_mov_b32 s34, {WS_OB}
    s_cselect_b32 s33, s33, s34
    s_add_u32 s32, s32, s33
    v_lshrrev_b32 v18, 4, v1
    v_and_b32 v19, 15, v1
    v_lshrrev_b32 v16, 1, v18
    v_mul_u32_u24 v16, 81920, v16
    v_and_b32 v17, 1, v18
    v_lshl_add_u32 v16, v17, 9, v16
    v_lshl_add_u32 v16, v19, 4, v16
    v_add_u32 v{V_OM}, s32, v16
    v_mul_u32_u24 v16, {2*81920}, v18
    v_lshl_add_u32 v16, v19, 3, v16
    v_add_u32 v16, s32, v16
    v_add_u32 v{V_OT}, 1024, v16
    """)
    a.I(f"""
    v_lshrrev_b32 v18, 5, v1
    v_lshlrev_b32 v18, 4, v18
    v_bfe_u32 v19, v1, 4, 1
    v_lshl_add_u32 v18, v19, 2, v18
    v_bfe_u32 v19, v1, 2, 2
    v_add_u32 v18, v18, v19
    v_mul_u32_u24 v18, 160, v18
    v_and_b32 v19, 3, v1
    v_lshl_add_u32 v18, v19, 3, v18
    v_add_u32 v{V_T0}, {LW}, v18
    v_add_u32 v{V_T2}, {16*5120}, v{V_T0}
    v_lshrrev_b32 v18, 4, v1
    v_and_b32 v19, 15, v1
    s_lshl_b32 s41, s31, 5
    v_add_u32 v19, s41, v19
    v_mul_u32_u24 v19, 2560, v19
    s_mul_i32 s42, s62, 1280
    s_add_u32 s42, s42, s73
    v_add_u32 v19, s42, v19
    v_and_b32 v16, 1, v18
    v_lshlrev_b32 v16, 5, v16
    v_lshrrev_b32 v17, 1, v18
    v_lshl_add_u32 v16, v17, 4, v16
    v_add_u32 v{V_OUT}, v19, v16
    v_lshl_add_u32 v{V_OUT2}, v18, 3, v19
    s_mov_b32 s43, {16*2560}
    """)

def projection(a, pf):
    vm = VmTrack()
    R3 = os.environ.get("K23_R3", "0") == "1"
    a.I(f"s_lshl_b32 s84, s72, 1")
    if not R3: a.I("s_mov_b32 s84, 0")
    a.I("s_mov_b32 s85, s84")
    def ops_o(s_):
        out = []
        if s_ < 16:
            for rt in range(2):
                t = ["s_mul_i32 s40, s84, 163840", "s_add_u32 s84, s84, 1", "s_and_b32 s84, s84, 15"] if rt == 0 else []
                t.append(f"buffer_load_dwordx4 {v(oreg(s_,rt),4)}, v{V_OM}, s[16:19], s40 offen offset:{rt*256} sc1")
                out.append((t, ("O", s_)))
        else:
            for u in range(2):
                for rt in range(2):
                    t = [f"s_mov_b32 s40, {(s_-16)*655360 + u*81920}"] if rt == 0 else []
                    t.append(f"buffer_load_dwordx2 {v(oreg(s_,rt)+2*u,2)}, v{V_OT}, s[16:19], s40 offen offset:{rt*128} sc1")
                    out.append((t, ("O", s_)))
        return out
    def emit_op(op):
        for t in op[0]: a.I(t)
        vm.add(op[1])
    NPRE = int(os.environ.get("K3_NPRE", "8"))
    for s_ in range(NPRE):
        for op in ops_o(s_): emit_op(op)
    pending = []
    for s_ in range(NPRE, 20): pending += ops_o(s_)
    pf.stamp("o_issued")
    def issue_tr(n):
        s_, t = divmod(n, 5)
        r = V_RING + (n % RING)*4
        if s_ < 16:
            base = V_T1 if (s_ & 1) else V_T1B
            if t == 0:
                a.I("s_mul_i32 s41, s85, 5120")
                a.I("s_add_u32 s85, s85, 1")
                a.I("s_and_b32 s85, s85, 15")
                a.I(f"v_add_u32 v{base}, s41, v{V_T0}")
            off = 32*t
        else:
            base = V_T2; off = (s_ - 16)*5120 + 32*t
        a.I(f"ds_read_b64_tr_b16 {v(r,2)}, v{base} offset:{off}")
        a.I(f"ds_read_b64_tr_b16 {v(r+2,2)}, v{base} offset:{off+1280}")
    NT = 100
    for n in range(RING-1): issue_tr(n)
    for n in range(NT):
        s_, t = divmod(n, 5)
        if n in (0, 40): pf.stamp(f"p{n}")
        if t == 0:
            while pending and not any(x == ("O", s_) for x in vm.ops): emit_op(pending.pop(0))
            while pending and pending[0][1] == ("O", s_): emit_op(pending.pop(0))
            nw_, _ = vm.wait_n(lambda x: x == ("O", s_))
            a.I(f"s_waitcnt vmcnt({nw_})")
        m = n + RING - 1
        if m < NT:
            issue_tr(m)
            a.I(f"s_waitcnt lgkmcnt({2*(RING-1)})")
        else:
            a.I(f"s_waitcnt lgkmcnt({2*(NT-1-n)})")
        wf = v(V_RING + (n % RING)*4, 4)
        for rt in range(2):
            d = v(acc3(t, rt), 4)
            c = "0" if s_ == 0 else d
            a.I(f"v_mfma_f32_16x16x32_bf16 {d}, {wf}, {v(oreg(s_,rt),4)}, {c}")
        if pending: emit_op(pending.pop(0))
    pf.stamp("pend")
    P = V_O
    for rt in range(2):
        so = "s43" if rt else "0"
        for pr in range(2):
            p = P + rt*12 + pr*4
            for k, t in enumerate((2*pr, 2*pr+1)):
                r = acc3(t, rt)
                a.I(f"v_cvt_pk_bf16_f32 v{p+2*k}, v{r}, v{r+1}")
                a.I(f"v_cvt_pk_bf16_f32 v{p+2*k+1}, v{r+2}, v{r+3}")
            a.I(f"v_permlane16_swap_b32 v{p}, v{p+2}")
            a.I(f"v_permlane16_swap_b32 v{p+1}, v{p+3}")
            a.I(f"buffer_store_dwordx4 {v(p,4)}, v{V_OUT}, s[12:15], {so} offen offset:{pr*64}{sfx(ST_K3)}")
        p = P + rt*12 + 8
        r = acc3(4, rt)
        a.I(f"v_cvt_pk_bf16_f32 v{p}, v{r}, v{r+1}")
        a.I(f"v_cvt_pk_bf16_f32 v{p+1}, v{r+2}, v{r+3}")
        a.I(f"buffer_store_dwordx2 {v(p,2)}, v{V_OUT2}, s[12:15], {so} offen offset:128{sfx(ST_K3)}")

def gen_k2(a, name):
    a.raw(f".globl {name}\n.p2align 8\n.type {name},@function")
    a.L(name)
    le = a.newlabel("k2_end")
    a.I("s_cmp_ge_u32 s2, 256")
    a.I(f"s_cbranch_scc1 {le}")
    pf = Prof(a, 1); pf.start()
    a.I("s_load_dwordx2 s[28:29], s[0:1], 64")
    a.I("s_load_dwordx4 s[4:7], s[0:1], 40")
    a.I("s_load_dwordx2 s[12:13], s[0:1], 16")
    a.I("""
    s_and_b32 s3, s2, 7
    s_lshr_b32 s30, s2, 3
    s_lshr_b32 s62, s3, 2
    s_and_b32 s63, s3, 3
    s_lshl_b32 s63, s63, 2
    s_and_b32 s23, s30, 3
    s_add_u32 s63, s63, s23
    s_lshr_b32 s72, s30, 2
    """)
    a.I("""
    s_mov_b32 s3, s2
    s_and_b32 s20, s3, 7
    s_lshr_b32 s23, s3, 6
    s_lshl_b32 s23, s23, 3
    s_add_u32 s20, s20, s23
    s_lshr_b32 s21, s3, 3
    s_and_b32 s21, s21, 7
    v_lshrrev_b32 v12, 6, v0
    v_and_b32 v1, 63, v0
    """)
    a.I("v_readfirstlane_b32 s22, v12")
    a.I("""
    s_lshl_b32 s24, s20, 6
    s_lshl_b32 s23, s21, 3
    s_add_u32 s24, s24, s23
    s_cmp_eq_u32 s21, 0
    s_cselect_b32 s23, 0, 8
    s_sub_u32 s25, s24, s23
    s_add_u32 s26, s24, s22
    v_lshlrev_b32 v8, 4, v1
    v_lshrrev_b32 v11, 5, v1
    v_and_b32 v12, 31, v1
    s_mul_i32 s36, s26, 1280
    """)
    q_addr4(a, 10, 9)
    a.I("s_waitcnt lgkmcnt(0)")
    pf.stamp('kernarg')
    srd(a, 16, 28, 29, WS_REC, WS0)
    a.I("s_cmp_eq_u32 s62, 0")
    a.I("s_cselect_b32 s4, s12, s4")
    a.I("s_cselect_b32 s5, s13, s5")
    srd(a, 8, 4, 5, 819200)
    srd(a, 12, 6, 7, 5242880)
    a.I(f"v_mov_b32 v{VQT}, 0")
    a.I(f"v_mov_b32 v{VQT+1}, 0")
    a.I(f"buffer_load_dwordx4 {v(VQM,4)}, v10, s[16:19], 0 offen")
    a.I("s_mov_b32 exec_hi, 0")
    a.I(f"buffer_load_dwordx2 {v(VQT,2)}, v9, s[16:19], 0 offen offset:1024")
    a.I("s_mov_b32 exec_hi, -1")
    a.I(f"""
    s_mul_i32 s30, s25, 1280
    s_mul_i32 s31, s24, 1280
    s_bitcmp1_b32 s22, 1
    s_cselect_b32 s34, s31, s30
    s_mov_b32 s35, {WS_KB}
    s_mov_b32 s37, {WS_VB}
    s_cmp_ge_u32 s22, 4
    s_cselect_b32 s35, s37, s35
    s_add_u32 s34, s34, s35
    s_and_b32 s32, s22, 1
    s_mul_i32 s32, s32, 5120
    s_add_u32 s34, s34, s32
    s_mul_i32 s33, s22, 5120
    """)
    for j in range(5):
        a.I(f"s_add_u32 m0, s33, {j*1024}")
        a.I("buffer_load_dwordx4 v8, s[16:19], s34 offen lds")
        if j < 4: a.I("s_add_u32 s34, s34, 1024")
    if WO_TOUCH:
        lt = a.newlabel("k23_nt")
        a.I("s_cmp_lt_u32 s22, 4")
        a.I(f"s_cbranch_scc1 {lt}")
        a.I(f"""
        s_sub_u32 s32, s22, 4
        s_lshl_b32 s32, s32, 6
        v_add_u32 v13, s32, v1
        s_lshr_b32 s33, s2, 3
        s_mul_i32 s33, s33, 25600
        v_lshlrev_b32 v14, 7, v13
        v_mov_b32 v15, {OOB:#x}
        s_movk_i32 s34, 200
        v_cmp_gt_u32 s[44:45], s34, v13
        v_cndmask_b32 v14, v15, v14, s[44:45]
        """)
        a.I("buffer_load_dword v239, v14, s[8:11], s33 offen")
        a.L(lt)
    pf.stamp("issued")
    a.I("v_cmp_gt_u32 s[38:39], 32, v1")
    kappa_code(a, 12, 13, 14)
    a.I(f"""
    s_mul_i32 s41, s22, 1280
    v_and_b32 v14, 15, v13
    v_lshlrev_b32 v14, 4, v14
    v_lshrrev_b32 v15, 4, v13
    v_lshl_add_u32 v14, v15, 3, v14
    v_add_u32 v{VAKT}, s41, v14
    v_lshl_add_u32 v{VAKM}, v11, 8, v{VAKT}
    """)
    a.I(f"""
    v_mul_u32_u24 v15, 320, v11
    v_lshl_add_u32 v14, v12, 4, v15
    s_add_u32 s41, s41, {LV}
    v_add_u32 v{VAV}, s41, v14
    """)
    out_addr(a, "s26")
    for k in range(8): a.I(f"v_mov_b32 v{VV[0]+k}, 0x3f803f80")
    a.I("""
    s_mul_i32 s73, s72, 160
    s_cmp_eq_u32 s62, 0
    s_cselect_b32 s74, 8, 4
    s_cselect_b32 s75, 4, 20
    """)
    for q in range(5):
        a.I(f"""
        v_add_u32 v16, {64*q}, v1
        v_mul_u32_u24 v17, 6554, v16
        v_lshrrev_b32 v17, 16, v17
        v_mul_u32_u24 v18, 10, v17
        v_sub_u32 v18, v16, v18
        v_lshlrev_b32 v18, 4, v18
        v_add_u32 v18, s73, v18
        v_lshrrev_b32 v19, 4, v17
        v_mul_u32_u24 v20, s74, v19
        v_add_u32 v20, v20, v17
        v_mul_u32_u24 v20, 1280, v20
        v_add_u32 v{V_WM+q}, v20, v18
        v_lshlrev_b32 v19, 1, v19
        v_bfe_u32 v20, v17, 2, 1
        v_add_u32 v19, v19, v20
        v_mul_u32_u24 v19, 40, v19
        v_bfe_u32 v20, v17, 3, 1
        v_mul_u32_u24 v20, s75, v20
        v_add_u32 v19, v19, v20
        v_and_b32 v20, 3, v17
        v_add3_u32 v19, v19, v20, 16
        v_mul_u32_u24 v19, 1280, v19
        v_add_u32 v{V_WM+5+q}, v19, v18
        """)
    R2 = os.environ.get("K23_R2", "0") == "1"
    a.I(f"""
    s_and_b32 s82, s63, 3
    s_lshl_b32 s82, s82, {1 if R2 else 0}
    s_mul_i32 s82, s82, {1 if R2 else 0}
    s_add_u32 s82, s82, s22
    s_and_b32 s82, s82, 7
    s_mul_i32 s76, s82, 51200
    s_add_u32 s77, s76, {8*51200}
    s_mul_i32 s78, s82, 204800
    s_mul_i32 s79, s82, 5120
    s_add_u32 s79, s79, {LW}
    s_add_u32 s80, s79, {8*5120}
    s_add_u32 s81, s79, {16*5120}
    """)
    def wdma(n):
        g, q = divmod(n, 5)
        skip = None
        if g == 2:
            skip = a.newlabel("k23_nw")
            a.I("s_cmp_ge_u32 s82, 4")
            a.I(f"s_cbranch_scc1 {skip}")
        a.I(f"s_add_u32 m0, s{79+g}, {q*1024}")
        a.I(f"buffer_load_dwordx4 v{V_WM + q + (5 if g == 2 else 0)}, s[8:11], s{76+g} offen lds")
        if skip: a.L(skip)
    def make_mask(first):
        a.I(f"""
        v_lshlrev_b32 v14, 2, v11
        v_sub_u32 v14, v12, v14
        v_mov_b32 v15, {NEG_INF:#x}
        """)
        for r in range(16):
            pr = 46 + 2*(r & 1)
            a.I(f"v_cmp_gt_i32 s[{pr}:{pr+1}], {key_of_reg(r)}, v14")
            if first: a.I(f"v_cndmask_b32 v{VC+r}, v15, 0, s[{pr}:{pr+1}]")
            else:     a.I(f"v_cndmask_b32 v{VC+r}, 0, v15, s[{pr}:{pr+1}]")
    l0 = a.newlabel("k2_r0"); l1 = a.newlabel("k2_r1")
    a.I("s_mov_b32 s27, 0")
    a.I("s_cmp_lg_u32 s21, 0")
    a.I(f"s_cbranch_scc1 {l0}")
    a.I("s_sub_u32 s27, 8, s22")
    for r in range(16): a.I(f"v_mov_b32 v{VC+r}, {NEG_INF:#x}")
    a.I(f"s_branch {l1}")
    a.L(l0)
    make_mask(True)
    a.L(l1)
    pf.stamp("masks")
    if WO_TOUCH:
        lw0 = a.newlabel("k2_w0"); lw1 = a.newlabel("k2_w1")
        a.I("s_cmp_lt_u32 s22, 4")
        a.I(f"s_cbranch_scc1 {lw0}")
        a.I("s_waitcnt vmcnt(1)")
        a.I(f"s_branch {lw1}")
        a.L(lw0)
        a.I("s_waitcnt vmcnt(0)")
        a.L(lw1)
    else:
        a.I("s_waitcnt vmcnt(0)")
    a.I("s_barrier")
    q_swap(a, VQM)
    a.I(f"""
    s_and_b32 s44, s20, 1
    s_lshl_b32 s45, s44, 8
    s_add_u32 s45, s45, {WS_PQ}
    s_xor_b32 s46, s44, 1
    s_lshl_b32 s46, s46, 10
    s_add_u32 s46, s46, {WS_PQ}
    v_mov_b32 v{VPQT}, 0
    v_mov_b32 v{VPQT+1}, 0
    """)
    a.I(f"buffer_load_dwordx4 {v(VPQM,4)}, v10, s[16:19], s45 offen")
    a.I("s_mov_b32 exec_hi, 0")
    a.I(f"buffer_load_dwordx2 {v(VPQT,2)}, v9, s[16:19], s46 offen")
    a.I("s_mov_b32 exec_hi, -1")
    nokv = a.newlabel("k2_nokv")
    a.I("s_cmp_ge_u32 s22, 3")
    a.I(f"s_cbranch_scc1 {nokv}")
    a.I(f"""
    s_mul_i32 s40, s20, {3*NKB}
    s_add_u32 s40, s40, s22
    s_lshl_b32 s40, s40, 10
    s_add_u32 s40, s40, {WS_KVP}
    """)
    for i in range(NKB):
        a.I(f"buffer_load_dwordx4 {v(VR+4*i,4)}, v8, s[16:19], s40 offen")
        if i < NKB - 1: a.I("s_add_u32 s40, s40, 3072")
    a.L(nokv)
    pf.stamp("first")
    def rdK(i):
        a.I(f"ds_read_b64 {v(VKM[i&1],2)}, v{VAKM} offset:{LK + i*1280}")
        a.I(f"ds_read_b64 {v(VKM[i&1]+2,2)}, v{VAKM} offset:{LK + i*1280 + 512}")
        a.I(f"ds_read_b64 {v(VKT[i&1],2)}, v{VAKT} offset:{LK + i*1280 + 1024}")
    def rdV(i):
        a.I(f"s_mov_b32 exec_lo, {MASK20[0]:#x}")
        a.I(f"s_mov_b32 exec_hi, {MASK20[1]:#x}")
        a.I(f"ds_read_b128 {v(VV[0],4)}, v{VAV} offset:{i*1280}")
        a.I(f"ds_read_b128 {v(VV[1],4)}, v{VAV} offset:{i*1280 + 640}")
        a.I("s_mov_b64 exec, -1")
    def qk1(i, wn=0):
        S = VS[i & 1]
        a.I(f"s_waitcnt lgkmcnt({wn})")
        if i == 0 or i == 8:
            a.I(f"v_mfma_f32_32x32x16_bf16 {v(S,16)}, {v(VKM[i&1],4)}, {v(VQM,4)}, {v(VC,16)}")
        else:
            ln = a.newlabel("k2_neg"); lj = a.newlabel("k2_join")
            a.I(f"s_cmp_gt_u32 s27, {i}")
            a.I(f"s_cbranch_scc1 {ln}")
            a.I(f"v_mfma_f32_32x32x16_bf16 {v(S,16)}, {v(VKM[i&1],4)}, {v(VQM,4)}, 0")
            a.I(f"s_branch {lj}")
            a.L(ln)
            a.I(f"v_mfma_f32_32x32x16_bf16 {v(S,16)}, {v(VKM[i&1],4)}, {v(VQM,4)}, {v(VC,16)}")
            a.L(lj)
    def qk2(i):
        S = VS[i & 1]
        a.I(f"v_mfma_f32_32x32x8bf16_1k {v(S,16)}, {v(VKT[i&1],2)}, {v(VQT,2)}, {v(S,16)}")
    def qk(i, wn=0):
        qk1(i, wn); qk2(i)
    rdK(0); rdK(1); rdV(0)
    qk(0, 5)
    def a_reduce():
        a.I(f"s_waitcnt vmcnt({2*AI})")
        nokv2 = a.newlabel("k2_nokv2")
        a.I("s_cmp_ge_u32 s22, 3")
        a.I(f"s_cbranch_scc1 {nokv2}")
        for i in range(1, NKB):
            for k in range(4): a.I(f"v_add_f32 v{VR+k}, v{VR+k}, v{VR+4*i+k}")
        a.I(f"v_cvt_pk_bf16_f32 v{VR}, v{VR}, v{VR+1}")
        a.I(f"v_cvt_pk_bf16_f32 v{VR+1}, v{VR+2}, v{VR+3}")
        a.I(f"""
        s_lshl_b32 s41, s22, 3
        s_add_u32 s41, s41, {LKV}
        v_lshlrev_b32 v14, 4, v1
        v_add_u32 v14, s41, v14
        v_lshlrev_b32 v15, 3, v1
        v_add_u32 v15, {LKV + 1024}, v15
        s_cmp_eq_u32 s22, 2
        s_cselect_b64 s[46:47], -1, 0
        v_cndmask_b32 v14, v14, v15, s[46:47]
    """)
        a.I(f"ds_write_b64 v14, {v(VR,2)}")
        a.L(nokv2)
        q_swap(a, VPQM)

        a.I("s_waitcnt lgkmcnt(0)")
        a.I("s_barrier")
    def a_apply():
        AO = VR; AP = VR + 16
        a.I(f"v_lshlrev_b32 v14, 4, v1")
        a.I(f"v_lshlrev_b32 v15, 3, v1")
        a.I(f"ds_read_b128 {v(VKVM,4)}, v14 offset:{LKV}")
        a.I(f"ds_read_b64 {v(VKVT,2)}, v15 offset:{LKV+1024}")
        a.I(f"s_mov_b32 s43, {f2u(1e-6):#x}")
        a.I(f"s_mov_b32 s61, {WS_OA}")
        a.I("s_waitcnt lgkmcnt(0)")
        a.I(f"v_mfma_f32_32x32x16_bf16 {v(AO,16)}, {v(VKVM,4)}, {v(VPQM,4)}, 0")
        a.I(f"v_mfma_f32_32x32x8bf16_1k {v(AO,16)}, {v(VKVT,2)}, {v(VPQT,2)}, {v(AO,16)}")
    def a_store():
        normalize_store(a, VR, VR + 16, True, "s61")
    SPREAD = os.environ.get("K2_SPREAD", "1") == "1"
    for i in range(9):
        S = VS[i & 1]
        if i == 7:
            if os.environ.get("K2_XORMASK", "1") == "1":
                lr0 = a.newlabel("k2_m0"); lr1 = a.newlabel("k2_m1")
                a.I("s_cmp_eq_u32 s21, 0")
                a.I(f"s_cbranch_scc1 {lr0}")
                for r in range(16): a.I(f"v_xor_b32 v{VC+r}, {NEG_INF:#x}, v{VC+r}")
                a.I(f"s_branch {lr1}")
                a.L(lr0)
                make_mask(False)
                a.L(lr1)
            else:
                make_mask(False)
        if i == AI: a_apply()
        if i < 8 and not SPREAD:
            qk(i+1, 2)
            if i + 2 <= 8: rdK(i+2)
        if i == AI: a_store()
        for hfs in range(2):
            for k in range(8): a.I(f"v_exp_f32 v{S+8*hfs+k}, v{S+8*hfs+k}")
            if SPREAD and i < 8:
                if hfs == 0: qk1(i+1, 2)
                else:
                    qk2(i+1)
                    if i + 2 <= 8: rdK(i+2)
            for k in range(4): a.I(f"v_cvt_pk_bf16_f32 v{VP+4*hfs+k}, v{S+8*hfs+2*k}, v{S+8*hfs+2*k+1}")
            if hfs == 0: a.I(f"s_waitcnt lgkmcnt({(0 if SPREAD else 3) if i + 2 <= 8 else 0})")
            c = "0" if (i == 0 and hfs == 0) else v(VO,16)
            a.I(f"v_mfma_f32_32x32x16_bf16 {v(VO,16)}, {v(VV[hfs],4)}, {v(VP+4*hfs,4)}, {c}")
            if i < 8 and 2*i + hfs < 15: wdma(2*i + hfs)
        if i < 8: rdV(i+1)
        if i == AI - 1: a_reduce()
    pf.stamp("mainend")
    slow = a.newlabel("k2_slow"); fin = a.newlabel("k2_fin")
    def check():
        a.I(f"v_mov_b32 v9, 0")
        for i in range(12): a.I(f"v_fma_f32 v9, v{VO+i}, 0, v9")
        a.I(f"s_mov_b32 s50, {f2u(2.0**-64):#x}")
        a.I(f"s_mov_b32 s51, {f2u(2.0**64):#x}")
        a.I(f"v_cmp_nge_f32 s[52:53], v{VL}, s50")
        a.I(f"v_cmp_nle_f32 s[54:55], v{VL}, s51")
        a.I(f"v_cmp_u_f32 s[56:57], v9, v9")
        a.I("s_or_b64 s[52:53], s[52:53], s[54:55]")
        a.I("s_or_b64 s[52:53], s[52:53], s[56:57]")
        a.I("s_cmp_lg_u64 s[52:53], 0")
        if os.environ.get("FORCE_SLOW") == "1": a.I("s_cmp_eq_u32 s22, s22")
        a.I(f"s_cbranch_scc1 {slow}")
        a.L(fin)
    a.I(f"s_mov_b32 s60, {WS_OB}")
    normalize_store(a, VO, VP, False, "s60", 0, check)
    pf.stamp("bstore")
    projection_setup(a)
    a.I("s_waitcnt vmcnt(0)")
    a.I("s_barrier")
    lrest = a.newlabel("k23_rest"); lgo = a.newlabel("k23_go"); lto = a.newlabel("k23_touch")
    a.I("s_cmp_ge_u32 s22, 4")
    a.I(f"s_cbranch_scc1 {lto if O_TOUCH else lrest}")
    lnp = a.newlabel("k23_noflag")
    a.I("s_cmp_lg_u32 s22, 0")
    a.I(f"s_cbranch_scc1 {lnp}")
    a.I(f"""
    s_lshl_b32 s23, s21, 5
    s_add_u32 s23, s23, s20
    s_lshl_b32 s23, s23, {FLAG_SH}
    s_add_u32 s23, s23, {WS_FLAG}
    v_mov_b32 v8, s23
    v_mov_b32 v9, 1
    s_mov_b64 exec, 1
    """)
    a.I("buffer_store_dword v9, v8, s[16:19], 0 offen sc1")
    a.I("s_mov_b64 exec, -1")
    a.L(lnp)
    if not POLL_ALL:
        lnq = a.newlabel("k23_nopoll")
        a.I("s_cmp_lg_u32 s22, 0")
        a.I(f"s_cbranch_scc1 {lnq}")
    a.I(f"""
    s_lshr_b32 s23, s63, 1
    s_lshl_b32 s23, s23, {5 + FLAG_SH}
    s_add_u32 s23, s23, {WS_FLAG}
    v_and_b32 v8, 31, v1
    v_lshlrev_b32 v8, {FLAG_SH}, v8
    v_add_u32 v8, s23, v8
    s_mov_b32 s24, 0
    """)
    lp = a.newlabel("k23_poll"); lok = a.newlabel("k23_ok")
    a.L(lp)
    a.I("buffer_load_dword v9, v8, s[16:19], 0 offen sc1")
    a.I("s_add_u32 s24, s24, 1")
    a.I("s_waitcnt vmcnt(0)")
    a.I("v_cmp_ne_u32 s[46:47], 1, v9")
    a.I("s_cmp_eq_u64 s[46:47], 0")
    a.I(f"s_cbranch_scc1 {lok}")
    a.I(f"s_sleep {POLL_SLEEP}")
    a.I("s_cmp_lt_u32 s24, 0x8000")
    a.I(f"s_cbranch_scc1 {lp}")
    a.L(lok)
    if not POLL_ALL:
        a.L(lnq)
        a.I("s_barrier")
    pf.stamp("synced")
    projection(a, pf)
    if O_TOUCH:
        a.I(f"s_branch {lrest}")
        a.L(lto)
        a.I("s_barrier")
        a.I("s_cmp_eq_u32 s22, 7")
        a.I(f"s_cbranch_scc1 {lrest}")
        a.I(f"""
        s_lshr_b32 s23, s2, 3
        s_and_b32 s24, s23, 1
        s_lshr_b32 s23, s23, 2
        s_lshl_b32 s23, s23, 1
        s_add_u32 s23, s23, s24
        s_lshl_b32 s23, s23, 7
        s_lshr_b32 s24, s63, 1
        s_lshl_b32 s24, s24, 3
        s_add_u32 s23, s23, s24
        s_mul_i32 s23, s23, 1280
        s_add_u32 s23, s23, s33
        s_sub_u32 s32, s22, 4
        s_lshl_b32 s32, s32, 6
        v_add_u32 v13, s32, v1
        s_movk_i32 s34, 80
        v_cmp_le_u32 s[44:45], s34, v13
        v_mov_b32 v14, {81920 - 10240}
        v_cndmask_b32 v14, 0, v14, s[44:45]
        v_lshl_add_u32 v14, v13, 7, v14
        v_mov_b32 v15, {OOB:#x}
        s_movk_i32 s34, 160
        v_cmp_gt_u32 s[44:45], s34, v13
        v_cndmask_b32 v14, v15, v14, s[44:45]
        """)
        a.I("buffer_load_dword v16, v14, s[16:19], s23 offen sc1")
        a.I("s_waitcnt vmcnt(0)")
    a.L(lrest)
    if PROFILE: a.I("s_waitcnt vmcnt(0)")
    pf.finish(16, 22)
    a.I("s_endpgm")
    a.L(slow)
    a.I("s_waitcnt vmcnt(0)")
    S = VS[0]
    def slow_scores():
        lm = a.newlabel("k2s_m"); lf = a.newlabel("k2s_f"); ll = a.newlabel("k2s_l"); ln = a.newlabel("k2s_n"); lj = a.newlabel("k2s_j")
        a.I(f"s_mul_i32 s59, s58, 1280")
        a.I(f"v_add_u32 v9, s59, v{VAKM}")
        a.I(f"v_add_u32 v10, s59, v{VAKT}")
        a.I(f"ds_read_b64 {v(VKM[0],2)}, v9 offset:{LK}")
        a.I(f"ds_read_b64 {v(VKM[0]+2,2)}, v9 offset:{LK+512}")
        a.I(f"ds_read_b64 {v(VKT[0],2)}, v10 offset:{LK+1024}")
        a.I("s_cmp_eq_u32 s58, 8")
        a.I(f"s_cbranch_scc1 {ll}")
        a.I("s_cmp_gt_u32 s27, s58")
        a.I(f"s_cbranch_scc1 {ln}")
        a.I("s_cmp_eq_u32 s58, 0")
        a.I(f"s_cbranch_scc1 {lf}")
        for r in range(16): a.I(f"v_mov_b32 v{VC+r}, 0")
        a.I(f"s_branch {lj}")
        a.L(ln)
        for r in range(16): a.I(f"v_mov_b32 v{VC+r}, {NEG_INF:#x}")
        a.I(f"s_branch {lj}")
        a.L(lf)
        make_mask(True)
        a.I(f"s_branch {lj}")
        a.L(ll)
        make_mask(False)
        a.L(lj)
        a.I("s_waitcnt lgkmcnt(0)")
        a.I("s_nop 1")
        a.I(f"v_mfma_f32_32x32x16_bf16 {v(S,16)}, {v(VKM[0],4)}, {v(VQM,4)}, {v(VC,16)}")
        a.I(f"v_mfma_f32_32x32x8bf16_1k {v(S,16)}, {v(VKT[0],2)}, {v(VQT,2)}, {v(S,16)}")
        a.I("s_nop 15")
    VM = 13
    a.I(f"v_mov_b32 v{VM}, {NEG_INF:#x}")
    a.I("s_mov_b32 s58, 0")
    lp1 = a.newlabel("k2s_p1")
    a.L(lp1)
    slow_scores()
    for r in range(16): a.I(f"v_max_f32 v{VM}, v{VM}, v{S+r}")
    a.I("s_add_u32 s58, s58, 1")
    a.I("s_cmp_le_u32 s58, 8")
    a.I(f"s_cbranch_scc1 {lp1}")
    a.I(f"v_mov_b32 v9, v{VM}")
    a.I("s_nop 1")
    a.I(f"v_permlane32_swap_b32 v9, v{VM}")
    a.I("s_nop 1")
    a.I(f"v_max_f32 v{VM}, v{VM}, v9")
    for r in range(16): a.I(f"v_mov_b32 v{VO+r}, 0")
    a.I("s_mov_b32 s58, 0")
    lp2 = a.newlabel("k2s_p2")
    a.L(lp2)
    slow_scores()
    a.I(f"s_mul_i32 s59, s58, 1280")
    a.I(f"v_add_u32 v9, s59, v{VAV}")
    a.I(f"s_mov_b32 exec_lo, {MASK20[0]:#x}")
    a.I(f"s_mov_b32 exec_hi, {MASK20[1]:#x}")
    a.I(f"ds_read_b128 {v(VV[0],4)}, v9")
    a.I(f"ds_read_b128 {v(VV[1],4)}, v9 offset:640")
    a.I("s_mov_b64 exec, -1")
    for r in range(16): a.I(f"v_sub_f32 v{S+r}, v{S+r}, v{VM}")
    for r in range(16): a.I(f"v_exp_f32 v{S+r}, v{S+r}")
    a.I("s_nop 0")
    for k in range(8): a.I(f"v_cvt_pk_bf16_f32 v{VP+k}, v{S+2*k}, v{S+2*k+1}")
    a.I("s_waitcnt lgkmcnt(0)")
    a.I("s_nop 1")
    for hfs in range(2):
        a.I(f"v_mfma_f32_32x32x16_bf16 {v(VO,16)}, {v(VV[hfs],4)}, {v(VP+4*hfs,4)}, {v(VO,16)}")
    a.I("s_nop 15")
    a.I("s_add_u32 s58, s58, 1")
    a.I("s_cmp_le_u32 s58, 8")
    a.I(f"s_cbranch_scc1 {lp2}")
    a.I(f"v_cndmask_b32 v{VL}, v{VO+8}, v{VO+12}, s[38:39]")
    a.I("s_nop 1")
    a.I(f"s_branch {fin}")
    a.L(le)
    a.I("s_endpgm")
    a.raw(kd(name, K2_VGPRS))
```

```python
from common import *

LK = 0
LV = 16*1280
LKV = 32*1280
LW = 43008
LKF = LKV + 1536
K2_LDS = LW + 102400 + 512
VAKM=2; VAKT=3; VAV=4; VAO=5; VAOT=6; VL=7
VC=16; VS=(32,48); VO=64; VQM=80; VQT=84
VKM=(86,90); VKT=(94,96); VV=(98,102); VP=106
VPQM=114; VPQT=118; VKVM=120; VKVT=124
VR=128
K2_VGPRS=160
ODEP=10
V_OM=2; V_OT=3; V_T0=4; V_T1=5; V_OUT=6; V_OUT2=7; V_T1B=10; V_T2=11
V_RING=20; V_ACC=36; V_O=76; RING=4
def acc3(t, rt): return V_ACC + (t*2+rt)*4
def oreg(s_, rt): return V_O + ((s_ % ODEP)*2+rt)*4
POLL_SLEEP = int(os.environ.get('POLL_SLEEP', '8'))
WO_TOUCH = os.environ.get('WO_TOUCH', '0') == '1'
O_TOUCH = os.environ.get('O_TOUCH', '0') == '1'
POLL_ALL = os.environ.get('POLL_ALL', '1') == '1'
assert not (O_TOUCH and POLL_ALL)
SPLIT_FLAGS = os.environ.get('SPLIT_FLAGS', '1') == '1'
AI = int(os.environ.get('AI', '4'))
MASK20 = (0x000FFFFF, 0x000FFFFF)

def kappa_code(a, m, dst, tmp):
    a.I(f"""
    v_and_b32 v{dst}, 7, v{m}
    v_bfe_u32 v{tmp}, v{m}, 3, 1
    v_lshl_or_b32 v{dst}, v{tmp}, 4, v{dst}
    v_bfe_u32 v{tmp}, v{m}, 4, 1
    v_lshl_or_b32 v{dst}, v{tmp}, 3, v{dst}
    """)

def key_of_reg(r):
    s_, b, i = r >> 3, (r >> 2) & 1, r & 3
    return 16*b + 8*s_ + i

def normalize_store(a, O, P, add_eps, so, off=0, check=None):
    a.I(f"v_cndmask_b32 v{VL}, v{O+8}, v{O+12}, s[38:39]")
    if add_eps: a.I(f"v_add_f32 v{VL}, s43, v{VL}")
    if check: check()
    a.I(f"v_rcp_f32 v8, v{VL}")
    for i in range(12): a.I(f"v_mul_f32 v{O+i}, v8, v{O+i}")
    for i in range(6): a.I(f"v_cvt_pk_bf16_f32 v{P+i}, v{O+2*i}, v{O+2*i+1}")
    a.I(f"buffer_store_dwordx4 {v(P,4)}, v{VAO}, s[16:19], {so} offen offset:{off}{sfx(ST_K2)}")
    a.I(f"buffer_store_dwordx2 {v(P+4,2)}, v{VAOT}, s[16:19], {so} offen offset:{off}{sfx(ST_K2)}")

def out_addr(a, stile):
    a.I(f"""
    s_mul_i32 s36, {stile}, 1280
    v_lshlrev_b32 v14, 4, v1
    v_add_u32 v{VAO}, s36, v14
    v_lshlrev_b32 v14, 3, v12
    v_add_u32 v14, s36, v14
    v_add_u32 v14, 1024, v14
    v_mov_b32 v15, {OOB:#x}
    v_cndmask_b32 v{VAOT}, v15, v14, s[38:39]
    """)

def q_addr(a, dst):
    a.I(f"""
    v_and_b32 v13, 15, v1
    v_lshlrev_b32 v13, 4, v13
    v_bfe_u32 v14, v1, 4, 1
    v_lshl_add_u32 v13, v14, 3, v13
    v_lshl_add_u32 v13, v11, 8, v13
    v_add_u32 v{dst}, s36, v13
    """)

def q_addr4(a, dst, dst_t):
    a.I(f"""
    v_and_b32 v13, 15, v1
    v_lshlrev_b32 v13, 4, v13
    v_add_u32 v13, s36, v13
    v_bfe_u32 v14, v1, 4, 1
    v_lshl_add_u32 v{dst_t}, v14, 3, v13
    v_lshl_add_u32 v13, v14, 9, v13
    v_lshl_add_u32 v{dst}, v11, 8, v13
    """)
def q_swap(a, r):
    a.I(f"v_permlane16_swap_b32 v{r}, v{r+2}")
    a.I(f"v_permlane16_swap_b32 v{r+1}, v{r+3}")

def projection_setup(a):
    a.I(f"""
    s_lshl_b32 s31, s63, 2
    s_add_u32 s31, s31, s22
    s_mul_i32 s32, s31, 1280
    s_cmp_eq_u32 s62, 0
    s_mov_b32 s33, {WS_OA}
    s_mov_b32 s34, {WS_OB}
    s_cselect_b32 s33, s33, s34
    s_add_u32 s32, s32, s33
    v_lshrrev_b32 v18, 4, v1
    v_and_b32 v19, 15, v1
    v_lshrrev_b32 v16, 1, v18
    v_mul_u32_u24 v16, 81920, v16
    v_and_b32 v17, 1, v18
    v_lshl_add_u32 v16, v17, 9, v16
    v_lshl_add_u32 v16, v19, 4, v16
    v_add_u32 v{V_OM}, s32, v16
    v_mul_u32_u24 v16, {2*81920}, v18
    v_lshl_add_u32 v16, v19, 3, v16
    v_add_u32 v16, s32, v16
    v_add_u32 v{V_OT}, 1024, v16
    """)
    a.I(f"""
    v_lshrrev_b32 v18, 5, v1
    v_lshlrev_b32 v18, 4, v18
    v_bfe_u32 v19, v1, 4, 1
    v_lshl_add_u32 v18, v19, 2, v18
    v_bfe_u32 v19, v1, 2, 2
    v_add_u32 v18, v18, v19
    v_mul_u32_u24 v18, 160, v18
    v_and_b32 v19, 3, v1
    v_lshl_add_u32 v18, v19, 3, v18
    v_add_u32 v{V_T0}, {LW}, v18
    v_add_u32 v{V_T2}, {16*5120}, v{V_T0}
    v_lshrrev_b32 v18, 4, v1
    v_and_b32 v19, 15, v1
    s_lshl_b32 s41, s31, 5
    v_add_u32 v19, s41, v19
    v_mul_u32_u24 v19, 2560, v19
    s_mul_i32 s42, s62, 1280
    s_add_u32 s42, s42, s73
    v_add_u32 v19, s42, v19
    v_and_b32 v16, 1, v18
    v_lshlrev_b32 v16, 5, v16
    v_lshrrev_b32 v17, 1, v18
    v_lshl_add_u32 v16, v17, 4, v16
    v_add_u32 v{V_OUT}, v19, v16
    v_lshl_add_u32 v{V_OUT2}, v18, 3, v19
    s_mov_b32 s43, {16*2560}
    """)

def projection(a, pf):
    vm = VmTrack()
    R3 = os.environ.get("K23_R3", "0") == "1"
    a.I(f"s_lshl_b32 s84, s72, 1")
    if not R3: a.I("s_mov_b32 s84, 0")
    a.I("s_mov_b32 s85, s84")
    def ops_o(s_):
        out = []
        if s_ < 16:
            for rt in range(2):
                t = ["s_mul_i32 s40, s84, 163840", "s_add_u32 s84, s84, 1", "s_and_b32 s84, s84, 15"] if rt == 0 else []
                t.append(f"buffer_load_dwordx4 {v(oreg(s_,rt),4)}, v{V_OM}, s[16:19], s40 offen offset:{rt*256} sc1")
                out.append((t, ("O", s_)))
        else:
            for u in range(2):
                for rt in range(2):
                    t = [f"s_mov_b32 s40, {(s_-16)*655360 + u*81920}"] if rt == 0 else []
                    t.append(f"buffer_load_dwordx2 {v(oreg(s_,rt)+2*u,2)}, v{V_OT}, s[16:19], s40 offen offset:{rt*128} sc1")
                    out.append((t, ("O", s_)))
        return out
    def emit_op(op):
        for t in op[0]: a.I(t)
        vm.add(op[1])
    NPRE = min(ODEP, int(os.environ.get("K3_NPRE", "8")))
    for s_ in range(NPRE):
        for op in ops_o(s_): emit_op(op)
    pending = []
    for s_ in range(NPRE, 20): pending += ops_o(s_)
    def free(op, done_steps):
        return op[1][1] - ODEP < done_steps
    pf.stamp("o_issued")
    def issue_tr(n):
        s_, t = divmod(n, 5)
        r = V_RING + (n % RING)*4
        if s_ < 16:
            base = V_T1 if (s_ & 1) else V_T1B
            if t == 0:
                a.I("s_mul_i32 s41, s85, 5120")
                a.I("s_add_u32 s85, s85, 1")
                a.I("s_and_b32 s85, s85, 15")
                a.I(f"v_add_u32 v{base}, s41, v{V_T0}")
            off = 32*t
        else:
            base = V_T2; off = (s_ - 16)*5120 + 32*t
        a.I(f"ds_read_b64_tr_b16 {v(r,2)}, v{base} offset:{off}")
        a.I(f"ds_read_b64_tr_b16 {v(r+2,2)}, v{base} offset:{off+1280}")
    NT = 100
    for n in range(RING-1): issue_tr(n)
    for n in range(NT):
        s_, t = divmod(n, 5)
        if n in (0, 40): pf.stamp(f"p{n}")
        if t == 0:
            while pending and pending[0][1][1] <= s_:
                assert free(pending[0], s_)
                emit_op(pending.pop(0))
            nw_, _ = vm.wait_n(lambda x: x == ("O", s_))
            a.I(f"s_waitcnt vmcnt({nw_})")
        m = n + RING - 1
        if m < NT:
            issue_tr(m)
            a.I(f"s_waitcnt lgkmcnt({2*(RING-1)})")
        else:
            a.I(f"s_waitcnt lgkmcnt({2*(NT-1-n)})")
        wf = v(V_RING + (n % RING)*4, 4)
        for rt in range(2):
            d = v(acc3(t, rt), 4)
            c = "0" if s_ == 0 else d
            a.I(f"v_mfma_f32_16x16x32_bf16 {d}, {wf}, {v(oreg(s_,rt),4)}, {c}")
        if pending and free(pending[0], (n + 1) // 5): emit_op(pending.pop(0))
    pf.stamp("pend")
    P = V_O
    def epi(sf):
        for rt in range(2):
            so = "s43" if rt else "0"
            for pr in range(2):
                p = P + rt*12 + pr*4
                for k, t in enumerate((2*pr, 2*pr+1)):
                    r = acc3(t, rt)
                    a.I(f"v_cvt_pk_bf16_f32 v{p+2*k}, v{r}, v{r+1}")
                    a.I(f"v_cvt_pk_bf16_f32 v{p+2*k+1}, v{r+2}, v{r+3}")
                a.I(f"v_permlane16_swap_b32 v{p}, v{p+2}")
                a.I(f"v_permlane16_swap_b32 v{p+1}, v{p+3}")
                a.I(f"buffer_store_dwordx4 {v(p,4)}, v{V_OUT}, s[12:15], {so} offen offset:{pr*64}{sfx(sf)}")
            p = P + rt*12 + 8
            r = acc3(4, rt)
            a.I(f"v_cvt_pk_bf16_f32 v{p}, v{r}, v{r+1}")
            a.I(f"v_cvt_pk_bf16_f32 v{p+1}, v{r+2}, v{r+3}")
            a.I(f"buffer_store_dwordx2 {v(p,2)}, v{V_OUT2}, s[12:15], {so} offen offset:128{sfx(sf)}")
    sfa = os.environ.get("ST_K3A", ST_K3)
    if sfa != ST_K3:
        lb = a.newlabel("k23_epb"); le_ = a.newlabel("k23_epe")
        a.I("s_cmp_lg_u32 s62, 0")
        a.I(f"s_cbranch_scc1 {lb}")
        epi(sfa)
        a.I(f"s_branch {le_}")
        a.L(lb)
        epi(ST_K3)
        a.L(le_)
    else:
        epi(ST_K3)

def helper_wave(a, pf):
    V_WM = 16; VR = 32
    a.I(f"""
    s_sub_u32 s22h, s22, 8
    s_mul_i32 s30, s25, 1280
    s_mul_i32 s31, s24, 1280
    s_bitcmp1_b32 s22h, 0
    s_cselect_b32 s34, s31, s30
    s_mov_b32 s35, {WS_KB}
    s_mov_b32 s37, {WS_VB}
    s_cmp_ge_u32 s22h, 2
    s_cselect_b32 s35, s37, s35
    s_add_u32 s34, s34, s35
    s_mul_i32 s33, s22h, 10240
    """.replace("s22h", "s82"))
    for j in range(10):
        a.I(f"s_add_u32 m0, s33, {j*1024}")
        a.I("buffer_load_dwordx4 v8, s[16:19], s34 offen lds")
        if j < 9: a.I("s_add_u32 s34, s34, 1024")
    pf.stamp("h_issued")
    lz = a.newlabel("k23_hz")
    a.I("s_cmp_lg_u32 s82, 0")
    a.I(f"s_cbranch_scc1 {lz}")
    for k in range(4): a.I(f"v_mov_b32 v{VR+k}, 0")
    a.I(f"v_mov_b32 v14, {LKF}")
    a.I(f"ds_write_b128 v14, {v(VR,4)}")
    a.L(lz)
    a.I("""
    s_cmp_eq_u32 s62, 0
    s_cselect_b32 s74, 8, 4
    s_cselect_b32 s75, 4, 20
    """)
    for q in range(5):
        a.I(f"""
        v_add_u32 v2, {64*q}, v1
        v_mul_u32_u24 v3, 6554, v2
        v_lshrrev_b32 v3, 16, v3
        v_mul_u32_u24 v4, 10, v3
        v_sub_u32 v4, v2, v4
        v_lshlrev_b32 v4, 4, v4
        v_add_u32 v4, s73, v4
        v_lshrrev_b32 v5, 4, v3
        v_mul_u32_u24 v6, s74, v5
        v_add_u32 v6, v6, v3
        v_mul_u32_u24 v6, 1280, v6
        v_add_u32 v{V_WM+q}, v6, v4
        v_lshlrev_b32 v5, 1, v5
        v_bfe_u32 v6, v3, 2, 1
        v_add_u32 v5, v5, v6
        v_mul_u32_u24 v5, 40, v5
        v_bfe_u32 v6, v3, 3, 1
        v_mul_u32_u24 v6, s75, v6
        v_add_u32 v5, v5, v6
        v_and_b32 v6, 3, v3
        v_add3_u32 v5, v5, v6, 16
        v_mul_u32_u24 v5, 1280, v5
        v_add_u32 v{V_WM+5+q}, v5, v4
        """)
    a.I("s_waitcnt vmcnt(0) lgkmcnt(0)")
    a.I("s_barrier")
    nokv = a.newlabel("k23_nokv")
    a.I("s_cmp_ge_u32 s82, 3")
    a.I(f"s_cbranch_scc1 {nokv}")
    a.I(f"""
    s_mul_i32 s40, s20, {3*NKB}
    s_add_u32 s40, s40, s82
    s_lshl_b32 s40, s40, 10
    s_add_u32 s40, s40, {WS_KVP}
    """)
    for i in range(NKB):
        a.I(f"buffer_load_dwordx4 {v(VR+4*i,4)}, v8, s[16:19], s40 offen")
        if i < NKB - 1: a.I("s_add_u32 s40, s40, 3072")
    for i in range(1, NKB):
        a.I(f"s_waitcnt vmcnt({NKB-1-i})")
        for k in range(4): a.I(f"v_add_f32 v{VR+k}, v{VR+k}, v{VR+4*i+k}")
    a.I(f"v_cvt_pk_bf16_f32 v{VR}, v{VR}, v{VR+1}")
    a.I(f"v_cvt_pk_bf16_f32 v{VR+1}, v{VR+2}, v{VR+3}")
    a.I(f"""
    s_lshl_b32 s41, s82, 3
    s_add_u32 s41, s41, {LKV}
    v_add_u32 v14, s41, v8
    v_lshlrev_b32 v15, 3, v1
    v_add_u32 v15, {LKV + 1024}, v15
    s_cmp_eq_u32 s82, 2
    s_cselect_b64 s[46:47], -1, 0
    v_cndmask_b32 v14, v14, v15, s[46:47]
    """)
    a.I(f"ds_write_b64 v14, {v(VR,2)}")
    a.I(f"""
    s_lshl_b32 s41, s82, 2
    s_add_u32 s41, s41, {LKF}
    v_mov_b32 v14, s41
    v_mov_b32 v15, 1
    """)
    a.I("s_waitcnt lgkmcnt(0)")
    a.I("ds_write_b32 v14, v15")
    a.L(nokv)
    pf.stamp("h_kv")
    a.I(f"""
    s_mul_i32 s76, s82, 51200
    s_mul_i32 s78, s82, 204800
    s_mul_i32 s79, s82, 5120
    s_add_u32 s79, s79, {LW}
    """)
    for g in range(5):
        for q in range(5):
            a.I(f"s_add_u32 m0, s79, {g*4*5120 + q*1024}")
            if g < 4:
                if q == 0 and g > 0: a.I(f"s_add_u32 s76, s76, {4*51200}")
                a.I(f"buffer_load_dwordx4 v{V_WM+q}, s[8:11], s76 offen lds")
            else:
                a.I(f"buffer_load_dwordx4 v{V_WM+5+q}, s[8:11], s78 offen lds")
    pf.stamp("h_wo")
    if SPLIT_FLAGS:
        lnf = a.newlabel("k23_hnf"); lp = a.newlabel("k23_hp"); lok = a.newlabel("k23_hok")
        a.I("s_cmp_lg_u32 s82, 3")
        a.I(f"s_cbranch_scc1 {lnf}")
        a.I(f"v_mov_b32 v14, {LKF + 12}")
        a.I("s_mov_b32 s24, 0")
        a.L(lp)
        a.I("ds_read_b32 v15, v14")
        a.I("s_add_u32 s24, s24, 1")
        a.I("s_waitcnt lgkmcnt(0)")
        a.I("v_cmp_ne_u32 s[46:47], 8, v15")
        a.I("s_cmp_eq_u64 s[46:47], 0")
        a.I(f"s_cbranch_scc1 {lok}")
        a.I("s_sleep 1")
        a.I("s_cmp_lt_u32 s24, 0x100000")
        a.I(f"s_cbranch_scc1 {lp}")
        a.L(lok)
        a.I(f"""
        s_lshl_b32 s23, s21, 5
        s_add_u32 s23, s23, s20
        s_add_u32 s23, s23, 256
        s_lshl_b32 s23, s23, {FLAG_SH}
        s_add_u32 s23, s23, {WS_FLAG}
        v_mov_b32 v14, s23
        v_mov_b32 v15, 1
        s_mov_b64 exec, 1
        """)
        a.I("buffer_store_dword v15, v14, s[16:19], 0 offen sc1")
        a.I("s_mov_b64 exec, -1")
        a.L(lnf)
    a.I("s_waitcnt vmcnt(0) lgkmcnt(0)")
    a.I("s_barrier")
    pf.finish(16, 22)
    a.I("s_endpgm")

def gen_k2(a, name):
    a.raw(f".globl {name}\n.p2align 8\n.type {name},@function")
    a.L(name)
    le = a.newlabel("k2_end")
    a.I("s_cmp_ge_u32 s2, 256")
    a.I(f"s_cbranch_scc1 {le}")
    pf = Prof(a, 1); pf.start()
    a.I("s_load_dwordx2 s[28:29], s[0:1], 64")
    a.I("s_load_dwordx4 s[4:7], s[0:1], 40")
    a.I("s_load_dwordx2 s[12:13], s[0:1], 16")
    a.I("""
    s_and_b32 s3, s2, 7
    s_lshr_b32 s30, s2, 3
    s_lshr_b32 s62, s3, 2
    s_and_b32 s63, s3, 3
    s_lshl_b32 s63, s63, 2
    s_and_b32 s23, s30, 3
    s_add_u32 s63, s63, s23
    s_lshr_b32 s72, s30, 2
    """)
    a.I("""
    s_mov_b32 s3, s2
    s_and_b32 s20, s3, 7
    s_lshr_b32 s23, s3, 6
    s_lshl_b32 s23, s23, 3
    s_add_u32 s20, s20, s23
    s_lshr_b32 s21, s3, 3
    s_and_b32 s21, s21, 7
    v_lshrrev_b32 v12, 6, v0
    v_and_b32 v1, 63, v0
    """)
    a.I("v_readfirstlane_b32 s22, v12")
    a.I("""
    s_lshl_b32 s24, s20, 6
    s_lshl_b32 s23, s21, 3
    s_add_u32 s24, s24, s23
    s_cmp_eq_u32 s21, 0
    s_cselect_b32 s23, 0, 8
    s_sub_u32 s25, s24, s23
    s_add_u32 s26, s24, s22
    v_lshlrev_b32 v8, 4, v1
    v_lshrrev_b32 v11, 5, v1
    v_and_b32 v12, 31, v1
    s_mul_i32 s36, s26, 1280
    """)
    q_addr4(a, 10, 9)
    a.I("s_waitcnt lgkmcnt(0)")
    pf.stamp('kernarg')
    srd(a, 16, 28, 29, WS_REC, WS0)
    a.I("s_cmp_eq_u32 s62, 0")
    a.I("s_cselect_b32 s4, s12, s4")
    a.I("s_cselect_b32 s5, s13, s5")
    srd(a, 8, 4, 5, 819200)
    srd(a, 12, 6, 7, 5242880)
    a.I("s_mul_i32 s73, s72, 160")
    lh = a.newlabel("k23_attn")
    n0 = (pf.n, list(pf.names))
    a.I("s_cmp_lt_u32 s22, 8")
    a.I(f"s_cbranch_scc1 {lh}")
    helper_wave(a, pf)
    pf.n, pf.names = n0[0], list(n0[1])
    a.L(lh)
    a.I(f"v_mov_b32 v{VQT}, 0")
    a.I(f"v_mov_b32 v{VQT+1}, 0")
    a.I(f"buffer_load_dwordx4 {v(VQM,4)}, v10, s[16:19], 0 offen")
    a.I("s_mov_b32 exec_hi, 0")
    a.I(f"buffer_load_dwordx2 {v(VQT,2)}, v9, s[16:19], 0 offen offset:1024")
    a.I("s_mov_b32 exec_hi, -1")
    pf.stamp("issued")
    a.I("v_cmp_gt_u32 s[38:39], 32, v1")
    kappa_code(a, 12, 13, 14)
    a.I(f"""
    s_mul_i32 s41, s22, 1280
    v_and_b32 v14, 15, v13
    v_lshlrev_b32 v14, 4, v14
    v_lshrrev_b32 v15, 4, v13
    v_lshl_add_u32 v14, v15, 3, v14
    v_add_u32 v{VAKT}, s41, v14
    v_lshl_add_u32 v{VAKM}, v11, 8, v{VAKT}
    """)
    a.I(f"""
    v_mul_u32_u24 v15, 320, v11
    v_lshl_add_u32 v14, v12, 4, v15
    s_add_u32 s41, s41, {LV}
    v_add_u32 v{VAV}, s41, v14
    """)
    out_addr(a, "s26")
    for k in range(8): a.I(f"v_mov_b32 v{VV[0]+k}, 0x3f803f80")
    def make_mask(first):
        a.I(f"""
        v_lshlrev_b32 v14, 2, v11
        v_sub_u32 v14, v12, v14
        v_mov_b32 v15, {NEG_INF:#x}
        """)
        for r in range(16):
            pr = 46 + 2*(r & 1)
            a.I(f"v_cmp_gt_i32 s[{pr}:{pr+1}], {key_of_reg(r)}, v14")
            if first: a.I(f"v_cndmask_b32 v{VC+r}, v15, 0, s[{pr}:{pr+1}]")
            else:     a.I(f"v_cndmask_b32 v{VC+r}, 0, v15, s[{pr}:{pr+1}]")
    l0 = a.newlabel("k2_r0"); l1 = a.newlabel("k2_r1")
    a.I("s_mov_b32 s27, 0")
    a.I("s_cmp_lg_u32 s21, 0")
    a.I(f"s_cbranch_scc1 {l0}")
    a.I("s_sub_u32 s27, 8, s22")
    for r in range(16): a.I(f"v_mov_b32 v{VC+r}, {NEG_INF:#x}")
    a.I(f"s_branch {l1}")
    a.L(l0)
    make_mask(True)
    a.L(l1)
    pf.stamp("masks")
    a.I("s_waitcnt vmcnt(0)")
    a.I("s_barrier")
    q_swap(a, VQM)
    a.I(f"""
    s_and_b32 s44, s20, 1
    s_lshl_b32 s45, s44, 8
    s_add_u32 s45, s45, {WS_PQ}
    s_xor_b32 s46, s44, 1
    s_lshl_b32 s46, s46, 10
    s_add_u32 s46, s46, {WS_PQ}
    v_mov_b32 v{VPQT}, 0
    v_mov_b32 v{VPQT+1}, 0
    """)
    a.I(f"buffer_load_dwordx4 {v(VPQM,4)}, v10, s[16:19], s45 offen")
    a.I("s_mov_b32 exec_hi, 0")
    a.I(f"buffer_load_dwordx2 {v(VPQT,2)}, v9, s[16:19], s46 offen")
    a.I("s_mov_b32 exec_hi, -1")
    pf.stamp("first")
    def rdK(i):
        a.I(f"ds_read_b64 {v(VKM[i&1],2)}, v{VAKM} offset:{LK + i*1280}")
        a.I(f"ds_read_b64 {v(VKM[i&1]+2,2)}, v{VAKM} offset:{LK + i*1280 + 512}")
        a.I(f"ds_read_b64 {v(VKT[i&1],2)}, v{VAKT} offset:{LK + i*1280 + 1024}")
    def rdV(i):
        a.I(f"s_mov_b32 exec_lo, {MASK20[0]:#x}")
        a.I(f"s_mov_b32 exec_hi, {MASK20[1]:#x}")
        a.I(f"ds_read_b128 {v(VV[0],4)}, v{VAV} offset:{i*1280}")
        a.I(f"ds_read_b128 {v(VV[1],4)}, v{VAV} offset:{i*1280 + 640}")
        a.I("s_mov_b64 exec, -1")
    def qk1(i, wn=0):
        S = VS[i & 1]
        a.I(f"s_waitcnt lgkmcnt({wn})")
        if i == 0 or i == 8:
            a.I(f"v_mfma_f32_32x32x16_bf16 {v(S,16)}, {v(VKM[i&1],4)}, {v(VQM,4)}, {v(VC,16)}")
        else:
            ln = a.newlabel("k2_neg"); lj = a.newlabel("k2_join")
            a.I(f"s_cmp_gt_u32 s27, {i}")
            a.I(f"s_cbranch_scc1 {ln}")
            a.I(f"v_mfma_f32_32x32x16_bf16 {v(S,16)}, {v(VKM[i&1],4)}, {v(VQM,4)}, 0")
            a.I(f"s_branch {lj}")
            a.L(ln)
            a.I(f"v_mfma_f32_32x32x16_bf16 {v(S,16)}, {v(VKM[i&1],4)}, {v(VQM,4)}, {v(VC,16)}")
            a.L(lj)
    def qk2(i):
        S = VS[i & 1]
        a.I(f"v_mfma_f32_32x32x8bf16_1k {v(S,16)}, {v(VKT[i&1],2)}, {v(VQT,2)}, {v(S,16)}")
    def qk(i, wn=0):
        qk1(i, wn); qk2(i)
    rdK(0); rdK(1); rdV(0)
    qk(0, 5)
    def a_apply():
        AO = VR
        a.I("s_waitcnt vmcnt(0)")
        q_swap(a, VPQM)
        lp = a.newlabel("k23_kvw"); lok = a.newlabel("k23_kvok")
        a.I(f"v_mov_b32 v14, {LKF}")
        a.I("s_mov_b32 s24, 0")
        a.L(lp)
        a.I(f"ds_read_b128 {v(AO,4)}, v14")
        a.I("s_add_u32 s24, s24, 1")
        a.I("s_waitcnt lgkmcnt(0)")
        a.I(f"v_and_b32 v{AO}, v{AO}, v{AO+1}")
        a.I(f"v_and_b32 v{AO}, v{AO}, v{AO+2}")
        a.I(f"v_cmp_ne_u32 s[46:47], 1, v{AO}")
        a.I("s_cmp_eq_u64 s[46:47], 0")
        a.I(f"s_cbranch_scc1 {lok}")
        a.I("s_cmp_lt_u32 s24, 0x100000")
        a.I(f"s_cbranch_scc1 {lp}")
        a.L(lok)
        a.I(f"v_lshlrev_b32 v14, 4, v1")
        a.I(f"v_lshlrev_b32 v15, 3, v1")
        a.I(f"ds_read_b128 {v(VKVM,4)}, v14 offset:{LKV}")
        a.I(f"ds_read_b64 {v(VKVT,2)}, v15 offset:{LKV+1024}")
        a.I(f"s_mov_b32 s43, {f2u(1e-6):#x}")
        a.I(f"s_mov_b32 s61, {WS_OA}")
        a.I("s_waitcnt lgkmcnt(0)")
        a.I(f"v_mfma_f32_32x32x16_bf16 {v(AO,16)}, {v(VKVM,4)}, {v(VPQM,4)}, 0")
        a.I(f"v_mfma_f32_32x32x8bf16_1k {v(AO,16)}, {v(VKVT,2)}, {v(VPQT,2)}, {v(AO,16)}")
    def a_store():
        normalize_store(a, VR, VR + 16, True, "s61")
    SPREAD = os.environ.get("K2_SPREAD", "1") == "1"
    for i in range(9):
        S = VS[i & 1]
        if i == 7:
            if os.environ.get("K2_XORMASK", "1") == "1":
                lr0 = a.newlabel("k2_m0"); lr1 = a.newlabel("k2_m1")
                a.I("s_cmp_eq_u32 s21, 0")
                a.I(f"s_cbranch_scc1 {lr0}")
                for r in range(16): a.I(f"v_xor_b32 v{VC+r}, {NEG_INF:#x}, v{VC+r}")
                a.I(f"s_branch {lr1}")
                a.L(lr0)
                make_mask(False)
                a.L(lr1)
            else:
                make_mask(False)
        if i == AI: a_apply()
        if i < 8 and not SPREAD:
            qk(i+1, 2)
            if i + 2 <= 8: rdK(i+2)
        if i == AI: a_store()
        for hfs in range(2):
            for k in range(8): a.I(f"v_exp_f32 v{S+8*hfs+k}, v{S+8*hfs+k}")
            if SPREAD and i < 8:
                if hfs == 0: qk1(i+1, 2)
                else:
                    qk2(i+1)
                    if i + 2 <= 8: rdK(i+2)
            for k in range(4): a.I(f"v_cvt_pk_bf16_f32 v{VP+4*hfs+k}, v{S+8*hfs+2*k}, v{S+8*hfs+2*k+1}")
            if hfs == 0: a.I(f"s_waitcnt lgkmcnt({(0 if SPREAD else 3) if i + 2 <= 8 else 0})")
            c = "0" if (i == 0 and hfs == 0) else v(VO,16)
            a.I(f"v_mfma_f32_32x32x16_bf16 {v(VO,16)}, {v(VV[hfs],4)}, {v(VP+4*hfs,4)}, {c}")
        if i < 8: rdV(i+1)
        if SPLIT_FLAGS and i == 8:
            a.I("s_waitcnt vmcnt(0)")
            a.I(f"v_mov_b32 v14, {LKF + 12}")
            a.I("v_mov_b32 v15, 1")
            a.I("s_mov_b64 exec, 1")
            a.I("ds_add_u32 v14, v15")
            a.I("s_mov_b64 exec, -1")
            a.I("s_waitcnt lgkmcnt(0)")
    pf.stamp("mainend")
    slow = a.newlabel("k2_slow"); fin = a.newlabel("k2_fin")
    def check():
        a.I(f"v_mov_b32 v9, 0")
        for i in range(12): a.I(f"v_fma_f32 v9, v{VO+i}, 0, v9")
        a.I(f"s_mov_b32 s50, {f2u(2.0**-64):#x}")
        a.I(f"s_mov_b32 s51, {f2u(2.0**64):#x}")
        a.I(f"v_cmp_nge_f32 s[52:53], v{VL}, s50")
        a.I(f"v_cmp_nle_f32 s[54:55], v{VL}, s51")
        a.I(f"v_cmp_u_f32 s[56:57], v9, v9")
        a.I("s_or_b64 s[52:53], s[52:53], s[54:55]")
        a.I("s_or_b64 s[52:53], s[52:53], s[56:57]")
        a.I("s_cmp_lg_u64 s[52:53], 0")
        if os.environ.get("FORCE_SLOW") == "1": a.I("s_cmp_eq_u32 s22, s22")
        a.I(f"s_cbranch_scc1 {slow}")
        a.L(fin)
    a.I(f"s_mov_b32 s60, {WS_OB}")
    normalize_store(a, VO, VP, False, "s60", 0, check)
    pf.stamp("bstore")
    projection_setup(a)
    a.I("s_waitcnt vmcnt(0)")
    a.I("s_barrier")
    lrest = a.newlabel("k23_rest"); lgo = a.newlabel("k23_go"); lto = a.newlabel("k23_touch")
    a.I("s_cmp_ge_u32 s22, 4")
    a.I(f"s_cbranch_scc1 {lrest}")
    lnp = a.newlabel("k23_noflag")
    a.I("s_cmp_lg_u32 s22, 0")
    a.I(f"s_cbranch_scc1 {lnp}")
    a.I(f"""
    s_lshl_b32 s23, s21, 5
    s_add_u32 s23, s23, s20
    s_lshl_b32 s23, s23, {FLAG_SH}
    s_add_u32 s23, s23, {WS_FLAG}
    v_mov_b32 v8, s23
    v_mov_b32 v9, 1
    s_mov_b64 exec, 1
    """)
    a.I("buffer_store_dword v9, v8, s[16:19], 0 offen sc1")
    a.I("s_mov_b64 exec, -1")
    a.L(lnp)
    if not POLL_ALL:
        lnq = a.newlabel("k23_nopoll")
        a.I("s_cmp_lg_u32 s22, 0")
        a.I(f"s_cbranch_scc1 {lnq}")
    a.I(f"""
    s_lshr_b32 s23, s63, 1
    s_xor_b32 s24, s62, 1
    s_mul_i32 s24, s24, {8 if SPLIT_FLAGS else 0}
    s_add_u32 s23, s23, s24
    s_lshl_b32 s23, s23, {5 + FLAG_SH}
    s_add_u32 s23, s23, {WS_FLAG}
    v_and_b32 v8, 31, v1
    v_lshlrev_b32 v8, {FLAG_SH}, v8
    v_add_u32 v8, s23, v8
    s_mov_b32 s24, 0
    """)
    lp = a.newlabel("k23_poll"); lok = a.newlabel("k23_ok")
    a.L(lp)
    a.I("buffer_load_dword v9, v8, s[16:19], 0 offen sc1")
    a.I("s_add_u32 s24, s24, 1")
    a.I("s_waitcnt vmcnt(0)")
    a.I("v_cmp_ne_u32 s[46:47], 1, v9")
    a.I("s_cmp_eq_u64 s[46:47], 0")
    a.I(f"s_cbranch_scc1 {lok}")
    a.I(f"s_sleep {POLL_SLEEP}")
    a.I("s_cmp_lt_u32 s24, 0x8000")
    a.I(f"s_cbranch_scc1 {lp}")
    a.L(lok)
    if not POLL_ALL:
        a.L(lnq)
        a.I("s_barrier")
    pf.stamp("synced")
    projection(a, pf)
    a.L(lrest)
    if PROFILE: a.I("s_waitcnt vmcnt(0)")
    pf.finish(16, 22)
    a.I("s_endpgm")
    a.L(slow)
    a.I("s_waitcnt vmcnt(0)")
    S = VS[0]
    def slow_scores():
        lm = a.newlabel("k2s_m"); lf = a.newlabel("k2s_f"); ll = a.newlabel("k2s_l"); ln = a.newlabel("k2s_n"); lj = a.newlabel("k2s_j")
        a.I(f"s_mul_i32 s59, s58, 1280")
        a.I(f"v_add_u32 v9, s59, v{VAKM}")
        a.I(f"v_add_u32 v10, s59, v{VAKT}")
        a.I(f"ds_read_b64 {v(VKM[0],2)}, v9 offset:{LK}")
        a.I(f"ds_read_b64 {v(VKM[0]+2,2)}, v9 offset:{LK+512}")
        a.I(f"ds_read_b64 {v(VKT[0],2)}, v10 offset:{LK+1024}")
        a.I("s_cmp_eq_u32 s58, 8")
        a.I(f"s_cbranch_scc1 {ll}")
        a.I("s_cmp_gt_u32 s27, s58")
        a.I(f"s_cbranch_scc1 {ln}")
        a.I("s_cmp_eq_u32 s58, 0")
        a.I(f"s_cbranch_scc1 {lf}")
        for r in range(16): a.I(f"v_mov_b32 v{VC+r}, 0")
        a.I(f"s_branch {lj}")
        a.L(ln)
        for r in range(16): a.I(f"v_mov_b32 v{VC+r}, {NEG_INF:#x}")
        a.I(f"s_branch {lj}")
        a.L(lf)
        make_mask(True)
        a.I(f"s_branch {lj}")
        a.L(ll)
        make_mask(False)
        a.L(lj)
        a.I("s_waitcnt lgkmcnt(0)")
        a.I("s_nop 1")
        a.I(f"v_mfma_f32_32x32x16_bf16 {v(S,16)}, {v(VKM[0],4)}, {v(VQM,4)}, {v(VC,16)}")
        a.I(f"v_mfma_f32_32x32x8bf16_1k {v(S,16)}, {v(VKT[0],2)}, {v(VQT,2)}, {v(S,16)}")
        a.I("s_nop 15")
    VM = 13
    a.I(f"v_mov_b32 v{VM}, {NEG_INF:#x}")
    a.I("s_mov_b32 s58, 0")
    lp1 = a.newlabel("k2s_p1")
    a.L(lp1)
    slow_scores()
    for r in range(16): a.I(f"v_max_f32 v{VM}, v{VM}, v{S+r}")
    a.I("s_add_u32 s58, s58, 1")
    a.I("s_cmp_le_u32 s58, 8")
    a.I(f"s_cbranch_scc1 {lp1}")
    a.I(f"v_mov_b32 v9, v{VM}")
    a.I("s_nop 1")
    a.I(f"v_permlane32_swap_b32 v9, v{VM}")
    a.I("s_nop 1")
    a.I(f"v_max_f32 v{VM}, v{VM}, v9")
    for r in range(16): a.I(f"v_mov_b32 v{VO+r}, 0")
    a.I("s_mov_b32 s58, 0")
    lp2 = a.newlabel("k2s_p2")
    a.L(lp2)
    slow_scores()
    a.I(f"s_mul_i32 s59, s58, 1280")
    a.I(f"v_add_u32 v9, s59, v{VAV}")
    a.I(f"s_mov_b32 exec_lo, {MASK20[0]:#x}")
    a.I(f"s_mov_b32 exec_hi, {MASK20[1]:#x}")
    a.I(f"ds_read_b128 {v(VV[0],4)}, v9")
    a.I(f"ds_read_b128 {v(VV[1],4)}, v9 offset:640")
    a.I("s_mov_b64 exec, -1")
    for r in range(16): a.I(f"v_sub_f32 v{S+r}, v{S+r}, v{VM}")
    for r in range(16): a.I(f"v_exp_f32 v{S+r}, v{S+r}")
    a.I("s_nop 0")
    for k in range(8): a.I(f"v_cvt_pk_bf16_f32 v{VP+k}, v{S+2*k}, v{S+2*k+1}")
    a.I("s_waitcnt lgkmcnt(0)")
    a.I("s_nop 1")
    for hfs in range(2):
        a.I(f"v_mfma_f32_32x32x16_bf16 {v(VO,16)}, {v(VV[hfs],4)}, {v(VP+4*hfs,4)}, {v(VO,16)}")
    a.I("s_nop 15")
    a.I("s_add_u32 s58, s58, 1")
    a.I("s_cmp_le_u32 s58, 8")
    a.I(f"s_cbranch_scc1 {lp2}")
    a.I(f"v_cndmask_b32 v{VL}, v{VO+8}, v{VO+12}, s[38:39]")
    a.I("s_nop 1")
    a.I(f"s_branch {fin}")
    a.L(le)
    a.I("s_endpgm")
    a.raw(kd(name, K2_VGPRS))
```

```python
from common import *

WB = 0; XB = 61440
K1_LDS = XB + 3*32768
KVD = XB + 32768
STAMPS = eval(os.environ.get('K1_STAMPS', '(4, 10, 16)'))
V_TX=2; V_TW=3; V_TD=4
V_T=5
V_XR=10; V_XR2=12
V_F=16
V_ACC=88
V_A=152
K1_VGPRS=168
NCOL = {"row": 4, "col": 4, "kv": 5}
def acc(kind, i, j): return V_ACC + (i*NCOL[kind] + j)*4
def fx(n, i): return V_F + (n & 1)*36 + i*4
def fw(n, j): return V_F + (n & 1)*36 + 16 + j*4
WST = {"row": 16384, "col": 16384, "kv": 20480}
WROW = {"row": 256, "col": 256, "kv": 320}

def main_loop(a, kind, pf):
    nc = NCOL[kind]; wst = WST[kind]; wr_ = WROW[kind]
    def reads(n):
        b, sp = n >> 1, n & 1
        st = b % 3
        xb = (V_XR2 if st == 2 else V_XR) + sp
        xo = 0 if st == 2 else st*32768
        def rw(j):
            off = WB + st*wst + sp*32*wr_
            return [f"ds_read_b64_tr_b16 {v(fw(n,j),2)}, v{V_T+j} offset:{off}",
                    f"ds_read_b64_tr_b16 {v(fw(n,j)+2,2)}, v{V_T+j} offset:{off+4*wr_}"]
        def rx(i): return [f"ds_read_b128 {v(fx(n,i),4)}, v{xb} offset:{xo + i*2048}"]
        out = []
        for k in range(4): out += rw(k) + rx(k)
        if nc == 5: out += rw(4)
        return out
    sched = eval(os.environ.get("K1_TOUCH", "{-1:[0,1,2,3]}"))
    tw = [0]
    seen = {}
    def do_touch(k):
        for b in sched.get(k, []):
            if isinstance(b, tuple):
                touch(a, b[0], seen[b[1]], True); seen[b[0]] = seen[b[1]]
            else:
                touch(a, b, tw[0] % 8); seen[b] = tw[0] % 8; tw[0] += 1
    if os.environ.get("K1_EARLY", "1") != "1": touch_setup(a)
    do_touch(-1)
    yield "prologue"
    do_touch(-0.5)
    a.I("s_barrier")
    do_touch(0)
    pf.stamp("first")
    for t in reads(0): a.I(t)
    for n in range(20):
        b, sp = n >> 1, n & 1
        if n in STAMPS: pf.stamp(f"n{n}")
        a.I("s_waitcnt lgkmcnt(0)")
        if sp == 1 and b + 1 <= 9:
            a.I("s_barrier")
            do_touch(b + 1)
        rd = reads(n+1) if n < 19 else []
        for k in range(4*nc):
            i, j = divmod(k, nc)
            d = v(acc(kind, i, j), 4); c = "0" if n == 0 else d
            if kind == "kv" and k == 15:
                lskip = a.newlabel("k1_kv3")
                a.I("s_cmp_ge_u32 s36, 2")
                a.I(f"s_cbranch_scc1 {lskip}")
            if kind == "row": a.I(f"v_mfma_f32_16x16x32_bf16 {d}, {v(fw(n,j),4)}, {v(fx(n,i),4)}, {c}")
            else:             a.I(f"v_mfma_f32_16x16x32_bf16 {d}, {v(fx(n,i),4)}, {v(fw(n,j),4)}, {c}")
            if k < len(rd): a.I(rd[k])
        if kind == "kv": a.L(lskip)

def loader_wave(a, kv, pf):
    nx = 7 if kv else 8
    a.I(f"""
    s_sub_u32 s24, s22, 8
    s_mov_b32 s63, s24
    v_lshrrev_b32 v13, 3, v1
    v_and_b32 v14, 7, v1
    v_lshrrev_b32 v15, 1, v13
    v_xor_b32 v14, v14, v15
    s_mul_i32 s23, s20, {32*nx}
    s_mul_i32 s25, s24, {8*nx}
    s_add_u32 s23, s23, s25
    v_add_u32 v13, s23, v13
    v_mul_u32_u24 v13, 1280, v13
    v_lshl_add_u32 v2, v14, 4, v13
    s_mul_i32 s26, s24, {1024*nx}
    s_add_u32 s26, s26, {XB}
    """)
    if kv:
        a.I("s_and_b32 s25, s24, 1")
        a.I("s_lshl_b32 s25, s25, 6")
        a.I("v_xor_b32 v2, s25, v2")
    a.I("v_xor_b32 v3, 64, v2")
    ROT = os.environ.get("K1_ROT", "0") == "1"
    a.I("s_and_b32 s42, s20, 3")
    a.I("s_mul_i32 s42, s42, 3")
    a.I("s_add_u32 s42, s42, s34b".replace("s34b", "s62"))
    a.I("s_cmp_ge_u32 s42, 10")
    a.I("s_cselect_b32 s43, 10, 0")
    a.I("s_sub_u32 s42, s42, s43")
    if not ROT: a.I("s_mov_b32 s42, 0")
    def kregs():
        a.I("s_lshl_b32 s44, s42, 7")
        a.I("s_mul_i32 s45, s42, 245760")
        a.I("s_add_u32 s42, s42, 1")
        a.I("s_cmp_eq_u32 s42, 10")
        a.I("s_cselect_b32 s42, 0, s42")
    def dx(st, qq):
        a.I(f"s_add_u32 m0, s26, {st*32768 + qq*1024}")
        a.I(f"s_add_u32 s35, s44, {qq*10240}")
        a.I(f"buffer_load_dwordx4 v{3 if qq & 1 else 2}, s[8:11], s35 offen lds")
    if os.environ.get("LD_PRIO"): a.I(f"s_setprio {os.environ['LD_PRIO']}")
    kregs()
    for qq in range(nx): dx(0, qq)
    if not kv:
        a.I(f"""
        v_lshrrev_b32 v13, 4, v1
        v_lshlrev_b32 v14, 1, v13
        v_and_b32 v15, 15, v1
        v_xor_b32 v14, v14, v15
        s_lshl_b32 s25, s24, 4
        v_add_u32 v13, s25, v13
        v_mul_u32_u24 v13, 3840, v13
        v_lshl_add_u32 v13, v14, 4, v13
        s_lshl_b32 s25, s21, 8
        v_add_u32 v4, s25, v13
        v_xor_b32 v5, 128, v4
        s_lshl_b32 s27, s24, 12
        s_add_u32 s27, s27, {WB}
        """)
        nw, wst = 4, 16384
        wreg = lambda q: 5 if q & 2 else 4
        woff = lambda q: q*15360
    else:
        tbl = 0
        for i, x in enumerate([0,1,3,4,5,6,8,9,2,7]): tbl |= x << (4*i)
        a.I(f"s_mov_b32 s32, {tbl & 0xffffffff:#x}")
        a.I(f"s_mov_b32 s33, {tbl >> 32:#x}")
        a.I("s_mul_i32 s23, s21, 160")
        a.I("s_add_u32 s23, s23, 1280")
        a.I("s_lshl_b32 s25, s24, 4")
        for q in range(5):
            a.I(f"""
            v_add_u32 v12, {64*q}, v1
            v_mul_u32_u24 v13, 3277, v12
            v_lshrrev_b32 v13, 16, v13
            v_mul_u32_u24 v14, 20, v13
            v_sub_u32 v14, v12, v14
            v_lshrrev_b32 v15, 3, v13
            v_lshlrev_b32 v15, 1, v15
            v_xor_b32 v14, v14, v15
            v_cmp_le_u32 s[36:37], 10, v14
            v_cndmask_b32 v15, 0, 10, s[36:37]
            v_sub_u32 v14, v14, v15
            v_lshlrev_b32 v14, 2, v14
            v_lshrrev_b64 v[16:17], v14, s[32:33]
            v_and_b32 v16, 15, v16
            v_lshlrev_b32 v15, 3, v15
            v_lshl_add_u32 v15, v16, 4, v15
            v_cmp_le_u32 s[36:37], 5, v16
            v_mov_b32 v17, 1200
            v_cndmask_b32 v17, 0, v17, s[36:37]
            v_add_u32 v13, s25, v13
            v_mul_u32_u24 v13, 3840, v13
            v_add3_u32 v13, v13, v15, v17
            v_add_u32 v{4+q}, s23, v13
            """)
        a.I("s_mul_i32 s27, s24, 5120")
        nw, wst = 5, 20480
        wreg = lambda q: 4 + q
        woff = lambda q: 0
    def dw(st, qq):
        a.I(f"s_add_u32 m0, s27, {st*wst + qq*1024}")
        if woff(qq):
            a.I(f"s_add_u32 s35, s45, {woff(qq)}")
            a.I(f"buffer_load_dwordx4 v{wreg(qq)}, s[12:15], s35 offen lds")
        else:
            a.I(f"buffer_load_dwordx4 v{wreg(qq)}, s[12:15], s45 offen lds")
    def issue_stage(b):
        st = b % 3
        if b == 0:
            for q in range(nw): dw(st, q)
            return
        kregs()
        for q in range(4):
            dw(st, q); dx(st, 2*q)
            if 2*q+1 < nx: dx(st, 2*q+1)
        if nw == 5: dw(st, 4)
    per = nx + nw
    LT = eval(os.environ.get("K1_LTOUCH", "{1:4, 3:6, 5:8}"))
    vm = VmTrack()
    def stage(b):
        issue_stage(b)
        for _ in range(per): vm.add(("S", b))
    stage(0)
    pf.stamp("l_iss0")
    stage(1)
    pf.stamp("l_iss1")
    if LT:
        touch_setup(a, 10, 11)
        a.I("s_bitcmp1_b32 s24l, 1".replace("s24l", "s63"))
        a.I("s_cselect_b32 s60, 1, 0")
    for b in range(0, 10):
        n, _ = vm.wait_n(lambda t: t == ("S", b))
        a.I(f"s_waitcnt vmcnt({n})")
        if b <= 2: pf.stamp(f"l_land{b}")
        a.I("s_barrier")
        if b + 2 <= 9: stage(b + 2)
        if b in LT:
            lw = a.newlabel("k1_ltw"); lj = a.newlabel("k1_ltj")
            a.I(f"s_add_u32 s59, s60, {LT[b]}")
            a.I("s_bitcmp1_b32 s63, 0")
            a.I(f"s_cbranch_scc1 {lw}")
            a.I("s_lshl_b32 s35, s59, 7")
            a.I("buffer_load_dword v12, v10, s[8:11], s35 offen")
            a.I(f"s_branch {lj}")
            a.L(lw)
            a.I("s_mul_i32 s35, s59, 245760")
            a.I("buffer_load_dword v12, v11, s[12:15], s35 offen")
            a.L(lj)
            vm.add(("T", b))
    a.I("s_waitcnt vmcnt(0)")
    pf.finish(16, 22)
    a.I("s_endpgm")

def touch_setup(a, V_TX=V_TX, V_TW=V_TW):
    a.I(f"""
    s_and_b32 s23, s3, 1
    s_lshl_b32 s23, s23, 10
    s_mul_i32 s24, s30, s54
    s_add_u32 s23, s23, s24
    v_add_u32 v13, s23, v1
    v_mul_u32_u24 v13, 1280, v13
    v_mov_b32 v14, {OOB:#x}
    v_cmp_gt_u32 s[48:49], s54, v1
    v_cndmask_b32 v{V_TX}, v14, v13, s[48:49]
    v_cmp_gt_u32 s[48:49], 32, v1
    v_and_b32 v15, 15, v1
    v_add_u32 v13, s50, v15
    v_mov_b32 v16, s52
    v_cmp_le_u32 s[36:37], s51, v15
    v_cndmask_b32 v16, 0, v16, s[36:37]
    v_cmp_le_u32 s[36:37], s53, v15
    v_cndmask_b32 v17, 0, 5, s[36:37]
    v_add3_u32 v13, v13, v16, v17
    v_lshlrev_b32 v13, 7, v13
    v_bfe_u32 v15, v1, 4, 1
    s_lshl_b32 s24, s30, 1
    v_add_u32 v15, s24, v15
    v_mul_u32_u24 v15, 3840, v15
    v_add_u32 v13, v13, v15
    v_cndmask_b32 v{V_TW}, v13, v14, s[48:49]
    """)
def touch_ops(a, b, d0=V_TD, d1=V_TD):
    a.I(f"buffer_load_dword v{d0}, v{V_TX}, s[8:11], 0 offen offset:{b*128}")
    a.I(f"s_mov_b32 s35, {b*245760}")
    a.I(f"buffer_load_dword v{d1}, v{V_TW}, s[12:15], s35 offen")
def touch(a, b, wave, wait=False):
    l = a.newlabel("k1_nt")
    a.I(f"s_cmp_lg_u32 s22, {wave}")
    a.I(f"s_cbranch_scc1 {l}")
    if wait: a.I("s_waitcnt vmcnt(0)")
    touch_ops(a, b)
    a.L(l)

def phi_regs(a, regs, tm):
    for q, r in enumerate(regs):
        for i in (0, 2): a.I(f"v_pk_mul_f32 {v(tm+4*q+i,2)}, {v(r+i,2)}, s[42:43]")
    for q, r in enumerate(regs):
        for i in range(4): a.I(f"v_exp_f32 v{tm+4*q+i}, v{tm+4*q+i} clamp")
    for q, r in enumerate(regs):
        for i in range(4): a.I(f"v_max_f32 v{r+i}, s44, v{r+i}")
    for q, r in enumerate(regs):
        for i in (0, 2): a.I(f"v_pk_add_f32 {v(r+i,2)}, {v(r+i,2)}, {v(tm+4*q+i,2)}")
def phi_consts(a):
    a.I(f"s_mov_b32 s42, {f2u(LOG2E):#x}")
    a.I(f"s_mov_b32 s43, {f2u(LOG2E):#x}")
    a.I(f"s_mov_b32 s44, {f2u(1e-6):#x}")
def pack(a, d, r0, r1):
    for rt, r in enumerate((r0, r1)):
        a.I(f"v_cvt_pk_bf16_f32 v{d+2*rt}, v{r}, v{r+1}")
        a.I(f"v_cvt_pk_bf16_f32 v{d+2*rt+1}, v{r+2}, v{r+3}")

def epilogue_flat(a, mode, sfx_):
    P = V_F + 16
    if mode == "phi": phi_consts(a)
    if mode == "scale":
        a.I(f"s_mov_b32 s42, {f2u(QSCALE):#x}")
        a.I(f"s_mov_b32 s43, {f2u(QSCALE):#x}")
    k = 0
    for p in range(2):
        for j in range(4):
            d = P + (k % 8)*4; tm = V_F + (k % 2)*8; k += 1
            regs = [acc("row", 2*p, j), acc("row", 2*p+1, j)]
            if mode == "phi": phi_regs(a, regs, tm)
            if mode == "scale":
                for q, r in enumerate(regs):
                    for i in (0, 2): a.I(f"v_pk_mul_f32 {v(r+i,2)}, {v(r+i,2)}, s[42:43]")
            pack(a, d, regs[0], regs[1])
            a.I(f"buffer_store_dwordx4 {v(d,4)}, v{V_A+j}, s[16:19], 0 offen offset:{p*1280}{sfx(sfx_)}")

def epilogue_kv(a, pf):
    PK0=V_F; PK1=V_F+4; VV0=V_F+8; VV1=V_F+12; T6P=V_F+16; T6O=V_F+20
    M = V_F + 24; tm = V_F + 56
    phi_consts(a)
    a.I("v_and_b32 v13, 15, v1")
    a.I("v_cmp_gt_u32 s[40:41], 8, v13")
    a.I("v_mov_b32 v14, 0x3f803f80")
    A = lambda i, t: acc("kv", i, t)
    pairs = [(PK0,VV0),(PK1,VV1),(PK0,T6O),(PK1,T6O),(T6P,VV0),(T6P,VV1),(T6P,T6O)]
    def rows32(i0, i1, first):
        pack(a, VV0, A(i0,2), A(i1,2)); pack(a, VV1, A(i0,3), A(i1,3))
        pack(a, T6O, A(i0,4), A(i1,4))
        for k in range(4): a.I(f"v_cndmask_b32 v{T6O+k}, v{T6O+k}, v14, s[40:41]")
        for t, dst in ((0, PK0), (1, PK1), (4, T6P)):
            phi_regs(a, [A(i0,t), A(i1,t)], tm)
            pack(a, dst, A(i0,t), A(i1,t))
        for k, (x, y) in enumerate(pairs):
            c = "0" if first else v(M+4*k,4)
            a.I(f"v_mfma_f32_16x16x32_bf16 {v(M+4*k,4)}, {v(x,4)}, {v(y,4)}, {c}")
    def rows16(i0):
        def pack1(d, r):
            a.I(f"v_cvt_pk_bf16_f32 v{d}, v{r}, v{r+1}")
            a.I(f"v_cvt_pk_bf16_f32 v{d+1}, v{r+2}, v{r+3}")
        pack1(VV0, A(i0,2)); pack1(VV1, A(i0,3)); pack1(T6O, A(i0,4))
        for k in range(2): a.I(f"v_cndmask_b32 v{T6O+k}, v{T6O+k}, v14, s[40:41]")
        for t, dst in ((0, PK0), (1, PK1), (4, T6P)):
            phi_regs(a, [A(i0,t)], tm)
            pack1(dst, A(i0,t))
        for k, (x, y) in enumerate(pairs):
            a.I(f"v_mfma_f32_16x16x16bf16_1k {v(M+4*k,4)}, {v(x,2)}, {v(y,2)}, {v(M+4*k,4)}")
    lz = a.newlabel("k1_kvz"); l16 = a.newlabel("k1_kv16"); lend = a.newlabel("k1_kvend")
    a.I("s_mul_i32 s45, s20, 224")
    a.I("s_add_u32 s45, s45, s63")
    a.I("s_cmp_ge_u32 s45, 2048")
    a.I(f"s_cbranch_scc1 {lz}")
    rows32(0, 1, True)
    a.I("s_add_u32 s45, s45, 32")
    a.I("s_cmp_ge_u32 s45, 2048")
    a.I(f"s_cbranch_scc1 {lend}")
    a.I("s_cmp_ge_u32 s36, 2")
    a.I(f"s_cbranch_scc1 {l16}")
    rows32(2, 3, False)
    a.I(f"s_branch {lend}")
    a.L(l16)
    rows16(2)
    a.I(f"s_branch {lend}")
    a.L(lz)
    for k in range(28): a.I(f"v_mov_b32 v{M+k}, 0")
    a.L(lend)
    pf.stamp("kvm")
    a.I("s_mul_i32 s45, s22, 7168")
    a.I(f"s_add_u32 s45, s45, {KVD}")
    a.I("v_lshlrev_b32 v12, 4, v1")
    a.I("v_add_u32 v12, s45, v12")
    for k in range(7): a.I(f"ds_write_b128 v12, {v(M+4*k,4)} offset:{k*1024}")
    R = V_F
    def task_addr(st, vL, vD):
        a.I(f"""
        s_cmp_ge_u32 {st}, 6
        s_cselect_b32 s54, 1, 0
        s_mul_i32 s55, s54, 6
        s_sub_u32 s55, {st}, s55
        s_cmp_ge_u32 s55, 3
        s_cselect_b32 s45, 1, 0
        s_mul_i32 s46, s45, 3
        s_sub_u32 s46, s55, s46
        v_lshrrev_b32 v13, 5, v1
        v_and_b32 v14, 31, v1
        s_lshl_b32 s47, s46, 1
        v_add_u32 v13, s47, v13
        v_mov_b32 v15, s45
        s_cmp_eq_u32 s46, 2
        s_cselect_b64 s[48:49], -1, 0
        v_cndmask_b32 v13, v13, v15, s[48:49]
        s_add_u32 s50, s45, 4
        s_add_u32 s51, s45, 2
        s_cmp_eq_u32 s46, 2
        s_cselect_b32 s50, s50, s45
        s_cselect_b32 s51, 6, s51
        v_mov_b32 v15, s51
        v_mov_b32 v{vD}, s50
        v_cmp_gt_u32 s[52:53], 16, v14
        v_cndmask_b32 v15, v15, v{vD}, s[52:53]
        s_lshl_b32 s56, s45, 2
        s_sub_u32 s56, s56, 8
        v_add_u32 v{vL}, s56, v14
        v_cmp_gt_u32 s[58:59], 20, v14
        v_cndmask_b32 v{vL}, 0, v{vL}, s[58:59]
        v_cndmask_b32 v{vL}, v{vL}, v14, s[52:53]
        v_lshl_add_u32 v{vL}, v13, 4, v{vL}
        v_lshlrev_b32 v{vL}, 4, v{vL}
        v_lshl_add_u32 v{vL}, v15, 10, v{vL}
        s_mul_i32 s57, s54, 7168
        s_add_u32 s57, s57, {KVD}
        v_add_u32 v{vL}, s57, v{vL}
        s_lshl_b32 s55, s21, 2
        s_lshl_b32 s57, s54, 1
        s_add_u32 s55, s55, s57
        s_add_u32 s55, s55, s45
        s_mul_i32 s55, s55, 10
        s_add_u32 s55, s55, s20
        s_mul_i32 s55, s55, 3
        s_add_u32 s55, s55, s46
        s_lshl_b32 s55, s55, 10
        s_add_u32 s55, s55, {WS_KVP}
        v_lshlrev_b32 v{vD}, 4, v1
        v_add_u32 v{vD}, s55, v{vD}
        """)
    def task_reads(vL, r):
        for w_ in range(4): a.I(f"ds_read_b128 {v(r+4*w_,4)}, v{vL} offset:{w_*2*7168}")
    def task_sum(vD, r, younger):
        for w_ in range(1, 4):
            a.I(f"s_waitcnt lgkmcnt({3 - w_ + younger})")
            for i in range(4): a.I(f"v_add_f32 v{r+i}, v{r+i}, v{r+4*w_+i}")
        a.I(f"buffer_store_dwordx4 {v(r,4)}, v{vD}, s[16:19], 0 offen{sfx(ST_K1)}")
    l1 = a.newlabel("k1_kv1"); l2 = a.newlabel("k1_kv2")
    task_addr("s22", 8, 9)
    a.I("s_cmp_ge_u32 s22, 4")
    a.I(f"s_cbranch_scc1 {l1}")
    a.I("s_add_u32 s60, s22, 8")
    task_addr("s60", 10, 11)
    a.I("s_waitcnt lgkmcnt(0)")
    a.I("s_barrier")
    task_reads(8, R); task_reads(10, R + 16)
    task_sum(9, R, 4); task_sum(11, R + 16, 0)
    a.I(f"s_branch {l2}")
    a.L(l1)
    a.I("s_waitcnt lgkmcnt(0)")
    a.I("s_barrier")
    task_reads(8, R)
    task_sum(9, R, 0)
    a.L(l2)

def gen_k1(a, name):
    a.raw(f".globl {name}\n.p2align 8\n.type {name},@function")
    a.L(name)
    le = a.newlabel("k1_end")
    pf = Prof(a, 0)
    a.I("s_cmp_ge_u32 s2, 256")
    a.I(f"s_cbranch_scc1 {le}")
    pf.start()
    a.I("s_load_dwordx4 s[4:7], s[0:1], 0")
    a.I("s_load_dwordx4 s[44:47], s[0:1], 24")
    a.I("s_load_dwordx2 s[28:29], s[0:1], 64")
    lB = a.newlabel("k1_decB"); lD = a.newlabel("k1_dec")
    a.I("""
    s_and_b32 s3, s2, 7
    s_lshr_b32 s30, s2, 3
    s_lshr_b32 s31, s3, 2
    s_and_b32 s20, s3, 1
    s_lshl_b32 s20, s20, 2
    s_and_b32 s23, s30, 3
    s_add_u32 s20, s20, s23
    s_lshr_b32 s38, s3, 1
    s_and_b32 s38, s38, 1
    s_lshr_b32 s34, s30, 2
    s_mov_b32 s62, s34
    v_lshrrev_b32 v13, 6, v0
    v_and_b32 v1, 63, v0
    s_cmp_eq_u32 s31, 0
    """)
    a.I(f"s_cbranch_scc0 {lB}")
    a.I("""
    s_lshl_b32 s24, s38, 2
    s_sub_u32 s23, 12, s24
    s_mul_i32 s25, s38, 3
    s_add_u32 s21, s34, s25
    s_mov_b32 s61, 0
    s_cmp_lt_u32 s30, s23
    """)
    lAq = a.newlabel("k1_decAq")
    a.I(f"s_cbranch_scc1 {lAq}")
    a.I("""
    s_sub_u32 s25, s30, s23
    s_mul_i32 s23, s25, 52
    s_lshr_b32 s23, s23, 8
    s_add_u32 s21, s24, s23
    s_mul_i32 s23, s23, 5
    s_sub_u32 s23, s25, s23
    s_and_b32 s20, s3, 1
    s_mul_i32 s20, s20, 5
    s_add_u32 s20, s20, s23
    s_cmp_ge_u32 s25, 20
    s_cselect_b32 s61, 2, 1
    """)
    a.L(lAq)
    a.I("""
    s_mul_i32 s50, s38, 6
    s_lshl_b32 s24, s38, 1
    s_sub_u32 s51, 6, s24
    s_add_u32 s52, s38, 4
    s_add_u32 s53, s51, 5
    s_bitcmp1_b32 s3, 0
    s_cselect_b32 s54, 32, 35
    """)
    a.I(f"s_branch {lD}")
    a.L(lB)
    a.I("""
    s_lshl_b32 s21, s38, 3
    s_add_u32 s21, s21, s34
    s_cmp_ge_u32 s21, 15
    s_cselect_b32 s61, 2, 0
    s_lshl_b32 s50, s38, 4
    s_mov_b32 s51, 16
    s_mov_b32 s52, 0
    s_mov_b32 s53, 16
    s_mov_b32 s54, 32
    """)
    a.L(lD)
    a.I("v_readfirstlane_b32 s22, v13")
    EARLY = os.environ.get("K1_EARLY", "1") == "1"
    if EARLY:
        le2 = a.newlabel("k1_early")
        a.I(f"v_mov_b32 v{V_TX}, {OOB:#x}")
        a.I(f"v_mov_b32 v{V_TW}, {OOB:#x}")
        a.I("s_cmp_ge_u32 s22, 8")
        a.I(f"s_cbranch_scc1 {le2}")
        touch_setup(a)
        a.L(le2)
    a.I("s_waitcnt lgkmcnt(0)")
    pf.stamp("kernarg")
    a.I("s_cmp_eq_u32 s31, 0")
    for i in range(4): a.I(f"s_cselect_b32 s{4+i}, s{4+i}, s{44+i}")
    srd(a, 8, 4, 5, 2621440)
    srd(a, 12, 6, 7, 2457600)
    srd(a, 16, 28, 29, WS_REC, WS0)
    lx = a.newlabel("k1_spare"); lh = a.newlabel("k1_mfma"); lkl = a.newlabel("k1_ldkv"); lkv = a.newlabel("k1_kv")
    a.I("s_cmp_eq_u32 s61, 2")
    a.I(f"s_cbranch_scc1 {lx}")
    n0 = (pf.n, list(pf.names))
    def reset(): pf.n, pf.names = n0[0], list(n0[1])
    a.I("s_cmp_lt_u32 s22, 8")
    a.I(f"s_cbranch_scc1 {lh}")
    a.I("s_cmp_eq_u32 s61, 1")
    a.I(f"s_cbranch_scc1 {lkl}")
    loader_wave(a, False, pf); reset()
    a.L(lkl)
    loader_wave(a, True, pf); reset()
    a.L(lh)
    if os.environ.get("CODE_PF", "1") == "1":
        lc = a.newlabel("k1_nocode"); lpc = a.newlabel("k1_pc")
        a.I("s_cmp_lg_u32 s30, 0")
        a.I(f"s_cbranch_scc1 {lc}")
        a.I("s_cmp_ge_u32 s22, 6")
        a.I(f"s_cbranch_scc1 {lc}")
        a.I("s_getpc_b64 s[84:85]")
        a.L(lpc)
        a.raw(f"    s_sub_u32 s84, s84, {lpc}-{name}")
        a.I("s_subb_u32 s85, s85, 0")
        a.I("s_lshl_b32 s86, s22, 6")
        a.I("v_add_u32 v14, s86, v1")
        a.I("v_lshlrev_b32 v14, 7, v14")
        a.raw(f"    s_mov_b32 s87, code_end_label-{name}")
        a.I("v_cmp_gt_u32 vcc, s87, v14")
        a.I("s_and_saveexec_b64 s[88:89], vcc")
        lz = a.newlabel("k1_codez")
        a.I(f"s_cbranch_execz {lz}")
        a.I("v_mov_b32 v17, s85")
        a.I("v_add_co_u32 v16, vcc, s84, v14")
        a.I("v_addc_co_u32 v17, vcc, 0, v17, vcc")
        a.I("global_load_dword v4, v[16:17], off")
        a.L(lz)
        a.I("s_mov_b64 exec, -1")
        a.L(lc)
    TLB = int(os.environ.get("TLB_PF", "0"))
    if TLB:
        lt = a.newlabel("k1_notlb"); lo = a.newlabel("k1_tlbo")
        a.I("s_cmp_lg_u32 s30, 0")
        a.I(f"s_cbranch_scc1 {lt}")
        a.I("s_cmp_lt_u32 s22, 6")
        a.I(f"s_cbranch_scc1 {lt}")
        a.I(f"v_lshlrev_b32 v14, {TLB}, v1")
        a.I("s_cmp_eq_u32 s22, 7")
        a.I(f"s_cbranch_scc1 {lo}")
        n = -(-WS_END // (64 << TLB))
        for k in range(n):
            a.I(f"s_mov_b32 s35, {k*(64 << TLB)}")
            a.I("buffer_load_dword v4, v14, s[16:19], s35 offen")
        a.I(f"s_branch {lt}")
        a.L(lo)
        a.I("s_load_dwordx2 s[84:85], s[0:1], 48")
        a.I("s_waitcnt lgkmcnt(0)")
        srd(a, 88, 84, 85, 5242880)
        n = -(-5242880 // (64 << TLB))
        for k in range(n):
            a.I(f"s_mov_b32 s35, {k*(64 << TLB)}")
            a.I("buffer_load_dword v4, v14, s[88:91], s35 offen")
        a.L(lt)
    a.I("s_cmp_eq_u32 s61, 1")
    a.I(f"s_cbranch_scc1 {lkv}")
    a.I("""
    s_mul_i32 s32, s21, 52
    s_lshr_b32 s32, s32, 8
    s_mul_i32 s23, s32, 5
    s_sub_u32 s33, s21, s23
    """)
    lcol = a.newlabel("k1_col"); lepi = a.newlabel("k1_epi")
    def x_addr(kv=False):
        a.I("s_lshl_b32 s63, s36, 6")
        if kv:
            a.I("s_cmp_eq_u32 s36, 3")
            a.I("s_cselect_b32 s63, 176, s63")
        a.I(f"""
        v_lshrrev_b32 v13, 4, v1
        v_and_b32 v14, 15, v1
        v_lshrrev_b32 v15, 1, v14
        v_xor_b32 v15, v15, v13
        s_lshl_b32 s39, s63, 7
        s_add_u32 s39, s39, {XB}
        v_lshlrev_b32 v16, 7, v14
        v_add_u32 v16, s39, v16
        v_lshl_add_u32 v{V_XR}, v15, 4, v16
        v_xor_b32 v{V_XR+1}, 64, v{V_XR}
        v_add_u32 v{V_XR2}, 0x10000, v{V_XR}
        v_add_u32 v{V_XR2+1}, 0x10000, v{V_XR+1}
        """)
    def addr_setup_flat():
        a.I(f"""
        s_lshr_b32 s36, s22, 1
        s_and_b32 s37, s22, 1
        v_lshrrev_b32 v13, 4, v1
        v_bfe_u32 v14, v1, 2, 2
        v_lshl_add_u32 v15, v13, 3, v14
        v_lshlrev_b32 v15, 8, v15
        v_and_b32 v16, 3, v1
        v_lshl_add_u32 v15, v16, 3, v15
        v_and_b32 v16, 1, v13
        v_lshl_or_b32 v16, v16, 2, v14
        s_lshl_b32 s40, s37, 2
        """)
        for j in range(4):
            a.I(f"s_add_u32 s39, s40, {j}")
            a.I(f"v_xor_b32 v17, s39, v16")
            a.I(f"v_lshl_add_u32 v{V_T+j}, v17, 5, v15")
        x_addr()
        a.I(f"""
        s_mul_i32 s40, s32, {BUF}
        s_cmp_eq_u32 s31, 0
        s_cselect_b32 s40, {WS_PQ}, s40
        s_lshl_b32 s41, s20, 3
        s_lshl_b32 s39, s36, 1
        s_add_u32 s41, s41, s39
        s_mul_i32 s41, s41, 1280
        s_add_u32 s40, s40, s41
        """)
    def addr_row():
        a.I(f"""
        s_lshl_b32 s39, s33, 5
        s_lshl_b32 s41, s37, 4
        s_add_u32 s39, s39, s41
        v_lshrrev_b32 v19, 4, v1
        v_add_u32 v15, s39, v19
        v_lshlrev_b32 v16, 4, v14
        v_add_u32 v16, s40, v16
        """)
        for j in range(4):
            a.I(f"""
            v_add_u32 v17, {4*j}, v15
            v_mul_u32_u24 v18, 205, v17
            v_lshrrev_b32 v18, 10, v18
            v_mul_u32_u24 v18, 80640, v18
            v_lshl_add_u32 v17, v17, 8, v16
            v_add_u32 v{V_A+j}, v17, v18
            """)
    def addr_col():
        a.I(f"""
        s_lshl_b32 s39, s33, 7
        s_lshl_b32 s41, s37, 6
        s_add_u32 s39, s39, s41
        v_add_u32 v15, s39, v14
        v_lshrrev_b32 v19, 4, v1
        v_mul_u32_u24 v16, 320, v19
        v_add_u32 v16, s40, v16
        """)
        for j in range(4):
            a.I(f"""
            v_add_u32 v17, {16*j}, v15
            v_mul_u32_u24 v18, 3277, v17
            v_lshrrev_b32 v18, 16, v18
            v_mul_u32_u24 v18, 81600, v18
            v_lshl_add_u32 v17, v17, 4, v16
            v_add_u32 v{V_A+j}, v17, v18
            """)
    a.I("s_cmp_eq_u32 s32, 2")
    a.I(f"s_cbranch_scc1 {lcol}")
    ldn = a.newlabel("k1_done")
    g = main_loop(a, "row", pf); next(g)
    addr_setup_flat(); addr_row()
    for _ in g: pass
    a.I("s_waitcnt vmcnt(0)")
    pf.stamp("mainend")
    lnp = a.newlabel("k1_nophi"); lst = a.newlabel("k1_plain")
    a.I("s_cmp_lg_u32 s31, 0")
    a.I(f"s_cbranch_scc1 {lnp}")
    epilogue_flat(a, "phi", ST_K1)
    a.I(f"s_branch {ldn}")
    a.L(lnp)
    a.I("s_cmp_lg_u32 s32, 0")
    a.I(f"s_cbranch_scc1 {lst}")
    epilogue_flat(a, "scale", ST_K1)
    a.I(f"s_branch {ldn}")
    a.L(lst)
    epilogue_flat(a, "none", ST_K1)
    a.I(f"s_branch {ldn}")
    reset()
    a.L(lcol)
    g = main_loop(a, "col", pf); next(g)
    addr_setup_flat(); addr_col()
    for _ in g: pass
    a.I("s_waitcnt vmcnt(0)")
    pf.stamp("mainend")
    epilogue_flat(a, "none", os.environ.get("ST_K1V", ST_K1))
    a.I(f"s_branch {ldn}")
    reset()
    a.L(lkv)
    g = main_loop(a, "kv", pf); next(g)
    a.I(f"""
    s_lshr_b32 s36, s22, 1
    s_and_b32 s37, s22, 1
    v_lshrrev_b32 v13, 4, v1
    v_bfe_u32 v14, v1, 2, 2
    v_lshl_add_u32 v15, v13, 3, v14
    v_mul_u32_u24 v15, 320, v15
    v_and_b32 v16, 3, v1
    v_lshl_add_u32 v15, v16, 3, v15
    v_and_b32 v16, 1, v13
    s_mul_i32 s40, s37, 5
    """)
    for t in range(5):
        a.I(f"s_add_u32 s39, s40, {t}")
        a.I(f"v_xor_b32 v17, s39, v16")
        a.I(f"v_lshl_add_u32 v{V_T+t}, v17, 5, v15")
    x_addr(True)
    for _ in g: pass
    a.I("s_waitcnt vmcnt(0)")
    pf.stamp("mainend")
    epilogue_kv(a, pf)
    a.L(ldn)
    pf.stamp("stored")
    if PROFILE: a.I("s_waitcnt vmcnt(0)")
    pf.finish(16, 22)
    a.I("s_endpgm")
    a.L(lx)
    lnt = a.newlabel("k1_spare_nt")
    a.I("s_lshl_b32 s23, s22, 6")
    a.I("v_add_u32 v7, s23, v1")
    a.I("s_cmp_lg_u32 s22, 0")
    a.I(f"s_cbranch_scc1 {lnt}")
    touch_setup(a)
    touch_ops(a, 0, 8, 9)
    touch_ops(a, 1, 10, 11)
    for b in range(2, 10):
        a.I("s_waitcnt vmcnt(2)")
        touch_ops(a, b, 8 + 2*(b & 1), 9 + 2*(b & 1))
    a.I("s_waitcnt vmcnt(0)")
    a.L(lnt)
    if os.environ.get("WO_LATE", "1") == "1": a.I("s_barrier")
    lnf = a.newlabel("k1_noflag")
    a.I("s_cmp_lg_u32 s2, 255")
    a.I(f"s_cbranch_scc1 {lnf}")
    a.I("s_cmp_lt_u32 s22, 1")
    a.I(f"s_cbranch_scc1 {lnf}")
    a.I("s_cmp_gt_u32 s22, 8")
    a.I(f"s_cbranch_scc1 {lnf}")
    a.I("v_subrev_u32 v6, 64, v7")
    a.I(f"v_lshlrev_b32 v6, {FLAG_SH}, v6")
    a.I(f"v_add_u32 v6, {WS_FLAG}, v6")
    a.I("v_mov_b32 v8, 0")
    a.I("buffer_store_dword v8, v6, s[16:19], 0 offen")
    a.L(lnf)
    if os.environ.get("WO_PF", "1") == "1":
        lz2 = a.newlabel("k1_nopf")
        a.I("s_load_dwordx2 s[48:49], s[0:1], 16")
        a.I("s_load_dwordx2 s[50:51], s[0:1], 40")
        a.I("""
        s_and_b32 s20, s3, 1
        s_and_b32 s21, s30, 3
        s_lshl_b32 s21, s21, 1
        s_add_u32 s20, s20, s21
        s_mul_i32 s20, s20, 102400
        v_lshlrev_b32 v2, 7, v7
        v_add_u32 v2, s20, v2
        """)
        a.I("s_waitcnt lgkmcnt(0)")
        a.I("s_cmp_eq_u32 s31, 0")
        a.I("s_cselect_b32 s4, s48, s50")
        a.I("s_cselect_b32 s5, s49, s51")
        srd(a, 8, 4, 5, 819200)
        a.I("buffer_load_dword v4, v2, s[8:11], 0 offen")
        a.I("s_mov_b32 s21, 73728")
        a.I("v_cmp_gt_u32 vcc, 224, v7")
        a.I("s_and_saveexec_b64 s[22:23], vcc")
        lz = a.newlabel("k1_pfz")
        a.I(f"s_cbranch_execz {lz}")
        a.I("buffer_load_dword v5, v2, s[8:11], s21 offen")
        a.L(lz)
        a.I("s_mov_b64 exec, -1")
        a.I("s_waitcnt vmcnt(0)")
        a.L(lz2)
    a.L(le)
    a.I("s_endpgm")
    a.raw(kd(name, K1_VGPRS))
```

```python
from common import *

LK = 0
LV = 16*1280
LKV = 32*1280
LW = 43008
LKF = LKV + 1536
K2_LDS = LW + 102400 + 512
VAKM=2; VAKT=3; VAV=4; VAO=5; VAOT=6; VL=7
VC=16; VS=(32,48); VO=64; VQM=80; VQT=84
VKM=(86,90); VKT=(94,96); VV=(98,102); VP=106
VPQM=114; VPQT=118; VKVM=120; VKVT=124
VR=128
K2_VGPRS=160
ODEP=10
V_OM=2; V_OT=3; V_T0=4; V_T1=5; V_OUT=6; V_OUT2=7; V_T1B=10; V_T2=11
V_RING=20; V_ACC=36; V_O=76; RING=4
def acc3(t, rt): return V_ACC + (t*2+rt)*4
def oreg(s_, rt): return V_O + ((s_ % ODEP)*2+rt)*4
POLL_SLEEP = int(os.environ.get('POLL_SLEEP', '8'))
WO_TOUCH = os.environ.get('WO_TOUCH', '0') == '1'
O_TOUCH = os.environ.get('O_TOUCH', '0') == '1'
POLL_ALL = os.environ.get('POLL_ALL', '1') == '1'
assert not (O_TOUCH and POLL_ALL)
SPLIT_FLAGS = os.environ.get('SPLIT_FLAGS', '1') == '1'
AI = int(os.environ.get('AI', '4'))
MASK20 = (0x000FFFFF, 0x000FFFFF)

def kappa_code(a, m, dst, tmp):
    a.I(f"""
    v_and_b32 v{dst}, 7, v{m}
    v_bfe_u32 v{tmp}, v{m}, 3, 1
    v_lshl_or_b32 v{dst}, v{tmp}, 4, v{dst}
    v_bfe_u32 v{tmp}, v{m}, 4, 1
    v_lshl_or_b32 v{dst}, v{tmp}, 3, v{dst}
    """)

def key_of_reg(r):
    s_, b, i = r >> 3, (r >> 2) & 1, r & 3
    return 16*b + 8*s_ + i

def normalize_store(a, O, P, add_eps, so, off=0, check=None):
    a.I(f"v_cndmask_b32 v{VL}, v{O+8}, v{O+12}, s[38:39]")
    if add_eps: a.I(f"v_add_f32 v{VL}, s43, v{VL}")
    if check: check()
    a.I(f"v_rcp_f32 v8, v{VL}")
    for i in range(12): a.I(f"v_mul_f32 v{O+i}, v8, v{O+i}")
    for i in range(6): a.I(f"v_cvt_pk_bf16_f32 v{P+i}, v{O+2*i}, v{O+2*i+1}")
    a.I(f"buffer_store_dwordx4 {v(P,4)}, v{VAO}, s[16:19], {so} offen offset:{off}{sfx(ST_K2)}")
    a.I(f"buffer_store_dwordx2 {v(P+4,2)}, v{VAOT}, s[16:19], {so} offen offset:{off}{sfx(ST_K2)}")

def out_addr(a, stile):
    a.I(f"""
    s_mul_i32 s36, {stile}, 1280
    v_lshlrev_b32 v14, 4, v1
    v_add_u32 v{VAO}, s36, v14
    v_lshlrev_b32 v14, 3, v12
    v_add_u32 v14, s36, v14
    v_add_u32 v14, 1024, v14
    v_mov_b32 v15, {OOB:#x}
    v_cndmask_b32 v{VAOT}, v15, v14, s[38:39]
    """)

def q_addr(a, dst):
    a.I(f"""
    v_and_b32 v13, 15, v1
    v_lshlrev_b32 v13, 4, v13
    v_bfe_u32 v14, v1, 4, 1
    v_lshl_add_u32 v13, v14, 3, v13
    v_lshl_add_u32 v13, v11, 8, v13
    v_add_u32 v{dst}, s36, v13
    """)

def q_addr4(a, dst, dst_t):
    a.I(f"""
    v_and_b32 v13, 15, v1
    v_lshlrev_b32 v13, 4, v13
    v_add_u32 v13, s36, v13
    v_bfe_u32 v14, v1, 4, 1
    v_lshl_add_u32 v{dst_t}, v14, 3, v13
    v_lshl_add_u32 v13, v14, 9, v13
    v_lshl_add_u32 v{dst}, v11, 8, v13
    """)
def q_swap(a, r):
    a.I(f"v_permlane16_swap_b32 v{r}, v{r+2}")
    a.I(f"v_permlane16_swap_b32 v{r+1}, v{r+3}")

def projection_setup(a):
    a.I(f"""
    s_lshl_b32 s31, s63, 2
    s_add_u32 s31, s31, s22
    s_mul_i32 s32, s31, 1280
    s_cmp_eq_u32 s62, 0
    s_mov_b32 s33, {WS_OA}
    s_mov_b32 s34, {WS_OB}
    s_cselect_b32 s33, s33, s34
    s_add_u32 s32, s32, s33
    v_lshrrev_b32 v18, 4, v1
    v_and_b32 v19, 15, v1
    v_lshrrev_b32 v16, 1, v18
    v_mul_u32_u24 v16, 81920, v16
    v_and_b32 v17, 1, v18
    v_lshl_add_u32 v16, v17, 9, v16
    v_lshl_add_u32 v16, v19, 4, v16
    v_add_u32 v{V_OM}, s32, v16
    v_mul_u32_u24 v16, {2*81920}, v18
    v_lshl_add_u32 v16, v19, 3, v16
    v_add_u32 v16, s32, v16
    v_add_u32 v{V_OT}, 1024, v16
    """)
    a.I(f"""
    v_lshrrev_b32 v18, 5, v1
    v_lshlrev_b32 v18, 4, v18
    v_bfe_u32 v19, v1, 4, 1
    v_lshl_add_u32 v18, v19, 2, v18
    v_bfe_u32 v19, v1, 2, 2
    v_add_u32 v18, v18, v19
    v_mul_u32_u24 v18, 160, v18
    v_and_b32 v19, 3, v1
    v_lshl_add_u32 v18, v19, 3, v18
    v_add_u32 v{V_T0}, {LW}, v18
    v_add_u32 v{V_T2}, {16*5120}, v{V_T0}
    v_lshrrev_b32 v18, 4, v1
    v_and_b32 v19, 15, v1
    s_lshl_b32 s41, s31, 5
    v_add_u32 v19, s41, v19
    v_mul_u32_u24 v19, 2560, v19
    s_mul_i32 s42, s62, 1280
    s_add_u32 s42, s42, s73
    v_add_u32 v19, s42, v19
    v_and_b32 v16, 1, v18
    v_lshlrev_b32 v16, 5, v16
    v_lshrrev_b32 v17, 1, v18
    v_lshl_add_u32 v16, v17, 4, v16
    v_add_u32 v{V_OUT}, v19, v16
    v_lshl_add_u32 v{V_OUT2}, v18, 3, v19
    s_mov_b32 s43, {16*2560}
    """)

def projection(a, pf):
    vm = VmTrack()
    R3 = os.environ.get("K23_R3", "0") == "1"
    a.I(f"s_lshl_b32 s84, s72, 1")
    if not R3: a.I("s_mov_b32 s84, 0")
    a.I("s_mov_b32 s85, s84")
    def ops_o(s_):
        out = []
        if s_ < 16:
            for rt in range(2):
                t = ["s_mul_i32 s40, s84, 163840", "s_add_u32 s84, s84, 1", "s_and_b32 s84, s84, 15"] if rt == 0 else []
                t.append(f"buffer_load_dwordx4 {v(oreg(s_,rt),4)}, v{V_OM}, s[16:19], s40 offen offset:{rt*256} sc1")
                out.append((t, ("O", s_)))
        else:
            for u in range(2):
                for rt in range(2):
                    t = [f"s_mov_b32 s40, {(s_-16)*655360 + u*81920}"] if rt == 0 else []
                    t.append(f"buffer_load_dwordx2 {v(oreg(s_,rt)+2*u,2)}, v{V_OT}, s[16:19], s40 offen offset:{rt*128} sc1")
                    out.append((t, ("O", s_)))
        return out
    def emit_op(op):
        for t in op[0]: a.I(t)
        vm.add(op[1])
    NPRE = min(ODEP, int(os.environ.get("K3_NPRE", "8")))
    for s_ in range(NPRE):
        for op in ops_o(s_): emit_op(op)
    pending = []
    for s_ in range(NPRE, 20): pending += ops_o(s_)
    def free(op, done_steps):
        return op[1][1] - ODEP < done_steps
    pf.stamp("o_issued")
    def issue_tr(n):
        s_, t = divmod(n, 5)
        r = V_RING + (n % RING)*4
        if s_ < 16:
            base = V_T1 if (s_ & 1) else V_T1B
            if t == 0:
                a.I("s_mul_i32 s41, s85, 5120")
                a.I("s_add_u32 s85, s85, 1")
                a.I("s_and_b32 s85, s85, 15")
                a.I(f"v_add_u32 v{base}, s41, v{V_T0}")
            off = 32*t
        else:
            base = V_T2; off = (s_ - 16)*5120 + 32*t
        a.I(f"ds_read_b64_tr_b16 {v(r,2)}, v{base} offset:{off}")
        a.I(f"ds_read_b64_tr_b16 {v(r+2,2)}, v{base} offset:{off+1280}")
    NT = 100
    for n in range(RING-1): issue_tr(n)
    for n in range(NT):
        s_, t = divmod(n, 5)
        if n in (0, 40): pf.stamp(f"p{n}")
        if t == 0:
            while pending and pending[0][1][1] <= s_:
                assert free(pending[0], s_)
                emit_op(pending.pop(0))
            nw_, _ = vm.wait_n(lambda x: x == ("O", s_))
            a.I(f"s_waitcnt vmcnt({nw_})")
        m = n + RING - 1
        if m < NT:
            issue_tr(m)
            a.I(f"s_waitcnt lgkmcnt({2*(RING-1)})")
        else:
            a.I(f"s_waitcnt lgkmcnt({2*(NT-1-n)})")
        wf = v(V_RING + (n % RING)*4, 4)
        for rt in range(2):
            d = v(acc3(t, rt), 4)
            c = "0" if s_ == 0 else d
            a.I(f"v_mfma_f32_16x16x32_bf16 {d}, {wf}, {v(oreg(s_,rt),4)}, {c}")
        if pending and free(pending[0], (n + 1) // 5): emit_op(pending.pop(0))
    pf.stamp("pend")
    P = V_O
    def epi(sf):
        for rt in range(2):
            so = "s43" if rt else "0"
            for pr in range(2):
                p = P + rt*12 + pr*4
                for k, t in enumerate((2*pr, 2*pr+1)):
                    r = acc3(t, rt)
                    a.I(f"v_cvt_pk_bf16_f32 v{p+2*k}, v{r}, v{r+1}")
                    a.I(f"v_cvt_pk_bf16_f32 v{p+2*k+1}, v{r+2}, v{r+3}")
                a.I(f"v_permlane16_swap_b32 v{p}, v{p+2}")
                a.I(f"v_permlane16_swap_b32 v{p+1}, v{p+3}")
                a.I(f"buffer_store_dwordx4 {v(p,4)}, v{V_OUT}, s[12:15], {so} offen offset:{pr*64}{sfx(sf)}")
            p = P + rt*12 + 8
            r = acc3(4, rt)
            a.I(f"v_cvt_pk_bf16_f32 v{p}, v{r}, v{r+1}")
            a.I(f"v_cvt_pk_bf16_f32 v{p+1}, v{r+2}, v{r+3}")
            a.I(f"buffer_store_dwordx2 {v(p,2)}, v{V_OUT2}, s[12:15], {so} offen offset:128{sfx(sf)}")
    sfa = os.environ.get("ST_K3A", ST_K3)
    if sfa != ST_K3:
        lb = a.newlabel("k23_epb"); le_ = a.newlabel("k23_epe")
        a.I("s_cmp_lg_u32 s62, 0")
        a.I(f"s_cbranch_scc1 {lb}")
        epi(sfa)
        a.I(f"s_branch {le_}")
        a.L(lb)
        epi(ST_K3)
        a.L(le_)
    else:
        epi(ST_K3)

def helper_wave(a, pf):
    V_WM = 16; VR = 32
    a.I(f"""
    s_sub_u32 s22h, s22, 8
    s_mul_i32 s30, s25, 1280
    s_mul_i32 s31, s24, 1280
    s_bitcmp1_b32 s22h, 0
    s_cselect_b32 s34, s31, s30
    s_mov_b32 s35, {WS_KB}
    s_mov_b32 s37, {WS_VB}
    s_cmp_ge_u32 s22h, 2
    s_cselect_b32 s35, s37, s35
    s_add_u32 s34, s34, s35
    s_mul_i32 s33, s22h, 10240
    """.replace("s22h", "s82"))
    for j in range(10):
        a.I(f"s_add_u32 m0, s33, {j*1024}")
        a.I("buffer_load_dwordx4 v8, s[16:19], s34 offen lds")
        if j < 9: a.I("s_add_u32 s34, s34, 1024")
    pf.stamp("h_issued")
    lz = a.newlabel("k23_hz")
    a.I("s_cmp_lg_u32 s82, 0")
    a.I(f"s_cbranch_scc1 {lz}")
    for k in range(4): a.I(f"v_mov_b32 v{VR+k}, 0")
    a.I(f"v_mov_b32 v14, {LKF}")
    a.I(f"ds_write_b128 v14, {v(VR,4)}")
    a.L(lz)
    a.I("""
    s_cmp_eq_u32 s62, 0
    s_cselect_b32 s74, 8, 4
    s_cselect_b32 s75, 4, 20
    """)
    for q in range(5):
        a.I(f"""
        v_add_u32 v2, {64*q}, v1
        v_mul_u32_u24 v3, 6554, v2
        v_lshrrev_b32 v3, 16, v3
        v_mul_u32_u24 v4, 10, v3
        v_sub_u32 v4, v2, v4
        v_lshlrev_b32 v4, 4, v4
        v_add_u32 v4, s73, v4
        v_lshrrev_b32 v5, 4, v3
        v_mul_u32_u24 v6, s74, v5
        v_add_u32 v6, v6, v3
        v_mul_u32_u24 v6, 1280, v6
        v_add_u32 v{V_WM+q}, v6, v4
        v_lshlrev_b32 v5, 1, v5
        v_bfe_u32 v6, v3, 2, 1
        v_add_u32 v5, v5, v6
        v_mul_u32_u24 v5, 40, v5
        v_bfe_u32 v6, v3, 3, 1
        v_mul_u32_u24 v6, s75, v6
        v_add_u32 v5, v5, v6
        v_and_b32 v6, 3, v3
        v_add3_u32 v5, v5, v6, 16
        v_mul_u32_u24 v5, 1280, v5
        v_add_u32 v{V_WM+5+q}, v5, v4
        """)
    a.I("s_waitcnt vmcnt(0) lgkmcnt(0)")
    a.I("s_barrier")
    nokv = a.newlabel("k23_nokv")
    a.I("s_cmp_ge_u32 s82, 3")
    a.I(f"s_cbranch_scc1 {nokv}")
    a.I(f"""
    s_mul_i32 s40, s20, {3*NKB}
    s_add_u32 s40, s40, s82
    s_lshl_b32 s40, s40, 10
    s_add_u32 s40, s40, {WS_KVP}
    """)
    for i in range(NKB):
        a.I(f"buffer_load_dwordx4 {v(VR+4*i,4)}, v8, s[16:19], s40 offen")
        if i < NKB - 1: a.I("s_add_u32 s40, s40, 3072")
    for i in range(1, NKB):
        a.I(f"s_waitcnt vmcnt({NKB-1-i})")
        for k in range(4): a.I(f"v_add_f32 v{VR+k}, v{VR+k}, v{VR+4*i+k}")
    a.I(f"v_cvt_pk_bf16_f32 v{VR}, v{VR}, v{VR+1}")
    a.I(f"v_cvt_pk_bf16_f32 v{VR+1}, v{VR+2}, v{VR+3}")
    a.I(f"""
    s_lshl_b32 s41, s82, 3
    s_add_u32 s41, s41, {LKV}
    v_add_u32 v14, s41, v8
    v_lshlrev_b32 v15, 3, v1
    v_add_u32 v15, {LKV + 1024}, v15
    s_cmp_eq_u32 s82, 2
    s_cselect_b64 s[46:47], -1, 0
    v_cndmask_b32 v14, v14, v15, s[46:47]
    """)
    a.I(f"ds_write_b64 v14, {v(VR,2)}")
    a.I(f"""
    s_lshl_b32 s41, s82, 2
    s_add_u32 s41, s41, {LKF}
    v_mov_b32 v14, s41
    v_mov_b32 v15, 1
    """)
    a.I("s_waitcnt lgkmcnt(0)")
    a.I("ds_write_b32 v14, v15")
    a.L(nokv)
    pf.stamp("h_kv")
    a.I(f"""
    s_mul_i32 s76, s82, 51200
    s_mul_i32 s78, s82, 204800
    s_mul_i32 s79, s82, 5120
    s_add_u32 s79, s79, {LW}
    """)
    for g in range(5):
        for q in range(5):
            a.I(f"s_add_u32 m0, s79, {g*4*5120 + q*1024}")
            if g < 4:
                if q == 0 and g > 0: a.I(f"s_add_u32 s76, s76, {4*51200}")
                a.I(f"buffer_load_dwordx4 v{V_WM+q}, s[8:11], s76 offen lds")
            else:
                a.I(f"buffer_load_dwordx4 v{V_WM+5+q}, s[8:11], s78 offen lds")
    pf.stamp("h_wo")
    if SPLIT_FLAGS:
        lnf = a.newlabel("k23_hnf"); lp = a.newlabel("k23_hp"); lok = a.newlabel("k23_hok")
        a.I("s_cmp_lg_u32 s82, 3")
        a.I(f"s_cbranch_scc1 {lnf}")
        a.I(f"v_mov_b32 v14, {LKF + 12}")
        a.I("s_mov_b32 s24, 0")
        a.L(lp)
        a.I("ds_read_b32 v15, v14")
        a.I("s_add_u32 s24, s24, 1")
        a.I("s_waitcnt lgkmcnt(0)")
        a.I("v_cmp_ne_u32 s[46:47], 8, v15")
        a.I("s_cmp_eq_u64 s[46:47], 0")
        a.I(f"s_cbranch_scc1 {lok}")
        a.I("s_sleep 1")
        a.I("s_cmp_lt_u32 s24, 0x100000")
        a.I(f"s_cbranch_scc1 {lp}")
        a.L(lok)
        a.I(f"""
        s_lshl_b32 s23, s21, 5
        s_add_u32 s23, s23, s20
        s_add_u32 s23, s23, 256
        s_lshl_b32 s23, s23, {FLAG_SH}
        s_add_u32 s23, s23, {WS_FLAG}
        v_mov_b32 v14, s23
        v_mov_b32 v15, 1
        s_mov_b64 exec, 1
        """)
        a.I("buffer_store_dword v15, v14, s[16:19], 0 offen sc1")
        a.I("s_mov_b64 exec, -1")
        a.L(lnf)
    a.I("s_waitcnt vmcnt(0) lgkmcnt(0)")
    a.I("s_barrier")
    pf.finish(16, 22)
    a.I("s_endpgm")

def gen_k2(a, name):
    a.raw(f".globl {name}\n.p2align 8\n.type {name},@function")
    a.L(name)
    le = a.newlabel("k2_end")
    a.I("s_cmp_ge_u32 s2, 256")
    a.I(f"s_cbranch_scc1 {le}")
    pf = Prof(a, 1); pf.start()
    a.I("s_load_dwordx2 s[28:29], s[0:1], 64")
    a.I("s_load_dwordx4 s[4:7], s[0:1], 40")
    a.I("s_load_dwordx2 s[12:13], s[0:1], 16")
    a.I("""
    s_and_b32 s3, s2, 7
    s_lshr_b32 s30, s2, 3
    s_lshr_b32 s62, s3, 2
    s_and_b32 s63, s3, 3
    s_lshl_b32 s63, s63, 2
    s_and_b32 s23, s30, 3
    s_add_u32 s63, s63, s23
    s_lshr_b32 s72, s30, 2
    """)
    a.I("""
    s_mov_b32 s3, s2
    s_and_b32 s20, s3, 7
    s_lshr_b32 s23, s3, 6
    s_lshl_b32 s23, s23, 3
    s_add_u32 s20, s20, s23
    s_lshr_b32 s21, s3, 3
    s_and_b32 s21, s21, 7
    v_lshrrev_b32 v12, 6, v0
    v_and_b32 v1, 63, v0
    """)
    a.I("v_readfirstlane_b32 s22, v12")
    a.I("""
    s_lshl_b32 s24, s20, 6
    s_lshl_b32 s23, s21, 3
    s_add_u32 s24, s24, s23
    s_cmp_eq_u32 s21, 0
    s_cselect_b32 s23, 0, 8
    s_sub_u32 s25, s24, s23
    s_add_u32 s26, s24, s22
    v_lshlrev_b32 v8, 4, v1
    v_lshrrev_b32 v11, 5, v1
    v_and_b32 v12, 31, v1
    s_mul_i32 s36, s26, 1280
    """)
    q_addr4(a, 10, 9)
    a.I("s_waitcnt lgkmcnt(0)")
    pf.stamp('kernarg')
    srd(a, 16, 28, 29, WS_REC, WS0)
    a.I("s_cmp_eq_u32 s62, 0")
    a.I("s_cselect_b32 s4, s12, s4")
    a.I("s_cselect_b32 s5, s13, s5")
    srd(a, 8, 4, 5, 819200)
    srd(a, 12, 6, 7, 5242880)
    a.I("s_mul_i32 s73, s72, 160")
    lh = a.newlabel("k23_attn")
    n0 = (pf.n, list(pf.names))
    a.I("s_cmp_lt_u32 s22, 8")
    a.I(f"s_cbranch_scc1 {lh}")
    helper_wave(a, pf)
    pf.n, pf.names = n0[0], list(n0[1])
    a.L(lh)
    a.I(f"v_mov_b32 v{VQT}, 0")
    a.I(f"v_mov_b32 v{VQT+1}, 0")
    a.I(f"buffer_load_dwordx4 {v(VQM,4)}, v10, s[16:19], 0 offen")
    a.I("s_mov_b32 exec_hi, 0")
    a.I(f"buffer_load_dwordx2 {v(VQT,2)}, v9, s[16:19], 0 offen offset:1024")
    a.I("s_mov_b32 exec_hi, -1")
    pf.stamp("issued")
    a.I("v_cmp_gt_u32 s[38:39], 32, v1")
    kappa_code(a, 12, 13, 14)
    a.I(f"""
    s_mul_i32 s41, s22, 1280
    v_and_b32 v14, 15, v13
    v_lshlrev_b32 v14, 4, v14
    v_lshrrev_b32 v15, 4, v13
    v_lshl_add_u32 v14, v15, 3, v14
    v_add_u32 v{VAKT}, s41, v14
    v_lshl_add_u32 v{VAKM}, v11, 8, v{VAKT}
    """)
    a.I(f"""
    v_mul_u32_u24 v15, 320, v11
    v_lshl_add_u32 v14, v12, 4, v15
    s_add_u32 s41, s41, {LV}
    v_add_u32 v{VAV}, s41, v14
    """)
    out_addr(a, "s26")
    for k in range(8): a.I(f"v_mov_b32 v{VV[0]+k}, 0x3f803f80")
    def make_mask(first):
        a.I(f"""
        v_lshlrev_b32 v14, 2, v11
        v_sub_u32 v14, v12, v14
        v_mov_b32 v15, {NEG_INF:#x}
        """)
        for r in range(16):
            pr = 46 + 2*(r & 1)
            a.I(f"v_cmp_gt_i32 s[{pr}:{pr+1}], {key_of_reg(r)}, v14")
            if first: a.I(f"v_cndmask_b32 v{VC+r}, v15, 0, s[{pr}:{pr+1}]")
            else:     a.I(f"v_cndmask_b32 v{VC+r}, 0, v15, s[{pr}:{pr+1}]")
    l0 = a.newlabel("k2_r0"); l1 = a.newlabel("k2_r1")
    a.I("s_mov_b32 s27, 0")
    a.I("s_cmp_lg_u32 s21, 0")
    a.I(f"s_cbranch_scc1 {l0}")
    a.I("s_sub_u32 s27, 8, s22")
    for r in range(16): a.I(f"v_mov_b32 v{VC+r}, {NEG_INF:#x}")
    a.I(f"s_branch {l1}")
    a.L(l0)
    make_mask(True)
    a.L(l1)
    pf.stamp("masks")
    a.I("s_waitcnt vmcnt(0)")
    a.I("s_barrier")
    q_swap(a, VQM)
    a.I(f"""
    s_and_b32 s44, s20, 1
    s_lshl_b32 s45, s44, 8
    s_add_u32 s45, s45, {WS_PQ}
    s_xor_b32 s46, s44, 1
    s_lshl_b32 s46, s46, 10
    s_add_u32 s46, s46, {WS_PQ}
    v_mov_b32 v{VPQT}, 0
    v_mov_b32 v{VPQT+1}, 0
    """)
    a.I(f"buffer_load_dwordx4 {v(VPQM,4)}, v10, s[16:19], s45 offen")
    a.I("s_mov_b32 exec_hi, 0")
    a.I(f"buffer_load_dwordx2 {v(VPQT,2)}, v9, s[16:19], s46 offen")
    a.I("s_mov_b32 exec_hi, -1")
    pf.stamp("first")
    def rdK(i):
        a.I(f"ds_read_b64 {v(VKM[i&1],2)}, v{VAKM} offset:{LK + i*1280}")
        a.I(f"ds_read_b64 {v(VKM[i&1]+2,2)}, v{VAKM} offset:{LK + i*1280 + 512}")
        a.I(f"ds_read_b64 {v(VKT[i&1],2)}, v{VAKT} offset:{LK + i*1280 + 1024}")
    def rdV(i):
        a.I(f"s_mov_b32 exec_lo, {MASK20[0]:#x}")
        a.I(f"s_mov_b32 exec_hi, {MASK20[1]:#x}")
        a.I(f"ds_read_b128 {v(VV[0],4)}, v{VAV} offset:{i*1280}")
        a.I(f"ds_read_b128 {v(VV[1],4)}, v{VAV} offset:{i*1280 + 640}")
        a.I("s_mov_b64 exec, -1")
    def qk1(i, wn=0):
        S = VS[i & 1]
        a.I(f"s_waitcnt lgkmcnt({wn})")
        if i == 0 or i == 8:
            a.I(f"v_mfma_f32_32x32x16_bf16 {v(S,16)}, {v(VKM[i&1],4)}, {v(VQM,4)}, {v(VC,16)}")
        else:
            ln = a.newlabel("k2_neg"); lj = a.newlabel("k2_join")
            a.I(f"s_cmp_gt_u32 s27, {i}")
            a.I(f"s_cbranch_scc1 {ln}")
            a.I(f"v_mfma_f32_32x32x16_bf16 {v(S,16)}, {v(VKM[i&1],4)}, {v(VQM,4)}, 0")
            a.I(f"s_branch {lj}")
            a.L(ln)
            a.I(f"v_mfma_f32_32x32x16_bf16 {v(S,16)}, {v(VKM[i&1],4)}, {v(VQM,4)}, {v(VC,16)}")
            a.L(lj)
    def qk2(i):
        S = VS[i & 1]
        a.I(f"v_mfma_f32_32x32x8bf16_1k {v(S,16)}, {v(VKT[i&1],2)}, {v(VQT,2)}, {v(S,16)}")
    def qk(i, wn=0):
        qk1(i, wn); qk2(i)
    PR = os.environ.get("K2_PRIO", "")
    if PR == "a": a.I("s_setprio 1")
    if PR == "y":
        lpz = a.newlabel("k23_prio")
        a.I("s_cmp_lt_u32 s22, 4")
        a.I(f"s_cbranch_scc1 {lpz}")
        a.I("s_setprio 1")
        a.L(lpz)
    rdK(0); rdK(1); rdV(0)
    qk(0, 5)
    def a_apply():
        AO = VR
        a.I("s_waitcnt vmcnt(0)")
        q_swap(a, VPQM)
        lp = a.newlabel("k23_kvw"); lok = a.newlabel("k23_kvok")
        a.I(f"v_mov_b32 v14, {LKF}")
        a.I("s_mov_b32 s24, 0")
        a.L(lp)
        a.I(f"ds_read_b128 {v(AO,4)}, v14")
        a.I("s_add_u32 s24, s24, 1")
        a.I("s_waitcnt lgkmcnt(0)")
        a.I(f"v_and_b32 v{AO}, v{AO}, v{AO+1}")
        a.I(f"v_and_b32 v{AO}, v{AO}, v{AO+2}")
        a.I(f"v_cmp_ne_u32 s[46:47], 1, v{AO}")
        a.I("s_cmp_eq_u64 s[46:47], 0")
        a.I(f"s_cbranch_scc1 {lok}")
        a.I("s_cmp_lt_u32 s24, 0x100000")
        a.I(f"s_cbranch_scc1 {lp}")
        a.L(lok)
        a.I(f"v_lshlrev_b32 v14, 4, v1")
        a.I(f"v_lshlrev_b32 v15, 3, v1")
        a.I(f"ds_read_b128 {v(VKVM,4)}, v14 offset:{LKV}")
        a.I(f"ds_read_b64 {v(VKVT,2)}, v15 offset:{LKV+1024}")
        a.I(f"s_mov_b32 s43, {f2u(1e-6):#x}")
        a.I(f"s_mov_b32 s61, {WS_OA}")
        a.I("s_waitcnt lgkmcnt(0)")
        a.I(f"v_mfma_f32_32x32x16_bf16 {v(AO,16)}, {v(VKVM,4)}, {v(VPQM,4)}, 0")
        a.I(f"v_mfma_f32_32x32x8bf16_1k {v(AO,16)}, {v(VKVT,2)}, {v(VPQT,2)}, {v(AO,16)}")
    def a_store():
        normalize_store(a, VR, VR + 16, True, "s61")
    SPREAD = os.environ.get("K2_SPREAD", "0") == "1"
    for i in range(9):
        S = VS[i & 1]
        if i == 7:
            if os.environ.get("K2_XORMASK", "1") == "1":
                lr0 = a.newlabel("k2_m0"); lr1 = a.newlabel("k2_m1")
                a.I("s_cmp_eq_u32 s21, 0")
                a.I(f"s_cbranch_scc1 {lr0}")
                for r in range(16): a.I(f"v_xor_b32 v{VC+r}, {NEG_INF:#x}, v{VC+r}")
                a.I(f"s_branch {lr1}")
                a.L(lr0)
                make_mask(False)
                a.L(lr1)
            else:
                make_mask(False)
        if i == AI: a_apply()
        if i < 8 and not SPREAD:
            qk(i+1, 2)
            if i + 2 <= 8: rdK(i+2)
        if i == AI: a_store()
        for hfs in range(2):
            for k in range(8): a.I(f"v_exp_f32 v{S+8*hfs+k}, v{S+8*hfs+k}")
            if SPREAD and i < 8:
                if hfs == 0: qk1(i+1, 2)
                else:
                    qk2(i+1)
                    if i + 2 <= 8: rdK(i+2)
            for k in range(4): a.I(f"v_cvt_pk_bf16_f32 v{VP+4*hfs+k}, v{S+8*hfs+2*k}, v{S+8*hfs+2*k+1}")
            if hfs == 0: a.I(f"s_waitcnt lgkmcnt({(0 if SPREAD else 3) if i + 2 <= 8 else 0})")
            c = "0" if (i == 0 and hfs == 0) else v(VO,16)
            a.I(f"v_mfma_f32_32x32x16_bf16 {v(VO,16)}, {v(VV[hfs],4)}, {v(VP+4*hfs,4)}, {c}")
        if i < 8: rdV(i+1)
        if SPLIT_FLAGS and i == 8:
            a.I("s_waitcnt vmcnt(0)")
            a.I(f"v_mov_b32 v14, {LKF + 12}")
            a.I("v_mov_b32 v15, 1")
            a.I("s_mov_b64 exec, 1")
            a.I("ds_add_u32 v14, v15")
            a.I("s_mov_b64 exec, -1")
            a.I("s_waitcnt lgkmcnt(0)")
    pf.stamp("mainend")
    slow = a.newlabel("k2_slow"); fin = a.newlabel("k2_fin")
    def check():
        a.I(f"v_mov_b32 v9, 0")
        for i in range(12): a.I(f"v_fma_f32 v9, v{VO+i}, 0, v9")
        a.I(f"s_mov_b32 s50, {f2u(2.0**-64):#x}")
        a.I(f"s_mov_b32 s51, {f2u(2.0**64):#x}")
        a.I(f"v_cmp_nge_f32 s[52:53], v{VL}, s50")
        a.I(f"v_cmp_nle_f32 s[54:55], v{VL}, s51")
        a.I(f"v_cmp_u_f32 s[56:57], v9, v9")
        a.I("s_or_b64 s[52:53], s[52:53], s[54:55]")
        a.I("s_or_b64 s[52:53], s[52:53], s[56:57]")
        a.I("s_cmp_lg_u64 s[52:53], 0")
        if os.environ.get("FORCE_SLOW") == "1": a.I("s_cmp_eq_u32 s22, s22")
        a.I(f"s_cbranch_scc1 {slow}")
        a.L(fin)
    a.I(f"s_mov_b32 s60, {WS_OB}")
    normalize_store(a, VO, VP, False, "s60", 0, check)
    pf.stamp("bstore")
    projection_setup(a)
    a.I("s_waitcnt vmcnt(0)")
    a.I("s_barrier")
    lrest = a.newlabel("k23_rest"); lgo = a.newlabel("k23_go"); lto = a.newlabel("k23_touch")
    a.I("s_cmp_ge_u32 s22, 4")
    a.I(f"s_cbranch_scc1 {lrest}")
    lnp = a.newlabel("k23_noflag")
    a.I("s_cmp_lg_u32 s22, 0")
    a.I(f"s_cbranch_scc1 {lnp}")
    a.I(f"""
    s_lshl_b32 s23, s21, 5
    s_add_u32 s23, s23, s20
    s_lshl_b32 s23, s23, {FLAG_SH}
    s_add_u32 s23, s23, {WS_FLAG}
    v_mov_b32 v8, s23
    v_mov_b32 v9, 1
    s_mov_b64 exec, 1
    """)
    a.I("buffer_store_dword v9, v8, s[16:19], 0 offen sc1")
    a.I("s_mov_b64 exec, -1")
    a.L(lnp)
    if not POLL_ALL:
        lnq = a.newlabel("k23_nopoll")
        a.I("s_cmp_lg_u32 s22, 0")
        a.I(f"s_cbranch_scc1 {lnq}")
    a.I(f"""
    s_lshr_b32 s23, s63, 1
    s_xor_b32 s24, s62, 1
    s_mul_i32 s24, s24, {8 if SPLIT_FLAGS else 0}
    s_add_u32 s23, s23, s24
    s_lshl_b32 s23, s23, {5 + FLAG_SH}
    s_add_u32 s23, s23, {WS_FLAG}
    v_and_b32 v8, 31, v1
    v_lshlrev_b32 v8, {FLAG_SH}, v8
    v_add_u32 v8, s23, v8
    s_mov_b32 s24, 0
    """)
    lp = a.newlabel("k23_poll"); lok = a.newlabel("k23_ok")
    a.L(lp)
    a.I("buffer_load_dword v9, v8, s[16:19], 0 offen sc1")
    a.I("s_add_u32 s24, s24, 1")
    a.I("s_waitcnt vmcnt(0)")
    a.I("v_cmp_ne_u32 s[46:47], 1, v9")
    a.I("s_cmp_eq_u64 s[46:47], 0")
    a.I(f"s_cbranch_scc1 {lok}")
    a.I(f"s_sleep {POLL_SLEEP}")
    a.I("s_cmp_lt_u32 s24, 0x8000")
    a.I(f"s_cbranch_scc1 {lp}")
    a.L(lok)
    if not POLL_ALL:
        a.L(lnq)
        a.I("s_barrier")
    pf.stamp("synced")
    projection(a, pf)
    a.L(lrest)
    if PROFILE: a.I("s_waitcnt vmcnt(0)")
    pf.finish(16, 22)
    a.I("s_endpgm")
    a.L(slow)
    a.I("s_waitcnt vmcnt(0)")
    S = VS[0]
    def slow_scores():
        lm = a.newlabel("k2s_m"); lf = a.newlabel("k2s_f"); ll = a.newlabel("k2s_l"); ln = a.newlabel("k2s_n"); lj = a.newlabel("k2s_j")
        a.I(f"s_mul_i32 s59, s58, 1280")
        a.I(f"v_add_u32 v9, s59, v{VAKM}")
        a.I(f"v_add_u32 v10, s59, v{VAKT}")
        a.I(f"ds_read_b64 {v(VKM[0],2)}, v9 offset:{LK}")
        a.I(f"ds_read_b64 {v(VKM[0]+2,2)}, v9 offset:{LK+512}")
        a.I(f"ds_read_b64 {v(VKT[0],2)}, v10 offset:{LK+1024}")
        a.I("s_cmp_eq_u32 s58, 8")
        a.I(f"s_cbranch_scc1 {ll}")
        a.I("s_cmp_gt_u32 s27, s58")
        a.I(f"s_cbranch_scc1 {ln}")
        a.I("s_cmp_eq_u32 s58, 0")
        a.I(f"s_cbranch_scc1 {lf}")
        for r in range(16): a.I(f"v_mov_b32 v{VC+r}, 0")
        a.I(f"s_branch {lj}")
        a.L(ln)
        for r in range(16): a.I(f"v_mov_b32 v{VC+r}, {NEG_INF:#x}")
        a.I(f"s_branch {lj}")
        a.L(lf)
        make_mask(True)
        a.I(f"s_branch {lj}")
        a.L(ll)
        make_mask(False)
        a.L(lj)
        a.I("s_waitcnt lgkmcnt(0)")
        a.I("s_nop 1")
        a.I(f"v_mfma_f32_32x32x16_bf16 {v(S,16)}, {v(VKM[0],4)}, {v(VQM,4)}, {v(VC,16)}")
        a.I(f"v_mfma_f32_32x32x8bf16_1k {v(S,16)}, {v(VKT[0],2)}, {v(VQT,2)}, {v(S,16)}")
        a.I("s_nop 15")
    VM = 13
    a.I(f"v_mov_b32 v{VM}, {NEG_INF:#x}")
    a.I("s_mov_b32 s58, 0")
    lp1 = a.newlabel("k2s_p1")
    a.L(lp1)
    slow_scores()
    for r in range(16): a.I(f"v_max_f32 v{VM}, v{VM}, v{S+r}")
    a.I("s_add_u32 s58, s58, 1")
    a.I("s_cmp_le_u32 s58, 8")
    a.I(f"s_cbranch_scc1 {lp1}")
    a.I(f"v_mov_b32 v9, v{VM}")
    a.I("s_nop 1")
    a.I(f"v_permlane32_swap_b32 v9, v{VM}")
    a.I("s_nop 1")
    a.I(f"v_max_f32 v{VM}, v{VM}, v9")
    for r in range(16): a.I(f"v_mov_b32 v{VO+r}, 0")
    a.I("s_mov_b32 s58, 0")
    lp2 = a.newlabel("k2s_p2")
    a.L(lp2)
    slow_scores()
    a.I(f"s_mul_i32 s59, s58, 1280")
    a.I(f"v_add_u32 v9, s59, v{VAV}")
    a.I(f"s_mov_b32 exec_lo, {MASK20[0]:#x}")
    a.I(f"s_mov_b32 exec_hi, {MASK20[1]:#x}")
    a.I(f"ds_read_b128 {v(VV[0],4)}, v9")
    a.I(f"ds_read_b128 {v(VV[1],4)}, v9 offset:640")
    a.I("s_mov_b64 exec, -1")
    for r in range(16): a.I(f"v_sub_f32 v{S+r}, v{S+r}, v{VM}")
    for r in range(16): a.I(f"v_exp_f32 v{S+r}, v{S+r}")
    a.I("s_nop 0")
    for k in range(8): a.I(f"v_cvt_pk_bf16_f32 v{VP+k}, v{S+2*k}, v{S+2*k+1}")
    a.I("s_waitcnt lgkmcnt(0)")
    a.I("s_nop 1")
    for hfs in range(2):
        a.I(f"v_mfma_f32_32x32x16_bf16 {v(VO,16)}, {v(VV[hfs],4)}, {v(VP+4*hfs,4)}, {v(VO,16)}")
    a.I("s_nop 15")
    a.I("s_add_u32 s58, s58, 1")
    a.I("s_cmp_le_u32 s58, 8")
    a.I(f"s_cbranch_scc1 {lp2}")
    a.I(f"v_cndmask_b32 v{VL}, v{VO+8}, v{VO+12}, s[38:39]")
    a.I("s_nop 1")
    a.I(f"s_branch {fin}")
    a.L(le)
    a.I("s_endpgm")
    a.raw(kd(name, K2_VGPRS))
```

```python
from common import *

WB = 0; XB = 61440
K1_LDS = XB + 3*32768
KVD = XB + 32768
STAMPS = eval(os.environ.get('K1_STAMPS', '(4, 10, 16)'))
V_TX=2; V_TW=3; V_TD=4
V_T=5
V_XR=10; V_XR2=12
V_F=16
V_ACC=88
V_A=152
K1_VGPRS=168
NCOL = {"row": 4, "col": 4, "kv": 5}
def acc(kind, i, j): return V_ACC + (i*NCOL[kind] + j)*4
def fx(n, i): return V_F + (n & 1)*36 + i*4
def fw(n, j): return V_F + (n & 1)*36 + 16 + j*4
WST = {"row": 16384, "col": 16384, "kv": 20480}
WROW = {"row": 256, "col": 256, "kv": 320}

def main_loop(a, kind, pf):
    nc = NCOL[kind]; wst = WST[kind]; wr_ = WROW[kind]
    def reads(n):
        b, sp = n >> 1, n & 1
        st = b % 3
        xb = (V_XR2 if st == 2 else V_XR) + sp
        xo = 0 if st == 2 else st*32768
        def rw(j):
            off = WB + st*wst + sp*32*wr_
            return [f"ds_read_b64_tr_b16 {v(fw(n,j),2)}, v{V_T+j} offset:{off}",
                    f"ds_read_b64_tr_b16 {v(fw(n,j)+2,2)}, v{V_T+j} offset:{off+4*wr_}"]
        def rx(i): return [f"ds_read_b128 {v(fx(n,i),4)}, v{xb} offset:{xo + i*2048}"]
        out = []
        for k in range(4): out += rw(k) + rx(k)
        if nc == 5: out += rw(4)
        return out
    sched = eval(os.environ.get("K1_TOUCH", "{-1:[0,1,2,3]}"))
    tw = [0]
    seen = {}
    def do_touch(k):
        for b in sched.get(k, []):
            if isinstance(b, tuple):
                touch(a, b[0], seen[b[1]], True); seen[b[0]] = seen[b[1]]
            else:
                touch(a, b, tw[0] % 8); seen[b] = tw[0] % 8; tw[0] += 1
    if os.environ.get("K1_EARLY", "1") != "1": touch_setup(a)
    do_touch(-1)
    yield "prologue"
    do_touch(-0.5)
    a.I("s_barrier")
    do_touch(0)
    pf.stamp("first")
    for t in reads(0): a.I(t)
    for n in range(20):
        b, sp = n >> 1, n & 1
        if n in STAMPS: pf.stamp(f"n{n}")
        a.I("s_waitcnt lgkmcnt(0)")
        if sp == 1 and b + 1 <= 9:
            a.I("s_barrier")
            do_touch(b + 1)
        rd = reads(n+1) if n < 19 else []
        for k in range(4*nc):
            i, j = divmod(k, nc)
            d = v(acc(kind, i, j), 4); c = "0" if n == 0 else d
            if kind == "kv" and k == 15:
                lskip = a.newlabel("k1_kv3")
                a.I("s_cmp_ge_u32 s36, 2")
                a.I(f"s_cbranch_scc1 {lskip}")
            if kind == "row": a.I(f"v_mfma_f32_16x16x32_bf16 {d}, {v(fw(n,j),4)}, {v(fx(n,i),4)}, {c}")
            else:             a.I(f"v_mfma_f32_16x16x32_bf16 {d}, {v(fx(n,i),4)}, {v(fw(n,j),4)}, {c}")
            if k < len(rd): a.I(rd[k])
        if kind == "kv": a.L(lskip)

def loader_wave(a, kv, pf, lph2=None):
    nx = 7 if kv else 8
    a.I(f"""
    s_sub_u32 s24, s22, 8
    s_mov_b32 s63, s24
    v_lshrrev_b32 v13, 3, v1
    v_and_b32 v14, 7, v1
    v_lshrrev_b32 v15, 1, v13
    v_xor_b32 v14, v14, v15
    s_mul_i32 s23, s20, {32*nx}
    s_mul_i32 s25, s24, {8*nx}
    s_add_u32 s23, s23, s25
    v_add_u32 v13, s23, v13
    v_mul_u32_u24 v13, 1280, v13
    v_lshl_add_u32 v2, v14, 4, v13
    s_mul_i32 s26, s24, {1024*nx}
    s_add_u32 s26, s26, {XB}
    """)
    if kv:
        a.I("s_and_b32 s25, s24, 1")
        a.I("s_lshl_b32 s25, s25, 6")
        a.I("v_xor_b32 v2, s25, v2")
    a.I("v_xor_b32 v3, 64, v2")
    ROT = os.environ.get("K1_ROT", "0") == "1"
    a.I("s_and_b32 s42, s20, 3")
    a.I("s_mul_i32 s42, s42, 3")
    a.I("s_add_u32 s42, s42, s34b".replace("s34b", "s62"))
    a.I("s_cmp_ge_u32 s42, 10")
    a.I("s_cselect_b32 s43, 10, 0")
    a.I("s_sub_u32 s42, s42, s43")
    if not ROT: a.I("s_mov_b32 s42, 0")
    def kregs():
        a.I("s_lshl_b32 s44, s42, 7")
        a.I("s_mul_i32 s45, s42, 245760")
        a.I("s_add_u32 s42, s42, 1")
        a.I("s_cmp_eq_u32 s42, 10")
        a.I("s_cselect_b32 s42, 0, s42")
    def dx(st, qq):
        a.I(f"s_add_u32 m0, s26, {st*32768 + qq*1024}")
        a.I(f"s_add_u32 s35, s44, {qq*10240}")
        a.I(f"buffer_load_dwordx4 v{3 if qq & 1 else 2}, s[8:11], s35 offen lds")
    if os.environ.get("LD_PRIO"): a.I(f"s_setprio {os.environ['LD_PRIO']}")
    kregs()
    for qq in range(nx): dx(0, qq)
    if not kv:
        a.I(f"""
        v_lshrrev_b32 v13, 4, v1
        v_lshlrev_b32 v14, 1, v13
        v_and_b32 v15, 15, v1
        v_xor_b32 v14, v14, v15
        s_lshl_b32 s25, s24, 4
        v_add_u32 v13, s25, v13
        v_mul_u32_u24 v13, 3840, v13
        v_lshl_add_u32 v13, v14, 4, v13
        s_lshl_b32 s25, s21, 8
        v_add_u32 v4, s25, v13
        v_xor_b32 v5, 128, v4
        s_lshl_b32 s27, s24, 12
        s_add_u32 s27, s27, {WB}
        """)
        nw, wst = 4, 16384
        wreg = lambda q: 5 if q & 2 else 4
        woff = lambda q: q*15360
    else:
        tbl = 0
        for i, x in enumerate([0,1,3,4,5,6,8,9,2,7]): tbl |= x << (4*i)
        a.I(f"s_mov_b32 s32, {tbl & 0xffffffff:#x}")
        a.I(f"s_mov_b32 s33, {tbl >> 32:#x}")
        a.I("s_mul_i32 s23, s21, 160")
        a.I("s_add_u32 s23, s23, 1280")
        a.I("s_lshl_b32 s25, s24, 4")
        for q in range(5):
            a.I(f"""
            v_add_u32 v12, {64*q}, v1
            v_mul_u32_u24 v13, 3277, v12
            v_lshrrev_b32 v13, 16, v13
            v_mul_u32_u24 v14, 20, v13
            v_sub_u32 v14, v12, v14
            v_lshrrev_b32 v15, 3, v13
            v_lshlrev_b32 v15, 1, v15
            v_xor_b32 v14, v14, v15
            v_cmp_le_u32 s[36:37], 10, v14
            v_cndmask_b32 v15, 0, 10, s[36:37]
            v_sub_u32 v14, v14, v15
            v_lshlrev_b32 v14, 2, v14
            v_lshrrev_b64 v[16:17], v14, s[32:33]
            v_and_b32 v16, 15, v16
            v_lshlrev_b32 v15, 3, v15
            v_lshl_add_u32 v15, v16, 4, v15
            v_cmp_le_u32 s[36:37], 5, v16
            v_mov_b32 v17, 1200
            v_cndmask_b32 v17, 0, v17, s[36:37]
            v_add_u32 v13, s25, v13
            v_mul_u32_u24 v13, 3840, v13
            v_add3_u32 v13, v13, v15, v17
            v_add_u32 v{4+q}, s23, v13
            """)
        a.I("s_mul_i32 s27, s24, 5120")
        nw, wst = 5, 20480
        wreg = lambda q: 4 + q
        woff = lambda q: 0
    def dw(st, qq):
        a.I(f"s_add_u32 m0, s27, {st*wst + qq*1024}")
        if woff(qq):
            a.I(f"s_add_u32 s35, s45, {woff(qq)}")
            a.I(f"buffer_load_dwordx4 v{wreg(qq)}, s[12:15], s35 offen lds")
        else:
            a.I(f"buffer_load_dwordx4 v{wreg(qq)}, s[12:15], s45 offen lds")
    def issue_stage(b):
        st = b % 3
        if b == 0:
            for q in range(nw): dw(st, q)
            return
        kregs()
        for q in range(4):
            dw(st, q); dx(st, 2*q)
            if 2*q+1 < nx: dx(st, 2*q+1)
        if nw == 5: dw(st, 4)
    per = nx + nw
    LT = eval(os.environ.get("K1_LTOUCH", "{1:4, 3:6, 5:8}"))
    vm = VmTrack()
    def stage(b):
        issue_stage(b)
        for _ in range(per): vm.add(("S", b))
    stage(0)
    pf.stamp("l_iss0")
    stage(1)
    pf.stamp("l_iss1")
    if LT:
        touch_setup(a, 10, 11)
        a.I("s_bitcmp1_b32 s24l, 1".replace("s24l", "s63"))
        a.I("s_cselect_b32 s60, 1, 0")
    for b in range(0, 10):
        n, _ = vm.wait_n(lambda t: t == ("S", b))
        a.I(f"s_waitcnt vmcnt({n})")
        if b <= 2: pf.stamp(f"l_land{b}")
        a.I("s_barrier")
        if b + 2 <= 9: stage(b + 2)
        if b in LT:
            lw = a.newlabel("k1_ltw"); lj = a.newlabel("k1_ltj")
            a.I(f"s_add_u32 s59, s60, {LT[b]}")
            a.I("s_bitcmp1_b32 s63, 0")
            a.I(f"s_cbranch_scc1 {lw}")
            a.I("s_lshl_b32 s35, s59, 7")
            a.I("buffer_load_dword v12, v10, s[8:11], s35 offen")
            a.I(f"s_branch {lj}")
            a.L(lw)
            a.I("s_mul_i32 s35, s59, 245760")
            a.I("buffer_load_dword v12, v11, s[12:15], s35 offen")
            a.L(lj)
            vm.add(("T", b))
    a.I("s_waitcnt vmcnt(0)")
    if FUSED:
        counters_ready(a)
        if kv: a.I("s_barrier")
        phase2_args(a)
        a.I("s_barrier")
        a.I(f"s_branch {lph2}")
        return
    pf.finish(16, 22)
    a.I("s_endpgm")

def counters_ready(a):
    l0 = a.newlabel("k1_cnt0"); lp = a.newlabel("k1_cntp"); lok = a.newlabel("k1_cntok")
    a.I("s_cmp_lg_u32 s22, 8")
    a.I(f"s_cbranch_scc1 {l0}")
    a.I("v_and_b32 v14, 7, v1")
    a.I("v_lshlrev_b32 v14, 5, v14")
    a.I("s_mov_b32 s24, 0")
    a.L(lp)
    a.I("buffer_load_dword v15, v14, s[96:99], 0 offen sc1")
    a.I("s_add_u32 s24, s24, 1")
    a.I("s_waitcnt vmcnt(0)")
    a.I("v_cmp_gt_u32 s[46:47], 32, v15")
    a.I("s_cmp_eq_u64 s[46:47], 0")
    a.I(f"s_cbranch_scc1 {lok}")
    a.I("s_sleep 4")
    a.I("s_cmp_lt_u32 s24, 0x8000")
    a.I(f"s_cbranch_scc1 {lp}")
    a.L(lok)
    a.L(l0)

def phase2_args(a):
    a.I("s_load_dwordx4 s[88:91], s[0:1], 40")
    a.I("s_load_dwordx2 s[86:87], s[0:1], 16")

def touch_setup(a, V_TX=V_TX, V_TW=V_TW):
    a.I(f"""
    s_and_b32 s23, s3, 1
    s_lshl_b32 s23, s23, 10
    s_mul_i32 s24, s30, s54
    s_add_u32 s23, s23, s24
    v_add_u32 v13, s23, v1
    v_mul_u32_u24 v13, 1280, v13
    v_mov_b32 v14, {OOB:#x}
    v_cmp_gt_u32 s[48:49], s54, v1
    v_cndmask_b32 v{V_TX}, v14, v13, s[48:49]
    v_cmp_gt_u32 s[48:49], 32, v1
    v_and_b32 v15, 15, v1
    v_add_u32 v13, s50, v15
    v_mov_b32 v16, s52
    v_cmp_le_u32 s[36:37], s51, v15
    v_cndmask_b32 v16, 0, v16, s[36:37]
    v_cmp_le_u32 s[36:37], s53, v15
    v_cndmask_b32 v17, 0, 5, s[36:37]
    v_add3_u32 v13, v13, v16, v17
    v_lshlrev_b32 v13, 7, v13
    v_bfe_u32 v15, v1, 4, 1
    s_lshl_b32 s24, s30, 1
    v_add_u32 v15, s24, v15
    v_mul_u32_u24 v15, 3840, v15
    v_add_u32 v13, v13, v15
    v_cndmask_b32 v{V_TW}, v13, v14, s[48:49]
    """)
def touch_ops(a, b, d0=V_TD, d1=V_TD):
    a.I(f"buffer_load_dword v{d0}, v{V_TX}, s[8:11], 0 offen offset:{b*128}")
    a.I(f"s_mov_b32 s35, {b*245760}")
    a.I(f"buffer_load_dword v{d1}, v{V_TW}, s[12:15], s35 offen")
def touch(a, b, wave, wait=False):
    l = a.newlabel("k1_nt")
    a.I(f"s_cmp_lg_u32 s22, {wave}")
    a.I(f"s_cbranch_scc1 {l}")
    if wait: a.I("s_waitcnt vmcnt(0)")
    touch_ops(a, b)
    a.L(l)

def phi_regs(a, regs, tm):
    for q, r in enumerate(regs):
        for i in (0, 2): a.I(f"v_pk_mul_f32 {v(tm+4*q+i,2)}, {v(r+i,2)}, s[42:43]")
    for q, r in enumerate(regs):
        for i in range(4): a.I(f"v_exp_f32 v{tm+4*q+i}, v{tm+4*q+i} clamp")
    for q, r in enumerate(regs):
        for i in range(4): a.I(f"v_max_f32 v{r+i}, s44, v{r+i}")
    for q, r in enumerate(regs):
        for i in (0, 2): a.I(f"v_pk_add_f32 {v(r+i,2)}, {v(r+i,2)}, {v(tm+4*q+i,2)}")
def phi_consts(a):
    a.I(f"s_mov_b32 s42, {f2u(LOG2E):#x}")
    a.I(f"s_mov_b32 s43, {f2u(LOG2E):#x}")
    a.I(f"s_mov_b32 s44, {f2u(1e-6):#x}")
def pack(a, d, r0, r1):
    for rt, r in enumerate((r0, r1)):
        a.I(f"v_cvt_pk_bf16_f32 v{d+2*rt}, v{r}, v{r+1}")
        a.I(f"v_cvt_pk_bf16_f32 v{d+2*rt+1}, v{r+2}, v{r+3}")

def epilogue_flat(a, mode, sfx_):
    P = V_F + 16
    if mode == "phi": phi_consts(a)
    if mode == "scale":
        a.I(f"s_mov_b32 s42, {f2u(QSCALE):#x}")
        a.I(f"s_mov_b32 s43, {f2u(QSCALE):#x}")
    k = 0
    for p in range(2):
        for j in range(4):
            d = P + (k % 8)*4; tm = V_F + (k % 2)*8; k += 1
            regs = [acc("row", 2*p, j), acc("row", 2*p+1, j)]
            if mode == "phi": phi_regs(a, regs, tm)
            if mode == "scale":
                for q, r in enumerate(regs):
                    for i in (0, 2): a.I(f"v_pk_mul_f32 {v(r+i,2)}, {v(r+i,2)}, s[42:43]")
            pack(a, d, regs[0], regs[1])
            a.I(f"buffer_store_dwordx4 {v(d,4)}, v{V_A+j}, s[16:19], 0 offen offset:{p*1280}{sfx(sfx_)}")

def epilogue_kv(a, pf):
    PK0=V_F; PK1=V_F+4; VV0=V_F+8; VV1=V_F+12; T6P=V_F+16; T6O=V_F+20
    M = V_F + 24; tm = V_F + 56
    phi_consts(a)
    a.I("v_and_b32 v13, 15, v1")
    a.I("v_cmp_gt_u32 s[40:41], 8, v13")
    a.I("v_mov_b32 v14, 0x3f803f80")
    A = lambda i, t: acc("kv", i, t)
    pairs = [(PK0,VV0),(PK1,VV1),(PK0,T6O),(PK1,T6O),(T6P,VV0),(T6P,VV1),(T6P,T6O)]
    def rows32(i0, i1, first):
        pack(a, VV0, A(i0,2), A(i1,2)); pack(a, VV1, A(i0,3), A(i1,3))
        pack(a, T6O, A(i0,4), A(i1,4))
        for k in range(4): a.I(f"v_cndmask_b32 v{T6O+k}, v{T6O+k}, v14, s[40:41]")
        for t, dst in ((0, PK0), (1, PK1), (4, T6P)):
            phi_regs(a, [A(i0,t), A(i1,t)], tm)
            pack(a, dst, A(i0,t), A(i1,t))
        for k, (x, y) in enumerate(pairs):
            c = "0" if first else v(M+4*k,4)
            a.I(f"v_mfma_f32_16x16x32_bf16 {v(M+4*k,4)}, {v(x,4)}, {v(y,4)}, {c}")
    def rows16(i0):
        def pack1(d, r):
            a.I(f"v_cvt_pk_bf16_f32 v{d}, v{r}, v{r+1}")
            a.I(f"v_cvt_pk_bf16_f32 v{d+1}, v{r+2}, v{r+3}")
        pack1(VV0, A(i0,2)); pack1(VV1, A(i0,3)); pack1(T6O, A(i0,4))
        for k in range(2): a.I(f"v_cndmask_b32 v{T6O+k}, v{T6O+k}, v14, s[40:41]")
        for t, dst in ((0, PK0), (1, PK1), (4, T6P)):
            phi_regs(a, [A(i0,t)], tm)
            pack1(dst, A(i0,t))
        for k, (x, y) in enumerate(pairs):
            a.I(f"v_mfma_f32_16x16x16bf16_1k {v(M+4*k,4)}, {v(x,2)}, {v(y,2)}, {v(M+4*k,4)}")
    lz = a.newlabel("k1_kvz"); l16 = a.newlabel("k1_kv16"); lend = a.newlabel("k1_kvend")
    a.I("s_mul_i32 s45, s20, 224")
    a.I("s_add_u32 s45, s45, s63")
    a.I("s_cmp_ge_u32 s45, 2048")
    a.I(f"s_cbranch_scc1 {lz}")
    rows32(0, 1, True)
    a.I("s_add_u32 s45, s45, 32")
    a.I("s_cmp_ge_u32 s45, 2048")
    a.I(f"s_cbranch_scc1 {lend}")
    a.I("s_cmp_ge_u32 s36, 2")
    a.I(f"s_cbranch_scc1 {l16}")
    rows32(2, 3, False)
    a.I(f"s_branch {lend}")
    a.L(l16)
    rows16(2)
    a.I(f"s_branch {lend}")
    a.L(lz)
    for k in range(28): a.I(f"v_mov_b32 v{M+k}, 0")
    a.L(lend)
    pf.stamp("kvm")
    a.I("s_mul_i32 s45, s22, 7168")
    a.I(f"s_add_u32 s45, s45, {KVD}")
    a.I("v_lshlrev_b32 v12, 4, v1")
    a.I("v_add_u32 v12, s45, v12")
    for k in range(7): a.I(f"ds_write_b128 v12, {v(M+4*k,4)} offset:{k*1024}")
    R = V_F
    def task_addr(st, vL, vD):
        a.I(f"""
        s_cmp_ge_u32 {st}, 6
        s_cselect_b32 s54, 1, 0
        s_mul_i32 s55, s54, 6
        s_sub_u32 s55, {st}, s55
        s_cmp_ge_u32 s55, 3
        s_cselect_b32 s45, 1, 0
        s_mul_i32 s46, s45, 3
        s_sub_u32 s46, s55, s46
        v_lshrrev_b32 v13, 5, v1
        v_and_b32 v14, 31, v1
        s_lshl_b32 s47, s46, 1
        v_add_u32 v13, s47, v13
        v_mov_b32 v15, s45
        s_cmp_eq_u32 s46, 2
        s_cselect_b64 s[48:49], -1, 0
        v_cndmask_b32 v13, v13, v15, s[48:49]
        s_add_u32 s50, s45, 4
        s_add_u32 s51, s45, 2
        s_cmp_eq_u32 s46, 2
        s_cselect_b32 s50, s50, s45
        s_cselect_b32 s51, 6, s51
        v_mov_b32 v15, s51
        v_mov_b32 v{vD}, s50
        v_cmp_gt_u32 s[52:53], 16, v14
        v_cndmask_b32 v15, v15, v{vD}, s[52:53]
        s_lshl_b32 s56, s45, 2
        s_sub_u32 s56, s56, 8
        v_add_u32 v{vL}, s56, v14
        v_cmp_gt_u32 s[58:59], 20, v14
        v_cndmask_b32 v{vL}, 0, v{vL}, s[58:59]
        v_cndmask_b32 v{vL}, v{vL}, v14, s[52:53]
        v_lshl_add_u32 v{vL}, v13, 4, v{vL}
        v_lshlrev_b32 v{vL}, 4, v{vL}
        v_lshl_add_u32 v{vL}, v15, 10, v{vL}
        s_mul_i32 s57, s54, 7168
        s_add_u32 s57, s57, {KVD}
        v_add_u32 v{vL}, s57, v{vL}
        s_lshl_b32 s55, s21, 2
        s_lshl_b32 s57, s54, 1
        s_add_u32 s55, s55, s57
        s_add_u32 s55, s55, s45
        s_mul_i32 s55, s55, 10
        s_add_u32 s55, s55, s20
        s_mul_i32 s55, s55, 3
        s_add_u32 s55, s55, s46
        s_lshl_b32 s55, s55, 10
        s_add_u32 s55, s55, {WS_KVP}
        v_lshlrev_b32 v{vD}, 4, v1
        v_add_u32 v{vD}, s55, v{vD}
        """)
    def task_reads(vL, r):
        for w_ in range(4): a.I(f"ds_read_b128 {v(r+4*w_,4)}, v{vL} offset:{w_*2*7168}")
    def task_sum(vD, r, younger):
        for w_ in range(1, 4):
            a.I(f"s_waitcnt lgkmcnt({3 - w_ + younger})")
            for i in range(4): a.I(f"v_add_f32 v{r+i}, v{r+i}, v{r+4*w_+i}")
        a.I(f"buffer_store_dwordx4 {v(r,4)}, v{vD}, s[16:19], 0 offen{sfx(ST_K1)}")
    l1 = a.newlabel("k1_kv1"); l2 = a.newlabel("k1_kv2")
    task_addr("s22", 8, 9)
    a.I("s_cmp_ge_u32 s22, 4")
    a.I(f"s_cbranch_scc1 {l1}")
    a.I("s_add_u32 s60, s22, 8")
    task_addr("s60", 10, 11)
    a.I("s_waitcnt lgkmcnt(0)")
    a.I("s_barrier")
    task_reads(8, R); task_reads(10, R + 16)
    task_sum(9, R, 4); task_sum(11, R + 16, 0)
    a.I(f"s_branch {l2}")
    a.L(l1)
    a.I("s_waitcnt lgkmcnt(0)")
    a.I("s_barrier")
    task_reads(8, R)
    task_sum(9, R, 0)
    a.L(l2)

def gen_k1(a, name, lph2=None):
    a.raw(f".globl {name}\n.p2align 8\n.type {name},@function")
    a.L(name)
    le = a.newlabel("k1_end")
    pf = Prof(a, 0)
    a.I("s_cmp_ge_u32 s2, 256")
    a.I(f"s_cbranch_scc1 {le}")
    pf.start()
    a.I("s_load_dwordx4 s[4:7], s[0:1], 0")
    a.I("s_load_dwordx4 s[44:47], s[0:1], 24")
    a.I("s_load_dwordx2 s[28:29], s[0:1], 64")
    if FUSED: a.I("s_load_dwordx2 s[96:97], s[0:1], 56")
    lB = a.newlabel("k1_decB"); lD = a.newlabel("k1_dec")
    a.I("""
    s_and_b32 s3, s2, 7
    s_lshr_b32 s30, s2, 3
    s_lshr_b32 s31, s3, 2
    s_and_b32 s20, s3, 1
    s_lshl_b32 s20, s20, 2
    s_and_b32 s23, s30, 3
    s_add_u32 s20, s20, s23
    s_lshr_b32 s38, s3, 1
    s_and_b32 s38, s38, 1
    s_lshr_b32 s34, s30, 2
    s_mov_b32 s62, s34
    v_lshrrev_b32 v13, 6, v0
    v_and_b32 v1, 63, v0
    s_cmp_eq_u32 s31, 0
    """)
    a.I(f"s_cbranch_scc0 {lB}")
    a.I("""
    s_lshl_b32 s24, s38, 2
    s_sub_u32 s23, 12, s24
    s_mul_i32 s25, s38, 3
    s_add_u32 s21, s34, s25
    s_mov_b32 s61, 0
    s_cmp_lt_u32 s30, s23
    """)
    lAq = a.newlabel("k1_decAq")
    a.I(f"s_cbranch_scc1 {lAq}")
    a.I("""
    s_sub_u32 s25, s30, s23
    s_mul_i32 s23, s25, 52
    s_lshr_b32 s23, s23, 8
    s_add_u32 s21, s24, s23
    s_mul_i32 s23, s23, 5
    s_sub_u32 s23, s25, s23
    s_and_b32 s20, s3, 1
    s_mul_i32 s20, s20, 5
    s_add_u32 s20, s20, s23
    s_cmp_ge_u32 s25, 20
    s_cselect_b32 s61, 2, 1
    """)
    a.L(lAq)
    a.I("""
    s_mul_i32 s50, s38, 6
    s_lshl_b32 s24, s38, 1
    s_sub_u32 s51, 6, s24
    s_add_u32 s52, s38, 4
    s_add_u32 s53, s51, 5
    s_bitcmp1_b32 s3, 0
    s_cselect_b32 s54, 32, 35
    """)
    a.I(f"s_branch {lD}")
    a.L(lB)
    a.I("""
    s_lshl_b32 s21, s38, 3
    s_add_u32 s21, s21, s34
    s_cmp_ge_u32 s21, 15
    s_cselect_b32 s61, 2, 0
    s_lshl_b32 s50, s38, 4
    s_mov_b32 s51, 16
    s_mov_b32 s52, 0
    s_mov_b32 s53, 16
    s_mov_b32 s54, 32
    """)
    a.L(lD)
    a.I("v_readfirstlane_b32 s22, v13")
    EARLY = os.environ.get("K1_EARLY", "1") == "1"
    if EARLY:
        le2 = a.newlabel("k1_early")
        a.I(f"v_mov_b32 v{V_TX}, {OOB:#x}")
        a.I(f"v_mov_b32 v{V_TW}, {OOB:#x}")
        a.I("s_cmp_ge_u32 s22, 8")
        a.I(f"s_cbranch_scc1 {le2}")
        touch_setup(a)
        a.L(le2)
    a.I("s_waitcnt lgkmcnt(0)")
    pf.stamp("kernarg")
    a.I("s_cmp_eq_u32 s31, 0")
    for i in range(4): a.I(f"s_cselect_b32 s{4+i}, s{4+i}, s{44+i}")
    srd(a, 8, 4, 5, 2621440)
    srd(a, 12, 6, 7, 2457600)
    srd(a, 16, 28, 29, WS_REC, WS0)
    if FUSED:
        a.I("s_mov_b32 s98, 256")
        a.I(f"s_mov_b32 s99, {SRD3:#x}")
        lrs = a.newlabel("k1_noreset")
        a.I("s_cmp_lg_u32 s22, 7")
        a.I(f"s_cbranch_scc1 {lrs}")
        a.I(f"""
        s_lshr_b32 s23, s2, 6
        s_lshl_b32 s23, s23, 3
        s_add_u32 s23, s23, s3
        s_and_b32 s24, s30, 7
        s_lshl_b32 s24, s24, 5
        s_add_u32 s23, s23, s24
        v_mov_b32 v14, s23
        v_add_u32 v15, 256, v14
        v_cmp_eq_u32 s[36:37], 1, v1
        v_cndmask_b32 v14, v14, v15, s[36:37]
        s_add_u32 s24, s2, 512
        v_mov_b32 v15, s24
        v_cmp_eq_u32 s[36:37], 2, v1
        v_cndmask_b32 v14, v14, v15, s[36:37]
        v_lshlrev_b32 v14, {FLAG_SH}, v14
        v_add_u32 v14, {WS_FLAG}, v14
        v_mov_b32 v15, 0
        s_mov_b64 exec, 7
        """)
        a.I("buffer_store_dword v15, v14, s[16:19], 0 offen sc1")
        a.I("s_mov_b64 exec, 1")
        a.I("s_lshl_b32 s24, s3, 5")
        a.I("v_mov_b32 v14, s24")
        a.I("v_mov_b32 v15, 1")
        a.I("s_waitcnt vmcnt(0)")
        a.I("buffer_atomic_add v15, v14, s[96:99], 0 offen")
        a.I("s_mov_b64 exec, -1")
        a.L(lrs)
    lx = a.newlabel("k1_spare"); lh = a.newlabel("k1_mfma"); lkl = a.newlabel("k1_ldkv"); lkv = a.newlabel("k1_kv")
    a.I("s_cmp_eq_u32 s61, 2")
    a.I(f"s_cbranch_scc1 {lx}")
    n0 = (pf.n, list(pf.names))
    def reset(): pf.n, pf.names = n0[0], list(n0[1])
    a.I("s_cmp_lt_u32 s22, 8")
    a.I(f"s_cbranch_scc1 {lh}")
    a.I("s_cmp_eq_u32 s61, 1")
    a.I(f"s_cbranch_scc1 {lkl}")
    loader_wave(a, False, pf, lph2); reset()
    a.L(lkl)
    loader_wave(a, True, pf, lph2); reset()
    a.L(lh)
    if os.environ.get("CODE_PF", "1") == "1":
        lc = a.newlabel("k1_nocode"); lpc = a.newlabel("k1_pc")
        a.I("s_cmp_lg_u32 s30, 0")
        a.I(f"s_cbranch_scc1 {lc}")
        a.I("s_cmp_ge_u32 s22, 6")
        a.I(f"s_cbranch_scc1 {lc}")
        a.I("s_getpc_b64 s[84:85]")
        a.L(lpc)
        a.raw(f"    s_sub_u32 s84, s84, {lpc}-{name}")
        a.I("s_subb_u32 s85, s85, 0")
        a.I("s_lshl_b32 s86, s22, 6")
        a.I("v_add_u32 v14, s86, v1")
        a.I("v_lshlrev_b32 v14, 7, v14")
        a.raw(f"    s_mov_b32 s87, code_end_label-{name}")
        a.I("v_cmp_gt_u32 vcc, s87, v14")
        a.I("s_and_saveexec_b64 s[88:89], vcc")
        lz = a.newlabel("k1_codez")
        a.I(f"s_cbranch_execz {lz}")
        a.I("v_mov_b32 v17, s85")
        a.I("v_add_co_u32 v16, vcc, s84, v14")
        a.I("v_addc_co_u32 v17, vcc, 0, v17, vcc")
        a.I("global_load_dword v4, v[16:17], off")
        a.L(lz)
        a.I("s_mov_b64 exec, -1")
        a.L(lc)
    TLB = int(os.environ.get("TLB_PF", "0"))
    if TLB:
        lt = a.newlabel("k1_notlb"); lo = a.newlabel("k1_tlbo")
        a.I("s_cmp_lg_u32 s30, 0")
        a.I(f"s_cbranch_scc1 {lt}")
        a.I("s_cmp_lt_u32 s22, 6")
        a.I(f"s_cbranch_scc1 {lt}")
        a.I(f"v_lshlrev_b32 v14, {TLB}, v1")
        a.I("s_cmp_eq_u32 s22, 7")
        a.I(f"s_cbranch_scc1 {lo}")
        n = -(-WS_END // (64 << TLB))
        for k in range(n):
            a.I(f"s_mov_b32 s35, {k*(64 << TLB)}")
            a.I("buffer_load_dword v4, v14, s[16:19], s35 offen")
        a.I(f"s_branch {lt}")
        a.L(lo)
        a.I("s_load_dwordx2 s[84:85], s[0:1], 48")
        a.I("s_waitcnt lgkmcnt(0)")
        srd(a, 88, 84, 85, 5242880)
        n = -(-5242880 // (64 << TLB))
        for k in range(n):
            a.I(f"s_mov_b32 s35, {k*(64 << TLB)}")
            a.I("buffer_load_dword v4, v14, s[88:91], s35 offen")
        a.L(lt)
    a.I("s_cmp_eq_u32 s61, 1")
    a.I(f"s_cbranch_scc1 {lkv}")
    a.I("""
    s_mul_i32 s32, s21, 52
    s_lshr_b32 s32, s32, 8
    s_mul_i32 s23, s32, 5
    s_sub_u32 s33, s21, s23
    """)
    lcol = a.newlabel("k1_col"); lepi = a.newlabel("k1_epi")
    def x_addr(kv=False):
        a.I("s_lshl_b32 s63, s36, 6")
        if kv:
            a.I("s_cmp_eq_u32 s36, 3")
            a.I("s_cselect_b32 s63, 176, s63")
        a.I(f"""
        v_lshrrev_b32 v13, 4, v1
        v_and_b32 v14, 15, v1
        v_lshrrev_b32 v15, 1, v14
        v_xor_b32 v15, v15, v13
        s_lshl_b32 s39, s63, 7
        s_add_u32 s39, s39, {XB}
        v_lshlrev_b32 v16, 7, v14
        v_add_u32 v16, s39, v16
        v_lshl_add_u32 v{V_XR}, v15, 4, v16
        v_xor_b32 v{V_XR+1}, 64, v{V_XR}
        v_add_u32 v{V_XR2}, 0x10000, v{V_XR}
        v_add_u32 v{V_XR2+1}, 0x10000, v{V_XR+1}
        """)
    def addr_setup_flat():
        a.I(f"""
        s_lshr_b32 s36, s22, 1
        s_and_b32 s37, s22, 1
        v_lshrrev_b32 v13, 4, v1
        v_bfe_u32 v14, v1, 2, 2
        v_lshl_add_u32 v15, v13, 3, v14
        v_lshlrev_b32 v15, 8, v15
        v_and_b32 v16, 3, v1
        v_lshl_add_u32 v15, v16, 3, v15
        v_and_b32 v16, 1, v13
        v_lshl_or_b32 v16, v16, 2, v14
        s_lshl_b32 s40, s37, 2
        """)
        for j in range(4):
            a.I(f"s_add_u32 s39, s40, {j}")
            a.I(f"v_xor_b32 v17, s39, v16")
            a.I(f"v_lshl_add_u32 v{V_T+j}, v17, 5, v15")
        x_addr()
        a.I(f"""
        s_mul_i32 s40, s32, {BUF}
        s_cmp_eq_u32 s31, 0
        s_cselect_b32 s40, {WS_PQ}, s40
        s_lshl_b32 s41, s20, 3
        s_lshl_b32 s39, s36, 1
        s_add_u32 s41, s41, s39
        s_mul_i32 s41, s41, 1280
        s_add_u32 s40, s40, s41
        """)
    def addr_row():
        a.I(f"""
        s_lshl_b32 s39, s33, 5
        s_lshl_b32 s41, s37, 4
        s_add_u32 s39, s39, s41
        v_lshrrev_b32 v19, 4, v1
        v_add_u32 v15, s39, v19
        v_lshlrev_b32 v16, 4, v14
        v_add_u32 v16, s40, v16
        """)
        for j in range(4):
            a.I(f"""
            v_add_u32 v17, {4*j}, v15
            v_mul_u32_u24 v18, 205, v17
            v_lshrrev_b32 v18, 10, v18
            v_mul_u32_u24 v18, 80640, v18
            v_lshl_add_u32 v17, v17, 8, v16
            v_add_u32 v{V_A+j}, v17, v18
            """)
    def addr_col():
        a.I(f"""
        s_lshl_b32 s39, s33, 7
        s_lshl_b32 s41, s37, 6
        s_add_u32 s39, s39, s41
        v_add_u32 v15, s39, v14
        v_lshrrev_b32 v19, 4, v1
        v_mul_u32_u24 v16, 320, v19
        v_add_u32 v16, s40, v16
        """)
        for j in range(4):
            a.I(f"""
            v_add_u32 v17, {16*j}, v15
            v_mul_u32_u24 v18, 3277, v17
            v_lshrrev_b32 v18, 16, v18
            v_mul_u32_u24 v18, 81600, v18
            v_lshl_add_u32 v17, v17, 4, v16
            v_add_u32 v{V_A+j}, v17, v18
            """)
    a.I("s_cmp_eq_u32 s32, 2")
    a.I(f"s_cbranch_scc1 {lcol}")
    ldn = a.newlabel("k1_done")
    g = main_loop(a, "row", pf); next(g)
    addr_setup_flat(); addr_row()
    for _ in g: pass
    a.I("s_waitcnt vmcnt(0)")
    pf.stamp("mainend")
    lnp = a.newlabel("k1_nophi"); lst = a.newlabel("k1_plain")
    a.I("s_cmp_lg_u32 s31, 0")
    a.I(f"s_cbranch_scc1 {lnp}")
    epilogue_flat(a, "phi", ST_K1)
    a.I(f"s_branch {ldn}")
    a.L(lnp)
    a.I("s_cmp_lg_u32 s32, 0")
    a.I(f"s_cbranch_scc1 {lst}")
    epilogue_flat(a, "scale", ST_K1)
    a.I(f"s_branch {ldn}")
    a.L(lst)
    epilogue_flat(a, "none", ST_K1)
    a.I(f"s_branch {ldn}")
    reset()
    a.L(lcol)
    g = main_loop(a, "col", pf); next(g)
    addr_setup_flat(); addr_col()
    for _ in g: pass
    a.I("s_waitcnt vmcnt(0)")
    pf.stamp("mainend")
    epilogue_flat(a, "none", os.environ.get("ST_K1V", ST_K1))
    a.I(f"s_branch {ldn}")
    reset()
    a.L(lkv)
    g = main_loop(a, "kv", pf); next(g)
    a.I(f"""
    s_lshr_b32 s36, s22, 1
    s_and_b32 s37, s22, 1
    v_lshrrev_b32 v13, 4, v1
    v_bfe_u32 v14, v1, 2, 2
    v_lshl_add_u32 v15, v13, 3, v14
    v_mul_u32_u24 v15, 320, v15
    v_and_b32 v16, 3, v1
    v_lshl_add_u32 v15, v16, 3, v15
    v_and_b32 v16, 1, v13
    s_mul_i32 s40, s37, 5
    """)
    for t in range(5):
        a.I(f"s_add_u32 s39, s40, {t}")
        a.I(f"v_xor_b32 v17, s39, v16")
        a.I(f"v_lshl_add_u32 v{V_T+t}, v17, 5, v15")
    x_addr(True)
    for _ in g: pass
    a.I("s_waitcnt vmcnt(0)")
    pf.stamp("mainend")
    epilogue_kv(a, pf)
    a.L(ldn)
    pf.stamp("stored")
    if FUSED:
        phase2_args(a)
        a.I("s_waitcnt vmcnt(0)")
        a.I("s_barrier")
        lnf1 = a.newlabel("k1_nf1")
        a.I("s_cmp_lg_u32 s22, 0")
        a.I(f"s_cbranch_scc1 {lnf1}")
        a.I(f"""
        s_lshl_b32 s23, s2, {FLAG_SH}
        s_add_u32 s23, s23, {WS_FLAG1}
        v_mov_b32 v14, s23
        v_mov_b32 v15, 1
        s_mov_b64 exec, 1
        """)
        a.I("buffer_store_dword v15, v14, s[16:19], 0 offen sc1")
        a.I("s_mov_b64 exec, -1")
        a.L(lnf1)
        a.I(f"s_branch {lph2}")
    else:
        if PROFILE: a.I("s_waitcnt vmcnt(0)")
        pf.finish(16, 22)
        a.I("s_endpgm")
    a.L(lx)
    lnt = a.newlabel("k1_spare_nt")
    a.I("s_lshl_b32 s23, s22, 6")
    a.I("v_add_u32 v7, s23, v1")
    a.I("s_cmp_lg_u32 s22, 0")
    a.I(f"s_cbranch_scc1 {lnt}")
    touch_setup(a)
    touch_ops(a, 0, 8, 9)
    touch_ops(a, 1, 10, 11)
    for b in range(2, 10):
        a.I("s_waitcnt vmcnt(2)")
        touch_ops(a, b, 8 + 2*(b & 1), 9 + 2*(b & 1))
    a.I("s_waitcnt vmcnt(0)")
    a.L(lnt)
    if os.environ.get("WO_LATE", "1") == "1": a.I("s_barrier")
    if not FUSED:
        lnf = a.newlabel("k1_noflag")
        a.I("s_cmp_lg_u32 s2, 255")
        a.I(f"s_cbranch_scc1 {lnf}")
        a.I("s_cmp_lt_u32 s22, 1")
        a.I(f"s_cbranch_scc1 {lnf}")
        a.I("s_cmp_gt_u32 s22, 8")
        a.I(f"s_cbranch_scc1 {lnf}")
        a.I("v_subrev_u32 v6, 64, v7")
        a.I(f"v_lshlrev_b32 v6, {FLAG_SH}, v6")
        a.I(f"v_add_u32 v6, {WS_FLAG}, v6")
        a.I("v_mov_b32 v8, 0")
        a.I("buffer_store_dword v8, v6, s[16:19], 0 offen")
        a.L(lnf)
    if os.environ.get("WO_PF", "1") == "1":
        lz2 = a.newlabel("k1_nopf")
        a.I("s_load_dwordx2 s[48:49], s[0:1], 16")
        a.I("s_load_dwordx2 s[50:51], s[0:1], 40")
        a.I("""
        s_and_b32 s20, s3, 1
        s_and_b32 s21, s30, 3
        s_lshl_b32 s21, s21, 1
        s_add_u32 s20, s20, s21
        s_mul_i32 s20, s20, 102400
        v_lshlrev_b32 v2, 7, v7
        v_add_u32 v2, s20, v2
        """)
        a.I("s_waitcnt lgkmcnt(0)")
        a.I("s_cmp_eq_u32 s31, 0")
        a.I("s_cselect_b32 s4, s48, s50")
        a.I("s_cselect_b32 s5, s49, s51")
        srd(a, 8, 4, 5, 819200)
        a.I("buffer_load_dword v4, v2, s[8:11], 0 offen")
        a.I("s_mov_b32 s21, 73728")
        a.I("v_cmp_gt_u32 vcc, 224, v7")
        a.I("s_and_saveexec_b64 s[52:53], vcc")
        lz = a.newlabel("k1_pfz")
        a.I(f"s_cbranch_execz {lz}")
        a.I("buffer_load_dword v5, v2, s[8:11], s21 offen")
        a.L(lz)
        a.I("s_mov_b64 exec, -1")
        a.I("s_waitcnt vmcnt(0)")
        a.L(lz2)
    if FUSED:
        counters_ready(a)
        phase2_args(a)
        a.I("s_barrier")
        a.I(f"s_branch {lph2}")
        a.L(le)
        a.I("s_endpgm")
        return
    a.L(le)
    a.I("s_endpgm")
    a.raw(kd(name, K1_VGPRS))
```

```python
from common import *

LK = 0
LV = 16*1280
LKV = 32*1280
LW = 43008
LKF = LKV + 1536
K2_LDS = LW + 102400 + 512
VAKM=2; VAKT=3; VAV=4; VAO=5; VAOT=6; VL=7
VC=16; VS=(32,48); VO=64; VQM=80; VQT=84
VKM=(86,90); VKT=(94,96); VV=(98,102); VP=106
VPQM=114; VPQT=118; VKVM=120; VKVT=124
VR=128
K2_VGPRS=160
ODEP=10
V_OM=2; V_OT=3; V_T0=4; V_T1=5; V_OUT=6; V_OUT2=7; V_T1B=10; V_T2=11
V_RING=20; V_ACC=36; V_O=76; RING=4
def acc3(t, rt): return V_ACC + (t*2+rt)*4
def oreg(s_, rt): return V_O + ((s_ % ODEP)*2+rt)*4
POLL_SLEEP = int(os.environ.get('POLL_SLEEP', '8'))
WO_TOUCH = os.environ.get('WO_TOUCH', '0') == '1'
O_TOUCH = os.environ.get('O_TOUCH', '0') == '1'
POLL_ALL = os.environ.get('POLL_ALL', '1') == '1'
assert not (O_TOUCH and POLL_ALL)
SPLIT_FLAGS = os.environ.get('SPLIT_FLAGS', '1') == '1'
AI = int(os.environ.get('AI', '4'))
MASK20 = (0x000FFFFF, 0x000FFFFF)

def kappa_code(a, m, dst, tmp):
    a.I(f"""
    v_and_b32 v{dst}, 7, v{m}
    v_bfe_u32 v{tmp}, v{m}, 3, 1
    v_lshl_or_b32 v{dst}, v{tmp}, 4, v{dst}
    v_bfe_u32 v{tmp}, v{m}, 4, 1
    v_lshl_or_b32 v{dst}, v{tmp}, 3, v{dst}
    """)

def key_of_reg(r):
    s_, b, i = r >> 3, (r >> 2) & 1, r & 3
    return 16*b + 8*s_ + i

def normalize_store(a, O, P, add_eps, so, off=0, check=None):
    a.I(f"v_cndmask_b32 v{VL}, v{O+8}, v{O+12}, s[38:39]")
    if add_eps: a.I(f"v_add_f32 v{VL}, s43, v{VL}")
    if check: check()
    a.I(f"v_rcp_f32 v8, v{VL}")
    for i in range(12): a.I(f"v_mul_f32 v{O+i}, v8, v{O+i}")
    for i in range(6): a.I(f"v_cvt_pk_bf16_f32 v{P+i}, v{O+2*i}, v{O+2*i+1}")
    a.I(f"buffer_store_dwordx4 {v(P,4)}, v{VAO}, s[16:19], {so} offen offset:{off}{sfx(ST_K2)}")
    a.I(f"buffer_store_dwordx2 {v(P+4,2)}, v{VAOT}, s[16:19], {so} offen offset:{off}{sfx(ST_K2)}")

def out_addr(a, stile):
    a.I(f"""
    s_mul_i32 s36, {stile}, 1280
    v_lshlrev_b32 v14, 4, v1
    v_add_u32 v{VAO}, s36, v14
    v_lshlrev_b32 v14, 3, v12
    v_add_u32 v14, s36, v14
    v_add_u32 v14, 1024, v14
    v_mov_b32 v15, {OOB:#x}
    v_cndmask_b32 v{VAOT}, v15, v14, s[38:39]
    """)

def q_addr(a, dst):
    a.I(f"""
    v_and_b32 v13, 15, v1
    v_lshlrev_b32 v13, 4, v13
    v_bfe_u32 v14, v1, 4, 1
    v_lshl_add_u32 v13, v14, 3, v13
    v_lshl_add_u32 v13, v11, 8, v13
    v_add_u32 v{dst}, s36, v13
    """)

def q_addr4(a, dst, dst_t):
    a.I(f"""
    v_and_b32 v13, 15, v1
    v_lshlrev_b32 v13, 4, v13
    v_add_u32 v13, s36, v13
    v_bfe_u32 v14, v1, 4, 1
    v_lshl_add_u32 v{dst_t}, v14, 3, v13
    v_lshl_add_u32 v13, v14, 9, v13
    v_lshl_add_u32 v{dst}, v11, 8, v13
    """)
def q_swap(a, r):
    a.I(f"v_permlane16_swap_b32 v{r}, v{r+2}")
    a.I(f"v_permlane16_swap_b32 v{r+1}, v{r+3}")

def projection_setup(a):
    a.I(f"""
    s_lshl_b32 s31, s63, 2
    s_add_u32 s31, s31, s22
    s_mul_i32 s32, s31, 1280
    s_cmp_eq_u32 s62, 0
    s_mov_b32 s33, {WS_OA}
    s_mov_b32 s34, {WS_OB}
    s_cselect_b32 s33, s33, s34
    s_add_u32 s32, s32, s33
    v_lshrrev_b32 v18, 4, v1
    v_and_b32 v19, 15, v1
    v_lshrrev_b32 v16, 1, v18
    v_mul_u32_u24 v16, 81920, v16
    v_and_b32 v17, 1, v18
    v_lshl_add_u32 v16, v17, 9, v16
    v_lshl_add_u32 v16, v19, 4, v16
    v_add_u32 v{V_OM}, s32, v16
    v_mul_u32_u24 v16, {2*81920}, v18
    v_lshl_add_u32 v16, v19, 3, v16
    v_add_u32 v16, s32, v16
    v_add_u32 v{V_OT}, 1024, v16
    """)
    a.I(f"""
    v_lshrrev_b32 v18, 5, v1
    v_lshlrev_b32 v18, 4, v18
    v_bfe_u32 v19, v1, 4, 1
    v_lshl_add_u32 v18, v19, 2, v18
    v_bfe_u32 v19, v1, 2, 2
    v_add_u32 v18, v18, v19
    v_mul_u32_u24 v18, 160, v18
    v_and_b32 v19, 3, v1
    v_lshl_add_u32 v18, v19, 3, v18
    v_add_u32 v{V_T0}, {LW}, v18
    v_add_u32 v{V_T2}, {16*5120}, v{V_T0}
    v_lshrrev_b32 v18, 4, v1
    v_and_b32 v19, 15, v1
    s_lshl_b32 s41, s31, 5
    v_add_u32 v19, s41, v19
    v_mul_u32_u24 v19, 2560, v19
    s_mul_i32 s42, s62, 1280
    s_add_u32 s42, s42, s73
    v_add_u32 v19, s42, v19
    v_and_b32 v16, 1, v18
    v_lshlrev_b32 v16, 5, v16
    v_lshrrev_b32 v17, 1, v18
    v_lshl_add_u32 v16, v17, 4, v16
    v_add_u32 v{V_OUT}, v19, v16
    v_lshl_add_u32 v{V_OUT2}, v18, 3, v19
    s_mov_b32 s43, {16*2560}
    """)

def projection(a, pf):
    vm = VmTrack()
    R3 = os.environ.get("K23_R3", "0") == "1"
    a.I(f"s_lshl_b32 s84, s72, 1")
    if not R3: a.I("s_mov_b32 s84, 0")
    a.I("s_mov_b32 s85, s84")
    def ops_o(s_):
        out = []
        if s_ < 16:
            for rt in range(2):
                t = ["s_mul_i32 s40, s84, 163840", "s_add_u32 s84, s84, 1", "s_and_b32 s84, s84, 15"] if rt == 0 else []
                t.append(f"buffer_load_dwordx4 {v(oreg(s_,rt),4)}, v{V_OM}, s[16:19], s40 offen offset:{rt*256} sc1")
                out.append((t, ("O", s_)))
        else:
            for u in range(2):
                for rt in range(2):
                    t = [f"s_mov_b32 s40, {(s_-16)*655360 + u*81920}"] if rt == 0 else []
                    t.append(f"buffer_load_dwordx2 {v(oreg(s_,rt)+2*u,2)}, v{V_OT}, s[16:19], s40 offen offset:{rt*128} sc1")
                    out.append((t, ("O", s_)))
        return out
    def emit_op(op):
        for t in op[0]: a.I(t)
        vm.add(op[1])
    NPRE = min(ODEP, int(os.environ.get("K3_NPRE", "8")))
    for s_ in range(NPRE):
        for op in ops_o(s_): emit_op(op)
    pending = []
    for s_ in range(NPRE, 20): pending += ops_o(s_)
    def free(op, done_steps):
        return op[1][1] - ODEP < done_steps
    pf.stamp("o_issued")
    def issue_tr(n):
        s_, t = divmod(n, 5)
        r = V_RING + (n % RING)*4
        if s_ < 16:
            base = V_T1 if (s_ & 1) else V_T1B
            if t == 0:
                a.I("s_mul_i32 s41, s85, 5120")
                a.I("s_add_u32 s85, s85, 1")
                a.I("s_and_b32 s85, s85, 15")
                a.I(f"v_add_u32 v{base}, s41, v{V_T0}")
            off = 32*t
        else:
            base = V_T2; off = (s_ - 16)*5120 + 32*t
        a.I(f"ds_read_b64_tr_b16 {v(r,2)}, v{base} offset:{off}")
        a.I(f"ds_read_b64_tr_b16 {v(r+2,2)}, v{base} offset:{off+1280}")
    NT = 100
    for n in range(RING-1): issue_tr(n)
    for n in range(NT):
        s_, t = divmod(n, 5)
        if n in (0, 40): pf.stamp(f"p{n}")
        if t == 0:
            while pending and pending[0][1][1] <= s_:
                assert free(pending[0], s_)
                emit_op(pending.pop(0))
            nw_, _ = vm.wait_n(lambda x: x == ("O", s_))
            a.I(f"s_waitcnt vmcnt({nw_})")
        m = n + RING - 1
        if m < NT:
            issue_tr(m)
            a.I(f"s_waitcnt lgkmcnt({2*(RING-1)})")
        else:
            a.I(f"s_waitcnt lgkmcnt({2*(NT-1-n)})")
        wf = v(V_RING + (n % RING)*4, 4)
        for rt in range(2):
            d = v(acc3(t, rt), 4)
            c = "0" if s_ == 0 else d
            a.I(f"v_mfma_f32_16x16x32_bf16 {d}, {wf}, {v(oreg(s_,rt),4)}, {c}")
        if pending and free(pending[0], (n + 1) // 5): emit_op(pending.pop(0))
    pf.stamp("pend")
    P = V_O
    def epi(sf):
        for rt in range(2):
            so = "s43" if rt else "0"
            for pr in range(2):
                p = P + rt*12 + pr*4
                for k, t in enumerate((2*pr, 2*pr+1)):
                    r = acc3(t, rt)
                    a.I(f"v_cvt_pk_bf16_f32 v{p+2*k}, v{r}, v{r+1}")
                    a.I(f"v_cvt_pk_bf16_f32 v{p+2*k+1}, v{r+2}, v{r+3}")
                a.I(f"v_permlane16_swap_b32 v{p}, v{p+2}")
                a.I(f"v_permlane16_swap_b32 v{p+1}, v{p+3}")
                a.I(f"buffer_store_dwordx4 {v(p,4)}, v{V_OUT}, s[12:15], {so} offen offset:{pr*64}{sfx(sf)}")
            p = P + rt*12 + 8
            r = acc3(4, rt)
            a.I(f"v_cvt_pk_bf16_f32 v{p}, v{r}, v{r+1}")
            a.I(f"v_cvt_pk_bf16_f32 v{p+1}, v{r+2}, v{r+3}")
            a.I(f"buffer_store_dwordx2 {v(p,2)}, v{V_OUT2}, s[12:15], {so} offen offset:128{sfx(sf)}")
    sfa = os.environ.get("ST_K3A", ST_K3)
    if sfa != ST_K3:
        lb = a.newlabel("k23_epb"); le_ = a.newlabel("k23_epe")
        a.I("s_cmp_lg_u32 s62, 0")
        a.I(f"s_cbranch_scc1 {lb}")
        epi(sfa)
        a.I(f"s_branch {le_}")
        a.L(lb)
        epi(ST_K3)
        a.L(le_)
    else:
        epi(ST_K3)

def helper_wave(a, pf):
    V_WM = 16; VR = 32
    a.I(f"""
    s_sub_u32 s22h, s22, 8
    s_mul_i32 s30, s25, 1280
    s_mul_i32 s31, s24, 1280
    s_bitcmp1_b32 s22h, 0
    s_cselect_b32 s34, s31, s30
    s_mov_b32 s35, {WS_KB}
    s_mov_b32 s37, {WS_VB}
    s_cmp_ge_u32 s22h, 2
    s_cselect_b32 s35, s37, s35
    s_add_u32 s34, s34, s35
    s_mul_i32 s33, s22h, 10240
    """.replace("s22h", "s82"))
    def poll(vaddr, nl):
        lp = a.newlabel("k23_hpoll"); lok = a.newlabel("k23_hpok")
        a.I("s_mov_b32 s44, 0")
        a.L(lp)
        a.I(f"buffer_load_dword v15, v{vaddr}, s[16:19], 0 offen sc1")
        a.I("s_add_u32 s44, s44, 1")
        a.I("s_waitcnt vmcnt(0)")
        a.I("v_cmp_ne_u32 s[46:47], 1, v15")
        a.I("s_cmp_eq_u64 s[46:47], 0")
        a.I(f"s_cbranch_scc1 {lok}")
        a.I(f"s_sleep {POLL_SLEEP}")
        a.I("s_cmp_lt_u32 s44, 0x8000")
        a.I(f"s_cbranch_scc1 {lp}")
        a.L(lok)
    if FUSED:
        lnp0 = a.newlabel("k23_hnp0")
        a.I("s_cmp_lg_u32 s82, 0")
        a.I(f"s_cbranch_scc1 {lnp0}")
        a.I(f"""
        s_mul_i32 s40, s20, 20
        s_lshr_b32 s41, s40, 7
        s_add_u32 s40, s40, 19
        s_lshr_b32 s40, s40, 7
        s_sub_u32 s42, s21, 1
        s_max_i32 s42, s42, 0
        v_min_u32 v2, 11, v1
        v_and_b32 v3, 1, v2
        v_lshrrev_b32 v2, 1, v2
        v_mov_b32 v4, s41
        v_mov_b32 v5, s40
        v_cmp_eq_u32 s[46:47], 1, v3
        v_cndmask_b32 v4, v4, v5, s[46:47]
        v_mov_b32 v5, s21
        v_mov_b32 v6, s42
        v_cmp_eq_u32 s[46:47], 2, v2
        v_cmp_eq_u32 s[48:49], 4, v2
        s_or_b64 s[46:47], s[46:47], s[48:49]
        v_cndmask_b32 v5, v5, v6, s[46:47]
        v_add_u32 v6, 1, v2
        v_lshrrev_b32 v6, 1, v6
        v_mul_u32_u24 v6, 5, v6
        v_add_u32 v6, v6, v4
        v_lshrrev_b32 v7, 2, v5
        v_and_b32 v14, 3, v5
        v_lshrrev_b32 v15, 3, v6
        v_lshl_add_u32 v15, v15, 1, v7
        v_add_u32 v15, 4, v15
        v_and_b32 v6, 7, v6
        v_lshl_add_u32 v6, v6, 2, v14
        v_lshl_add_u32 v6, v6, 3, v15
        v_cmp_le_u32 s[48:49], 3, v4
        v_cndmask_b32 v15, 0, 1, s[48:49]
        v_mul_u32_u24 v3, 3, v15
        v_sub_u32 v3, v4, v3
        v_lshl_add_u32 v3, v3, 2, v14
        v_lshl_add_u32 v15, v15, 1, v7
        v_lshl_add_u32 v3, v3, 3, v15
        v_cmp_eq_u32 s[48:49], 5, v2
        v_cndmask_b32 v6, v6, v3, s[48:49]
        v_lshlrev_b32 v6, {FLAG_SH}, v6
        v_add_u32 v6, {WS_FLAG1}, v6
        """)
        poll(6, 12)
        a.L(lnp0)
        a.I("s_barrier")
        KR = 32
        for j in range(10):
            a.I(f"buffer_load_dwordx4 {v(KR+4*j,4)}, v8, s[16:19], s34 offen sc1")
            if j < 9: a.I("s_add_u32 s34, s34, 1024")
        a.I("v_add_u32 v14, s33, v8")
    else:
        for j in range(10):
            a.I(f"s_add_u32 m0, s33, {j*1024}")
            a.I("buffer_load_dwordx4 v8, s[16:19], s34 offen lds")
            if j < 9: a.I("s_add_u32 s34, s34, 1024")
    pf.stamp("h_issued")
    lz = a.newlabel("k23_hz")
    a.I("s_cmp_lg_u32 s82, 0")
    a.I(f"s_cbranch_scc1 {lz}")
    for k in range(4): a.I(f"v_mov_b32 v{72+k}, 0")
    a.I(f"v_mov_b32 v15, {LKF}")
    a.I(f"ds_write_b128 v15, {v(72,4)}")
    a.L(lz)
    a.I("""
    s_cmp_eq_u32 s62, 0
    s_cselect_b32 s74, 8, 4
    s_cselect_b32 s75, 4, 20
    """)
    for q in range(5):
        a.I(f"""
        v_add_u32 v2, {64*q}, v1
        v_mul_u32_u24 v3, 6554, v2
        v_lshrrev_b32 v3, 16, v3
        v_mul_u32_u24 v4, 10, v3
        v_sub_u32 v4, v2, v4
        v_lshlrev_b32 v4, 4, v4
        v_add_u32 v4, s73, v4
        v_lshrrev_b32 v5, 4, v3
        v_mul_u32_u24 v6, s74, v5
        v_add_u32 v6, v6, v3
        v_mul_u32_u24 v6, 1280, v6
        v_add_u32 v{V_WM+q}, v6, v4
        v_lshlrev_b32 v5, 1, v5
        v_bfe_u32 v6, v3, 2, 1
        v_add_u32 v5, v5, v6
        v_mul_u32_u24 v5, 40, v5
        v_bfe_u32 v6, v3, 3, 1
        v_mul_u32_u24 v6, s75, v6
        v_add_u32 v5, v5, v6
        v_and_b32 v6, 3, v3
        v_add3_u32 v5, v5, v6, 16
        v_mul_u32_u24 v5, 1280, v5
        v_add_u32 v{V_WM+5+q}, v5, v4
        """)
    if FUSED:
        for j in range(10):
            a.I(f"s_waitcnt vmcnt({9-j})")
            a.I(f"ds_write_b128 v14, {v(32+4*j,4)} offset:{j*1024}")
    a.I("s_waitcnt vmcnt(0) lgkmcnt(0)")
    a.I("s_barrier")
    nokv = a.newlabel("k23_nokv")
    a.I("s_cmp_ge_u32 s82, 3")
    a.I(f"s_cbranch_scc1 {nokv}")
    a.I(f"""
    s_mul_i32 s40, s20, {3*NKB}
    s_add_u32 s40, s40, s82
    s_lshl_b32 s40, s40, 10
    s_add_u32 s40, s40, {WS_KVP}
    """)
    if FUSED:
        a.I(f"""
        s_lshr_b32 s41, s20, 2
        s_lshr_b32 s42, s41, 2
        s_and_b32 s41, s41, 3
        s_mul_i32 s41, s41, 5
        s_lshl_b32 s43, s42, 2
        s_sub_u32 s41, s41, s43
        s_add_u32 s41, s41, 12
        s_lshl_b32 s42, s42, 1
        v_min_u32 v2, {NKB-1}, v1
        v_cmp_le_u32 s[46:47], 5, v2
        v_cndmask_b32 v3, 0, 1, s[46:47]
        v_mul_u32_u24 v4, 5, v3
        v_sub_u32 v4, v2, v4
        v_add_u32 v4, s41, v4
        v_add_u32 v3, s42, v3
        v_lshl_add_u32 v4, v4, 3, v3
        v_lshlrev_b32 v4, {FLAG_SH}, v4
        v_add_u32 v4, {WS_FLAG1}, v4
        """)
        poll(4, NKB)
    for i in range(NKB):
        a.I(f"buffer_load_dwordx4 {v(VR+4*i,4)}, v8, s[16:19], s40 offen{' sc1' if FUSED else ''}")
        if i < NKB - 1: a.I("s_add_u32 s40, s40, 3072")
    for i in range(1, NKB):
        a.I(f"s_waitcnt vmcnt({NKB-1-i})")
        for k in range(4): a.I(f"v_add_f32 v{VR+k}, v{VR+k}, v{VR+4*i+k}")
    a.I(f"v_cvt_pk_bf16_f32 v{VR}, v{VR}, v{VR+1}")
    a.I(f"v_cvt_pk_bf16_f32 v{VR+1}, v{VR+2}, v{VR+3}")
    a.I(f"""
    s_lshl_b32 s41, s82, 3
    s_add_u32 s41, s41, {LKV}
    v_add_u32 v14, s41, v8
    v_lshlrev_b32 v15, 3, v1
    v_add_u32 v15, {LKV + 1024}, v15
    s_cmp_eq_u32 s82, 2
    s_cselect_b64 s[46:47], -1, 0
    v_cndmask_b32 v14, v14, v15, s[46:47]
    """)
    a.I(f"ds_write_b64 v14, {v(VR,2)}")
    a.I(f"""
    s_lshl_b32 s41, s82, 2
    s_add_u32 s41, s41, {LKF}
    v_mov_b32 v14, s41
    v_mov_b32 v15, 1
    """)
    a.I("s_waitcnt lgkmcnt(0)")
    a.I("ds_write_b32 v14, v15")
    a.L(nokv)
    pf.stamp("h_kv")
    a.I(f"""
    s_mul_i32 s76, s82, 51200
    s_mul_i32 s78, s82, 204800
    s_mul_i32 s79, s82, 5120
    s_add_u32 s79, s79, {LW}
    """)
    for g in range(5):
        for q in range(5):
            a.I(f"s_add_u32 m0, s79, {g*4*5120 + q*1024}")
            if g < 4:
                if q == 0 and g > 0: a.I(f"s_add_u32 s76, s76, {4*51200}")
                a.I(f"buffer_load_dwordx4 v{V_WM+q}, s[8:11], s76 offen lds")
            else:
                a.I(f"buffer_load_dwordx4 v{V_WM+5+q}, s[8:11], s78 offen lds")
    pf.stamp("h_wo")
    if SPLIT_FLAGS:
        lnf = a.newlabel("k23_hnf"); lp = a.newlabel("k23_hp"); lok = a.newlabel("k23_hok")
        a.I("s_cmp_lg_u32 s82, 3")
        a.I(f"s_cbranch_scc1 {lnf}")
        a.I(f"v_mov_b32 v14, {LKF + 12}")
        a.I("s_mov_b32 s24, 0")
        a.L(lp)
        a.I("ds_read_b32 v15, v14")
        a.I("s_add_u32 s24, s24, 1")
        a.I("s_waitcnt lgkmcnt(0)")
        a.I("v_cmp_ne_u32 s[46:47], 8, v15")
        a.I("s_cmp_eq_u64 s[46:47], 0")
        a.I(f"s_cbranch_scc1 {lok}")
        a.I("s_sleep 1")
        a.I("s_cmp_lt_u32 s24, 0x100000")
        a.I(f"s_cbranch_scc1 {lp}")
        a.L(lok)
        a.I(f"""
        s_lshl_b32 s23, s21, 5
        s_add_u32 s23, s23, s20
        s_add_u32 s23, s23, 256
        s_lshl_b32 s23, s23, {FLAG_SH}
        s_add_u32 s23, s23, {WS_FLAG}
        v_mov_b32 v14, s23
        v_mov_b32 v15, 1
        s_mov_b64 exec, 1
        """)
        a.I("buffer_store_dword v15, v14, s[16:19], 0 offen sc1")
        a.I("s_mov_b64 exec, -1")
        a.L(lnf)
    a.I("s_waitcnt vmcnt(0) lgkmcnt(0)")
    a.I("s_barrier")
    pf.finish(16, 22)
    a.I("s_endpgm")

def gen_k2(a, name, lph2=None):
    le = a.newlabel("k2_end")
    if FUSED:
        a.L(lph2)
        pf = Prof(a, 0); pf.n = int(os.environ.get('PROF_N0', '1'))
    else:
        a.raw(f".globl {name}\n.p2align 8\n.type {name},@function")
        a.L(name)
        a.I("s_cmp_ge_u32 s2, 256")
        a.I(f"s_cbranch_scc1 {le}")
        pf = Prof(a, 1); pf.start()
        a.I("s_load_dwordx2 s[28:29], s[0:1], 64")
        a.I("s_load_dwordx4 s[4:7], s[0:1], 40")
        a.I("s_load_dwordx2 s[12:13], s[0:1], 16")
    a.I("""
    s_and_b32 s3, s2, 7
    s_lshr_b32 s30, s2, 3
    s_lshr_b32 s62, s3, 2
    s_and_b32 s63, s3, 3
    s_lshl_b32 s63, s63, 2
    s_and_b32 s23, s30, 3
    s_add_u32 s63, s63, s23
    s_lshr_b32 s72, s30, 2
    """)
    a.I("""
    s_mov_b32 s3, s2
    s_and_b32 s20, s3, 7
    s_lshr_b32 s23, s3, 6
    s_lshl_b32 s23, s23, 3
    s_add_u32 s20, s20, s23
    s_lshr_b32 s21, s3, 3
    s_and_b32 s21, s21, 7
    """)
    if not FUSED:
        a.I("v_lshrrev_b32 v12, 6, v0")
        a.I("v_and_b32 v1, 63, v0")
        a.I("v_readfirstlane_b32 s22, v12")
    a.I("""
    s_lshl_b32 s24, s20, 6
    s_lshl_b32 s23, s21, 3
    s_add_u32 s24, s24, s23
    s_cmp_eq_u32 s21, 0
    s_cselect_b32 s23, 0, 8
    s_sub_u32 s25, s24, s23
    s_add_u32 s26, s24, s22
    v_lshlrev_b32 v8, 4, v1
    v_lshrrev_b32 v11, 5, v1
    v_and_b32 v12, 31, v1
    s_mul_i32 s36, s26, 1280
    """)
    q_addr4(a, 10, 9)
    a.I("s_waitcnt lgkmcnt(0)")
    pf.stamp('kernarg')
    if FUSED:
        a.I("s_cmp_eq_u32 s62, 0")
        a.I("s_cselect_b32 s4, s86, s88")
        a.I("s_cselect_b32 s5, s87, s89")
        srd(a, 8, 4, 5, 819200)
        srd(a, 12, 90, 91, 5242880)
    else:
        srd(a, 16, 28, 29, WS_REC, WS0)
        a.I("s_cmp_eq_u32 s62, 0")
        a.I("s_cselect_b32 s4, s12, s4")
        a.I("s_cselect_b32 s5, s13, s5")
        srd(a, 8, 4, 5, 819200)
        srd(a, 12, 6, 7, 5242880)
    a.I("s_mul_i32 s73, s72, 160")
    lh = a.newlabel("k23_attn")
    n0 = (pf.n, list(pf.names))
    a.I("s_cmp_lt_u32 s22, 8")
    a.I(f"s_cbranch_scc1 {lh}")
    helper_wave(a, pf)
    pf.n, pf.names = n0[0], list(n0[1])
    a.L(lh)
    def q_loads():
        sc = " sc1" if FUSED else ""
        a.I(f"v_mov_b32 v{VQT}, 0")
        a.I(f"v_mov_b32 v{VQT+1}, 0")
        a.I(f"buffer_load_dwordx4 {v(VQM,4)}, v10, s[16:19], 0 offen{sc}")
        a.I("s_mov_b32 exec_hi, 0")
        a.I(f"buffer_load_dwordx2 {v(VQT,2)}, v9, s[16:19], 0 offen offset:1024{sc}")
        a.I("s_mov_b32 exec_hi, -1")
    if not FUSED: q_loads()
    pf.stamp("issued")
    a.I("v_cmp_gt_u32 s[38:39], 32, v1")
    kappa_code(a, 12, 13, 14)
    a.I(f"""
    s_mul_i32 s41, s22, 1280
    v_and_b32 v14, 15, v13
    v_lshlrev_b32 v14, 4, v14
    v_lshrrev_b32 v15, 4, v13
    v_lshl_add_u32 v14, v15, 3, v14
    v_add_u32 v{VAKT}, s41, v14
    v_lshl_add_u32 v{VAKM}, v11, 8, v{VAKT}
    """)
    a.I(f"""
    v_mul_u32_u24 v15, 320, v11
    v_lshl_add_u32 v14, v12, 4, v15
    s_add_u32 s41, s41, {LV}
    v_add_u32 v{VAV}, s41, v14
    """)
    out_addr(a, "s26")
    for k in range(8): a.I(f"v_mov_b32 v{VV[0]+k}, 0x3f803f80")
    def make_mask(first):
        a.I(f"""
        v_lshlrev_b32 v14, 2, v11
        v_sub_u32 v14, v12, v14
        v_mov_b32 v15, {NEG_INF:#x}
        """)
        for r in range(16):
            pr = 46 + 2*(r & 1)
            a.I(f"v_cmp_gt_i32 s[{pr}:{pr+1}], {key_of_reg(r)}, v14")
            if first: a.I(f"v_cndmask_b32 v{VC+r}, v15, 0, s[{pr}:{pr+1}]")
            else:     a.I(f"v_cndmask_b32 v{VC+r}, 0, v15, s[{pr}:{pr+1}]")
    l0 = a.newlabel("k2_r0"); l1 = a.newlabel("k2_r1")
    a.I("s_mov_b32 s27, 0")
    a.I("s_cmp_lg_u32 s21, 0")
    a.I(f"s_cbranch_scc1 {l0}")
    a.I("s_sub_u32 s27, 8, s22")
    for r in range(16): a.I(f"v_mov_b32 v{VC+r}, {NEG_INF:#x}")
    a.I(f"s_branch {l1}")
    a.L(l0)
    make_mask(True)
    a.L(l1)
    pf.stamp("masks")
    if FUSED:
        a.I("s_barrier")
        q_loads()
    a.I("s_waitcnt vmcnt(0)")
    a.I("s_barrier")
    q_swap(a, VQM)
    a.I(f"""
    s_and_b32 s44, s20, 1
    s_lshl_b32 s45, s44, 8
    s_add_u32 s45, s45, {WS_PQ}
    s_xor_b32 s46, s44, 1
    s_lshl_b32 s46, s46, 10
    s_add_u32 s46, s46, {WS_PQ}
    v_mov_b32 v{VPQT}, 0
    v_mov_b32 v{VPQT+1}, 0
    """)
    a.I(f"buffer_load_dwordx4 {v(VPQM,4)}, v10, s[16:19], s45 offen{' sc1' if FUSED else ''}")
    a.I("s_mov_b32 exec_hi, 0")
    a.I(f"buffer_load_dwordx2 {v(VPQT,2)}, v9, s[16:19], s46 offen{' sc1' if FUSED else ''}")
    a.I("s_mov_b32 exec_hi, -1")
    pf.stamp("first")
    def rdK(i):
        a.I(f"ds_read_b64 {v(VKM[i&1],2)}, v{VAKM} offset:{LK + i*1280}")
        a.I(f"ds_read_b64 {v(VKM[i&1]+2,2)}, v{VAKM} offset:{LK + i*1280 + 512}")
        a.I(f"ds_read_b64 {v(VKT[i&1],2)}, v{VAKT} offset:{LK + i*1280 + 1024}")
    def rdV(i):
        a.I(f"s_mov_b32 exec_lo, {MASK20[0]:#x}")
        a.I(f"s_mov_b32 exec_hi, {MASK20[1]:#x}")
        a.I(f"ds_read_b128 {v(VV[0],4)}, v{VAV} offset:{i*1280}")
        a.I(f"ds_read_b128 {v(VV[1],4)}, v{VAV} offset:{i*1280 + 640}")
        a.I("s_mov_b64 exec, -1")
    def qk1(i, wn=0):
        S = VS[i & 1]
        a.I(f"s_waitcnt lgkmcnt({wn})")
        if i == 0 or i == 8:
            a.I(f"v_mfma_f32_32x32x16_bf16 {v(S,16)}, {v(VKM[i&1],4)}, {v(VQM,4)}, {v(VC,16)}")
        else:
            ln = a.newlabel("k2_neg"); lj = a.newlabel("k2_join")
            a.I(f"s_cmp_gt_u32 s27, {i}")
            a.I(f"s_cbranch_scc1 {ln}")
            a.I(f"v_mfma_f32_32x32x16_bf16 {v(S,16)}, {v(VKM[i&1],4)}, {v(VQM,4)}, 0")
            a.I(f"s_branch {lj}")
            a.L(ln)
            a.I(f"v_mfma_f32_32x32x16_bf16 {v(S,16)}, {v(VKM[i&1],4)}, {v(VQM,4)}, {v(VC,16)}")
            a.L(lj)
    def qk2(i):
        S = VS[i & 1]
        a.I(f"v_mfma_f32_32x32x8bf16_1k {v(S,16)}, {v(VKT[i&1],2)}, {v(VQT,2)}, {v(S,16)}")
    def qk(i, wn=0):
        qk1(i, wn); qk2(i)
    PR = os.environ.get("K2_PRIO", "")
    if PR == "a": a.I("s_setprio 1")
    if PR == "y":
        lpz = a.newlabel("k23_prio")
        a.I("s_cmp_lt_u32 s22, 4")
        a.I(f"s_cbranch_scc1 {lpz}")
        a.I("s_setprio 1")
        a.L(lpz)
    rdK(0); rdK(1); rdV(0)
    qk(0, 5)
    def a_apply():
        AO = VR
        a.I("s_waitcnt vmcnt(0)")
        q_swap(a, VPQM)
        lp = a.newlabel("k23_kvw"); lok = a.newlabel("k23_kvok")
        a.I(f"v_mov_b32 v14, {LKF}")
        a.I("s_mov_b32 s24, 0")
        a.L(lp)
        a.I(f"ds_read_b128 {v(AO,4)}, v14")
        a.I("s_add_u32 s24, s24, 1")
        a.I("s_waitcnt lgkmcnt(0)")
        a.I(f"v_and_b32 v{AO}, v{AO}, v{AO+1}")
        a.I(f"v_and_b32 v{AO}, v{AO}, v{AO+2}")
        a.I(f"v_cmp_ne_u32 s[46:47], 1, v{AO}")
        a.I("s_cmp_eq_u64 s[46:47], 0")
        a.I(f"s_cbranch_scc1 {lok}")
        a.I("s_cmp_lt_u32 s24, 0x100000")
        a.I(f"s_cbranch_scc1 {lp}")
        a.L(lok)
        a.I(f"v_lshlrev_b32 v14, 4, v1")
        a.I(f"v_lshlrev_b32 v15, 3, v1")
        a.I(f"ds_read_b128 {v(VKVM,4)}, v14 offset:{LKV}")
        a.I(f"ds_read_b64 {v(VKVT,2)}, v15 offset:{LKV+1024}")
        a.I(f"s_mov_b32 s43, {f2u(1e-6):#x}")
        a.I(f"s_mov_b32 s61, {WS_OA}")
        a.I("s_waitcnt lgkmcnt(0)")
        a.I(f"v_mfma_f32_32x32x16_bf16 {v(AO,16)}, {v(VKVM,4)}, {v(VPQM,4)}, 0")
        a.I(f"v_mfma_f32_32x32x8bf16_1k {v(AO,16)}, {v(VKVT,2)}, {v(VPQT,2)}, {v(AO,16)}")
    def a_store():
        normalize_store(a, VR, VR + 16, True, "s61")
    SPREAD = os.environ.get("K2_SPREAD", "0") == "1"
    for i in range(9):
        S = VS[i & 1]
        if i == 7:
            if os.environ.get("K2_XORMASK", "1") == "1":
                lr0 = a.newlabel("k2_m0"); lr1 = a.newlabel("k2_m1")
                a.I("s_cmp_eq_u32 s21, 0")
                a.I(f"s_cbranch_scc1 {lr0}")
                for r in range(16): a.I(f"v_xor_b32 v{VC+r}, {NEG_INF:#x}, v{VC+r}")
                a.I(f"s_branch {lr1}")
                a.L(lr0)
                make_mask(False)
                a.L(lr1)
            else:
                make_mask(False)
        if i == AI: a_apply()
        if i < 8 and not SPREAD:
            qk(i+1, 2)
            if i + 2 <= 8: rdK(i+2)
        if i == AI: a_store()
        for hfs in range(2):
            for k in range(8): a.I(f"v_exp_f32 v{S+8*hfs+k}, v{S+8*hfs+k}")
            if SPREAD and i < 8:
                if hfs == 0: qk1(i+1, 2)
                else:
                    qk2(i+1)
                    if i + 2 <= 8: rdK(i+2)
            for k in range(4): a.I(f"v_cvt_pk_bf16_f32 v{VP+4*hfs+k}, v{S+8*hfs+2*k}, v{S+8*hfs+2*k+1}")
            if hfs == 0: a.I(f"s_waitcnt lgkmcnt({(0 if SPREAD else 3) if i + 2 <= 8 else 0})")
            c = "0" if (i == 0 and hfs == 0) else v(VO,16)
            a.I(f"v_mfma_f32_32x32x16_bf16 {v(VO,16)}, {v(VV[hfs],4)}, {v(VP+4*hfs,4)}, {c}")
        if i < 8: rdV(i+1)
        if SPLIT_FLAGS and i == 8:
            a.I("s_waitcnt vmcnt(0)")
            a.I(f"v_mov_b32 v14, {LKF + 12}")
            a.I("v_mov_b32 v15, 1")
            a.I("s_mov_b64 exec, 1")
            a.I("ds_add_u32 v14, v15")
            a.I("s_mov_b64 exec, -1")
            a.I("s_waitcnt lgkmcnt(0)")
    pf.stamp("mainend")
    slow = a.newlabel("k2_slow"); fin = a.newlabel("k2_fin")
    def check():
        a.I(f"v_mov_b32 v9, 0")
        for i in range(12): a.I(f"v_fma_f32 v9, v{VO+i}, 0, v9")
        a.I(f"s_mov_b32 s50, {f2u(2.0**-64):#x}")
        a.I(f"s_mov_b32 s51, {f2u(2.0**64):#x}")
        a.I(f"v_cmp_nge_f32 s[52:53], v{VL}, s50")
        a.I(f"v_cmp_nle_f32 s[54:55], v{VL}, s51")
        a.I(f"v_cmp_u_f32 s[56:57], v9, v9")
        a.I("s_or_b64 s[52:53], s[52:53], s[54:55]")
        a.I("s_or_b64 s[52:53], s[52:53], s[56:57]")
        a.I("s_cmp_lg_u64 s[52:53], 0")
        if os.environ.get("FORCE_SLOW") == "1": a.I("s_cmp_eq_u32 s22, s22")
        a.I(f"s_cbranch_scc1 {slow}")
        a.L(fin)
    a.I(f"s_mov_b32 s60, {WS_OB}")
    normalize_store(a, VO, VP, False, "s60", 0, check)
    pf.stamp("bstore")
    projection_setup(a)
    a.I("s_waitcnt vmcnt(0)")
    a.I("s_barrier")
    lrest = a.newlabel("k23_rest"); lgo = a.newlabel("k23_go"); lto = a.newlabel("k23_touch")
    a.I("s_cmp_ge_u32 s22, 4")
    a.I(f"s_cbranch_scc1 {lrest}")
    lnp = a.newlabel("k23_noflag")
    a.I("s_cmp_lg_u32 s22, 0")
    a.I(f"s_cbranch_scc1 {lnp}")
    a.I(f"""
    s_lshl_b32 s23, s21, 5
    s_add_u32 s23, s23, s20
    s_lshl_b32 s23, s23, {FLAG_SH}
    s_add_u32 s23, s23, {WS_FLAG}
    v_mov_b32 v8, s23
    v_mov_b32 v9, 1
    s_mov_b64 exec, 1
    """)
    a.I("buffer_store_dword v9, v8, s[16:19], 0 offen sc1")
    a.I("s_mov_b64 exec, -1")
    a.L(lnp)
    if not POLL_ALL:
        lnq = a.newlabel("k23_nopoll")
        a.I("s_cmp_lg_u32 s22, 0")
        a.I(f"s_cbranch_scc1 {lnq}")
    a.I(f"""
    s_lshr_b32 s23, s63, 1
    s_xor_b32 s24, s62, 1
    s_mul_i32 s24, s24, {8 if SPLIT_FLAGS else 0}
    s_add_u32 s23, s23, s24
    s_lshl_b32 s23, s23, {5 + FLAG_SH}
    s_add_u32 s23, s23, {WS_FLAG}
    v_and_b32 v8, 31, v1
    v_lshlrev_b32 v8, {FLAG_SH}, v8
    v_add_u32 v8, s23, v8
    s_mov_b32 s24, 0
    """)
    lp = a.newlabel("k23_poll"); lok = a.newlabel("k23_ok")
    a.L(lp)
    a.I("buffer_load_dword v9, v8, s[16:19], 0 offen sc1")
    a.I("s_add_u32 s24, s24, 1")
    a.I("s_waitcnt vmcnt(0)")
    a.I("v_cmp_ne_u32 s[46:47], 1, v9")
    a.I("s_cmp_eq_u64 s[46:47], 0")
    a.I(f"s_cbranch_scc1 {lok}")
    a.I(f"s_sleep {POLL_SLEEP}")
    a.I("s_cmp_lt_u32 s24, 0x8000")
    a.I(f"s_cbranch_scc1 {lp}")
    a.L(lok)
    if not POLL_ALL:
        a.L(lnq)
        a.I("s_barrier")
    pf.stamp("synced")
    projection(a, pf)
    a.L(lrest)
    if PROFILE: a.I("s_waitcnt vmcnt(0)")
    pf.finish(16, 22)
    a.I("s_endpgm")
    a.L(slow)
    a.I("s_waitcnt vmcnt(0)")
    S = VS[0]
    def slow_scores():
        lm = a.newlabel("k2s_m"); lf = a.newlabel("k2s_f"); ll = a.newlabel("k2s_l"); ln = a.newlabel("k2s_n"); lj = a.newlabel("k2s_j")
        a.I(f"s_mul_i32 s59, s58, 1280")
        a.I(f"v_add_u32 v9, s59, v{VAKM}")
        a.I(f"v_add_u32 v10, s59, v{VAKT}")
        a.I(f"ds_read_b64 {v(VKM[0],2)}, v9 offset:{LK}")
        a.I(f"ds_read_b64 {v(VKM[0]+2,2)}, v9 offset:{LK+512}")
        a.I(f"ds_read_b64 {v(VKT[0],2)}, v10 offset:{LK+1024}")
        a.I("s_cmp_eq_u32 s58, 8")
        a.I(f"s_cbranch_scc1 {ll}")
        a.I("s_cmp_gt_u32 s27, s58")
        a.I(f"s_cbranch_scc1 {ln}")
        a.I("s_cmp_eq_u32 s58, 0")
        a.I(f"s_cbranch_scc1 {lf}")
        for r in range(16): a.I(f"v_mov_b32 v{VC+r}, 0")
        a.I(f"s_branch {lj}")
        a.L(ln)
        for r in range(16): a.I(f"v_mov_b32 v{VC+r}, {NEG_INF:#x}")
        a.I(f"s_branch {lj}")
        a.L(lf)
        make_mask(True)
        a.I(f"s_branch {lj}")
        a.L(ll)
        make_mask(False)
        a.L(lj)
        a.I("s_waitcnt lgkmcnt(0)")
        a.I("s_nop 1")
        a.I(f"v_mfma_f32_32x32x16_bf16 {v(S,16)}, {v(VKM[0],4)}, {v(VQM,4)}, {v(VC,16)}")
        a.I(f"v_mfma_f32_32x32x8bf16_1k {v(S,16)}, {v(VKT[0],2)}, {v(VQT,2)}, {v(S,16)}")
        a.I("s_nop 15")
    VM = 13
    a.I(f"v_mov_b32 v{VM}, {NEG_INF:#x}")
    a.I("s_mov_b32 s58, 0")
    lp1 = a.newlabel("k2s_p1")
    a.L(lp1)
    slow_scores()
    for r in range(16): a.I(f"v_max_f32 v{VM}, v{VM}, v{S+r}")
    a.I("s_add_u32 s58, s58, 1")
    a.I("s_cmp_le_u32 s58, 8")
    a.I(f"s_cbranch_scc1 {lp1}")
    a.I(f"v_mov_b32 v9, v{VM}")
    a.I("s_nop 1")
    a.I(f"v_permlane32_swap_b32 v9, v{VM}")
    a.I("s_nop 1")
    a.I(f"v_max_f32 v{VM}, v{VM}, v9")
    for r in range(16): a.I(f"v_mov_b32 v{VO+r}, 0")
    a.I("s_mov_b32 s58, 0")
    lp2 = a.newlabel("k2s_p2")
    a.L(lp2)
    slow_scores()
    a.I(f"s_mul_i32 s59, s58, 1280")
    a.I(f"v_add_u32 v9, s59, v{VAV}")
    a.I(f"s_mov_b32 exec_lo, {MASK20[0]:#x}")
    a.I(f"s_mov_b32 exec_hi, {MASK20[1]:#x}")
    a.I(f"ds_read_b128 {v(VV[0],4)}, v9")
    a.I(f"ds_read_b128 {v(VV[1],4)}, v9 offset:640")
    a.I("s_mov_b64 exec, -1")
    for r in range(16): a.I(f"v_sub_f32 v{S+r}, v{S+r}, v{VM}")
    for r in range(16): a.I(f"v_exp_f32 v{S+r}, v{S+r}")
    a.I("s_nop 0")
    for k in range(8): a.I(f"v_cvt_pk_bf16_f32 v{VP+k}, v{S+2*k}, v{S+2*k+1}")
    a.I("s_waitcnt lgkmcnt(0)")
    a.I("s_nop 1")
    for hfs in range(2):
        a.I(f"v_mfma_f32_32x32x16_bf16 {v(VO,16)}, {v(VV[hfs],4)}, {v(VP+4*hfs,4)}, {v(VO,16)}")
    a.I("s_nop 15")
    a.I("s_add_u32 s58, s58, 1")
    a.I("s_cmp_le_u32 s58, 8")
    a.I(f"s_cbranch_scc1 {lp2}")
    a.I(f"v_cndmask_b32 v{VL}, v{VO+8}, v{VO+12}, s[38:39]")
    a.I("s_nop 1")
    a.I(f"s_branch {fin}")
    a.L(le)
    a.I("s_endpgm")
    a.raw(kd(name, 168 if FUSED else K2_VGPRS))
```

```python
from common import *

LK = 0
LV = 16*1280
LKV = 32*1280
LW = 43008
LKF = LKV + 1536
K2_LDS = LW + 102400 + 512
VAKM=2; VAKT=3; VAV=4; VAO=5; VAOT=6; VL=7
VC=16; VS=(32,48); VO=64; VQM=80; VQT=84
VKM=(86,90); VKT=(94,96); VV=(98,102); VP=106
VPQM=114; VPQT=118; VKVM=120; VKVT=124
VR=128
K2_VGPRS=160
ODEP=10
V_OM=2; V_OT=3; V_T0=4; V_T1=5; V_OUT=6; V_OUT2=7; V_T1B=10; V_T2=11
V_RING=20; V_ACC=36; V_O=76; RING=4
def acc3(t, rt): return V_ACC + (t*2+rt)*4
def oreg(s_, rt): return V_O + ((s_ % ODEP)*2+rt)*4
POLL_SLEEP = int(os.environ.get('POLL_SLEEP', '8'))
WO_TOUCH = os.environ.get('WO_TOUCH', '0') == '1'
O_TOUCH = os.environ.get('O_TOUCH', '0') == '1'
POLL_ALL = os.environ.get('POLL_ALL', '1') == '1'
assert not (O_TOUCH and POLL_ALL)
SPLIT_FLAGS = os.environ.get('SPLIT_FLAGS', '1') == '1'
LATE_PQ = FUSED and os.environ.get('LATE_PQ', '1') == '1'
AI = int(os.environ.get('AI', '5' if LATE_PQ else '4'))
MASK20 = (0x000FFFFF, 0x000FFFFF)

def kappa_code(a, m, dst, tmp):
    a.I(f"""
    v_and_b32 v{dst}, 7, v{m}
    v_bfe_u32 v{tmp}, v{m}, 3, 1
    v_lshl_or_b32 v{dst}, v{tmp}, 4, v{dst}
    v_bfe_u32 v{tmp}, v{m}, 4, 1
    v_lshl_or_b32 v{dst}, v{tmp}, 3, v{dst}
    """)

def key_of_reg(r):
    s_, b, i = r >> 3, (r >> 2) & 1, r & 3
    return 16*b + 8*s_ + i

def normalize_store(a, O, P, add_eps, so, off=0, check=None):
    a.I(f"v_cndmask_b32 v{VL}, v{O+8}, v{O+12}, s[38:39]")
    if add_eps: a.I(f"v_add_f32 v{VL}, s43, v{VL}")
    if check: check()
    a.I(f"v_rcp_f32 v8, v{VL}")
    for i in range(12): a.I(f"v_mul_f32 v{O+i}, v8, v{O+i}")
    for i in range(6): a.I(f"v_cvt_pk_bf16_f32 v{P+i}, v{O+2*i}, v{O+2*i+1}")
    a.I(f"buffer_store_dwordx4 {v(P,4)}, v{VAO}, s[16:19], {so} offen offset:{off}{sfx(ST_K2)}")
    a.I(f"buffer_store_dwordx2 {v(P+4,2)}, v{VAOT}, s[16:19], {so} offen offset:{off}{sfx(ST_K2)}")

def out_addr(a, stile):
    a.I(f"""
    s_mul_i32 s36, {stile}, 1280
    v_lshlrev_b32 v14, 4, v1
    v_add_u32 v{VAO}, s36, v14
    v_lshlrev_b32 v14, 3, v12
    v_add_u32 v14, s36, v14
    v_add_u32 v14, 1024, v14
    v_mov_b32 v15, {OOB:#x}
    v_cndmask_b32 v{VAOT}, v15, v14, s[38:39]
    """)

def q_addr(a, dst):
    a.I(f"""
    v_and_b32 v13, 15, v1
    v_lshlrev_b32 v13, 4, v13
    v_bfe_u32 v14, v1, 4, 1
    v_lshl_add_u32 v13, v14, 3, v13
    v_lshl_add_u32 v13, v11, 8, v13
    v_add_u32 v{dst}, s36, v13
    """)

def q_addr4(a, dst, dst_t):
    a.I(f"""
    v_and_b32 v13, 15, v1
    v_lshlrev_b32 v13, 4, v13
    v_add_u32 v13, s36, v13
    v_bfe_u32 v14, v1, 4, 1
    v_lshl_add_u32 v{dst_t}, v14, 3, v13
    v_lshl_add_u32 v13, v14, 9, v13
    v_lshl_add_u32 v{dst}, v11, 8, v13
    """)
def q_swap(a, r):
    a.I(f"v_permlane16_swap_b32 v{r}, v{r+2}")
    a.I(f"v_permlane16_swap_b32 v{r+1}, v{r+3}")

def projection_setup(a):
    a.I(f"""
    s_lshl_b32 s31, s63, 2
    s_add_u32 s31, s31, s22
    s_mul_i32 s32, s31, 1280
    s_cmp_eq_u32 s62, 0
    s_mov_b32 s33, {WS_OA}
    s_mov_b32 s34, {WS_OB}
    s_cselect_b32 s33, s33, s34
    s_add_u32 s32, s32, s33
    v_lshrrev_b32 v18, 4, v1
    v_and_b32 v19, 15, v1
    v_lshrrev_b32 v16, 1, v18
    v_mul_u32_u24 v16, 81920, v16
    v_and_b32 v17, 1, v18
    v_lshl_add_u32 v16, v17, 9, v16
    v_lshl_add_u32 v16, v19, 4, v16
    v_add_u32 v{V_OM}, s32, v16
    v_mul_u32_u24 v16, {2*81920}, v18
    v_lshl_add_u32 v16, v19, 3, v16
    v_add_u32 v16, s32, v16
    v_add_u32 v{V_OT}, 1024, v16
    """)
    a.I(f"""
    v_lshrrev_b32 v18, 5, v1
    v_lshlrev_b32 v18, 4, v18
    v_bfe_u32 v19, v1, 4, 1
    v_lshl_add_u32 v18, v19, 2, v18
    v_bfe_u32 v19, v1, 2, 2
    v_add_u32 v18, v18, v19
    v_mul_u32_u24 v18, 160, v18
    v_and_b32 v19, 3, v1
    v_lshl_add_u32 v18, v19, 3, v18
    v_add_u32 v{V_T0}, {LW}, v18
    v_add_u32 v{V_T2}, {16*5120}, v{V_T0}
    v_lshrrev_b32 v18, 4, v1
    v_and_b32 v19, 15, v1
    s_lshl_b32 s41, s31, 5
    v_add_u32 v19, s41, v19
    v_mul_u32_u24 v19, 2560, v19
    s_mul_i32 s42, s62, 1280
    s_add_u32 s42, s42, s73
    v_add_u32 v19, s42, v19
    v_and_b32 v16, 1, v18
    v_lshlrev_b32 v16, 5, v16
    v_lshrrev_b32 v17, 1, v18
    v_lshl_add_u32 v16, v17, 4, v16
    v_add_u32 v{V_OUT}, v19, v16
    v_lshl_add_u32 v{V_OUT2}, v18, 3, v19
    s_mov_b32 s43, {16*2560}
    """)

def projection(a, pf):
    vm = VmTrack()
    R3 = os.environ.get("K23_R3", "0") == "1"
    a.I(f"s_lshl_b32 s84, s72, 1")
    if not R3: a.I("s_mov_b32 s84, 0")
    a.I("s_mov_b32 s85, s84")
    def ops_o(s_):
        out = []
        if s_ < 16:
            for rt in range(2):
                t = ["s_mul_i32 s40, s84, 163840", "s_add_u32 s84, s84, 1", "s_and_b32 s84, s84, 15"] if rt == 0 else []
                t.append(f"buffer_load_dwordx4 {v(oreg(s_,rt),4)}, v{V_OM}, s[16:19], s40 offen offset:{rt*256} sc1")
                out.append((t, ("O", s_)))
        else:
            for u in range(2):
                for rt in range(2):
                    t = [f"s_mov_b32 s40, {(s_-16)*655360 + u*81920}"] if rt == 0 else []
                    t.append(f"buffer_load_dwordx2 {v(oreg(s_,rt)+2*u,2)}, v{V_OT}, s[16:19], s40 offen offset:{rt*128} sc1")
                    out.append((t, ("O", s_)))
        return out
    def emit_op(op):
        for t in op[0]: a.I(t)
        vm.add(op[1])
    NPRE = min(ODEP, int(os.environ.get("K3_NPRE", "8")))
    for s_ in range(NPRE):
        for op in ops_o(s_): emit_op(op)
    pending = []
    for s_ in range(NPRE, 20): pending += ops_o(s_)
    def free(op, done_steps):
        return op[1][1] - ODEP < done_steps
    pf.stamp("o_issued")
    def issue_tr(n):
        s_, t = divmod(n, 5)
        r = V_RING + (n % RING)*4
        if s_ < 16:
            base = V_T1 if (s_ & 1) else V_T1B
            if t == 0:
                a.I("s_mul_i32 s41, s85, 5120")
                a.I("s_add_u32 s85, s85, 1")
                a.I("s_and_b32 s85, s85, 15")
                a.I(f"v_add_u32 v{base}, s41, v{V_T0}")
            off = 32*t
        else:
            base = V_T2; off = (s_ - 16)*5120 + 32*t
        a.I(f"ds_read_b64_tr_b16 {v(r,2)}, v{base} offset:{off}")
        a.I(f"ds_read_b64_tr_b16 {v(r+2,2)}, v{base} offset:{off+1280}")
    NT = 100
    for n in range(RING-1): issue_tr(n)
    for n in range(NT):
        s_, t = divmod(n, 5)
        if n in (0, 40): pf.stamp(f"p{n}")
        if t == 0:
            while pending and pending[0][1][1] <= s_:
                assert free(pending[0], s_)
                emit_op(pending.pop(0))
            nw_, _ = vm.wait_n(lambda x: x == ("O", s_))
            a.I(f"s_waitcnt vmcnt({nw_})")
        m = n + RING - 1
        if m < NT:
            issue_tr(m)
            a.I(f"s_waitcnt lgkmcnt({2*(RING-1)})")
        else:
            a.I(f"s_waitcnt lgkmcnt({2*(NT-1-n)})")
        wf = v(V_RING + (n % RING)*4, 4)
        for rt in range(2):
            d = v(acc3(t, rt), 4)
            c = "0" if s_ == 0 else d
            a.I(f"v_mfma_f32_16x16x32_bf16 {d}, {wf}, {v(oreg(s_,rt),4)}, {c}")
        if pending and free(pending[0], (n + 1) // 5): emit_op(pending.pop(0))
    pf.stamp("pend")
    P = V_O
    def epi(sf):
        for rt in range(2):
            so = "s43" if rt else "0"
            for pr in range(2):
                p = P + rt*12 + pr*4
                for k, t in enumerate((2*pr, 2*pr+1)):
                    r = acc3(t, rt)
                    a.I(f"v_cvt_pk_bf16_f32 v{p+2*k}, v{r}, v{r+1}")
                    a.I(f"v_cvt_pk_bf16_f32 v{p+2*k+1}, v{r+2}, v{r+3}")
                a.I(f"v_permlane16_swap_b32 v{p}, v{p+2}")
                a.I(f"v_permlane16_swap_b32 v{p+1}, v{p+3}")
                a.I(f"buffer_store_dwordx4 {v(p,4)}, v{V_OUT}, s[12:15], {so} offen offset:{pr*64}{sfx(sf)}")
            p = P + rt*12 + 8
            r = acc3(4, rt)
            a.I(f"v_cvt_pk_bf16_f32 v{p}, v{r}, v{r+1}")
            a.I(f"v_cvt_pk_bf16_f32 v{p+1}, v{r+2}, v{r+3}")
            a.I(f"buffer_store_dwordx2 {v(p,2)}, v{V_OUT2}, s[12:15], {so} offen offset:128{sfx(sf)}")
    sfa = os.environ.get("ST_K3A", ST_K3)
    if sfa != ST_K3:
        lb = a.newlabel("k23_epb"); le_ = a.newlabel("k23_epe")
        a.I("s_cmp_lg_u32 s62, 0")
        a.I(f"s_cbranch_scc1 {lb}")
        epi(sfa)
        a.I(f"s_branch {le_}")
        a.L(lb)
        epi(ST_K3)
        a.L(le_)
    else:
        epi(ST_K3)

def helper_wave(a, pf):
    V_WM = 16; VR = 32
    a.I(f"""
    s_sub_u32 s22h, s22, 8
    s_mul_i32 s30, s25, 1280
    s_mul_i32 s31, s24, 1280
    s_bitcmp1_b32 s22h, 0
    s_cselect_b32 s34, s31, s30
    s_mov_b32 s35, {WS_KB}
    s_mov_b32 s37, {WS_VB}
    s_cmp_ge_u32 s22h, 2
    s_cselect_b32 s35, s37, s35
    s_add_u32 s34, s34, s35
    s_mul_i32 s33, s22h, 10240
    """.replace("s22h", "s82"))
    def poll(vaddr, nl):
        lp = a.newlabel("k23_hpoll"); lok = a.newlabel("k23_hpok")
        a.I("s_mov_b32 s44, 0")
        a.L(lp)
        a.I(f"buffer_load_dword v15, v{vaddr}, s[16:19], 0 offen sc1")
        a.I("s_add_u32 s44, s44, 1")
        a.I("s_waitcnt vmcnt(0)")
        a.I("v_cmp_ne_u32 s[46:47], 1, v15")
        a.I("s_cmp_eq_u64 s[46:47], 0")
        a.I(f"s_cbranch_scc1 {lok}")
        a.I(f"s_sleep {POLL_SLEEP}")
        a.I("s_cmp_lt_u32 s44, 0x8000")
        a.I(f"s_cbranch_scc1 {lp}")
        a.L(lok)
    if FUSED:
        lnp0 = a.newlabel("k23_hnp0")
        a.I("s_cmp_lg_u32 s82, 0")
        a.I(f"s_cbranch_scc1 {lnp0}")
        a.I(f"""
        s_mul_i32 s40, s20, 20
        s_lshr_b32 s41, s40, 7
        s_add_u32 s40, s40, 19
        s_lshr_b32 s40, s40, 7
        s_sub_u32 s42, s21, 1
        s_max_i32 s42, s42, 0
        v_min_u32 v2, {9 if LATE_PQ else 11}, v1
        v_and_b32 v3, 1, v2
        v_lshrrev_b32 v2, 1, v2
        v_mov_b32 v4, s41
        v_mov_b32 v5, s40
        v_cmp_eq_u32 s[46:47], 1, v3
        v_cndmask_b32 v4, v4, v5, s[46:47]
        v_mov_b32 v5, s21
        v_mov_b32 v6, s42
        v_cmp_eq_u32 s[46:47], 2, v2
        v_cmp_eq_u32 s[48:49], 4, v2
        s_or_b64 s[46:47], s[46:47], s[48:49]
        v_cndmask_b32 v5, v5, v6, s[46:47]
        v_add_u32 v6, 1, v2
        v_lshrrev_b32 v6, 1, v6
        v_mul_u32_u24 v6, 5, v6
        v_add_u32 v6, v6, v4
        v_lshrrev_b32 v7, 2, v5
        v_and_b32 v14, 3, v5
        v_lshrrev_b32 v15, 3, v6
        v_lshl_add_u32 v15, v15, 1, v7
        v_add_u32 v15, 4, v15
        v_and_b32 v6, 7, v6
        v_lshl_add_u32 v6, v6, 2, v14
        v_lshl_add_u32 v6, v6, 3, v15
        v_cmp_le_u32 s[48:49], 3, v4
        v_cndmask_b32 v15, 0, 1, s[48:49]
        v_mul_u32_u24 v3, 3, v15
        v_sub_u32 v3, v4, v3
        v_lshl_add_u32 v3, v3, 2, v14
        v_lshl_add_u32 v15, v15, 1, v7
        v_lshl_add_u32 v3, v3, 3, v15
        v_cmp_eq_u32 s[48:49], 5, v2
        v_cndmask_b32 v6, v6, v3, s[48:49]
        v_lshlrev_b32 v6, {FLAG_SH}, v6
        v_add_u32 v6, {WS_FLAG1}, v6
        """)
        poll(6, 12)
        a.L(lnp0)
        a.I("s_barrier")
        KR = 32
        for j in range(10):
            a.I(f"buffer_load_dwordx4 {v(KR+4*j,4)}, v8, s[16:19], s34 offen sc1")
            if j < 9: a.I("s_add_u32 s34, s34, 1024")
        a.I("v_add_u32 v14, s33, v8")
    else:
        for j in range(10):
            a.I(f"s_add_u32 m0, s33, {j*1024}")
            a.I("buffer_load_dwordx4 v8, s[16:19], s34 offen lds")
            if j < 9: a.I("s_add_u32 s34, s34, 1024")
    pf.stamp("h_issued")
    lz = a.newlabel("k23_hz")
    a.I("s_cmp_lg_u32 s82, 0")
    a.I(f"s_cbranch_scc1 {lz}")
    for k in range(4): a.I(f"v_mov_b32 v{72+k}, 0")
    a.I(f"v_mov_b32 v15, {LKF}")
    a.I(f"ds_write_b128 v15, {v(72,4)}")
    a.I(f"ds_write_b128 v15, {v(72,4)} offset:16")
    a.L(lz)
    a.I("""
    s_cmp_eq_u32 s62, 0
    s_cselect_b32 s74, 8, 4
    s_cselect_b32 s75, 4, 20
    """)
    for q in range(5):
        a.I(f"""
        v_add_u32 v2, {64*q}, v1
        v_mul_u32_u24 v3, 6554, v2
        v_lshrrev_b32 v3, 16, v3
        v_mul_u32_u24 v4, 10, v3
        v_sub_u32 v4, v2, v4
        v_lshlrev_b32 v4, 4, v4
        v_add_u32 v4, s73, v4
        v_lshrrev_b32 v5, 4, v3
        v_mul_u32_u24 v6, s74, v5
        v_add_u32 v6, v6, v3
        v_mul_u32_u24 v6, 1280, v6
        v_add_u32 v{V_WM+q}, v6, v4
        v_lshlrev_b32 v5, 1, v5
        v_bfe_u32 v6, v3, 2, 1
        v_add_u32 v5, v5, v6
        v_mul_u32_u24 v5, 40, v5
        v_bfe_u32 v6, v3, 3, 1
        v_mul_u32_u24 v6, s75, v6
        v_add_u32 v5, v5, v6
        v_and_b32 v6, 3, v3
        v_add3_u32 v5, v5, v6, 16
        v_mul_u32_u24 v5, 1280, v5
        v_add_u32 v{V_WM+5+q}, v5, v4
        """)
    if FUSED:
        for j in range(10):
            a.I(f"s_waitcnt vmcnt({9-j})")
            a.I(f"ds_write_b128 v14, {v(32+4*j,4)} offset:{j*1024}")
    a.I("s_waitcnt vmcnt(0) lgkmcnt(0)")
    a.I("s_barrier")
    nokv = a.newlabel("k23_nokv")
    a.I("s_cmp_ge_u32 s82, 3")
    a.I(f"s_cbranch_scc1 {nokv}")
    a.I(f"""
    s_mul_i32 s40, s20, {3*NKB}
    s_add_u32 s40, s40, s82
    s_lshl_b32 s40, s40, 10
    s_add_u32 s40, s40, {WS_KVP}
    """)
    if FUSED:
        a.I(f"""
        s_lshr_b32 s41, s20, 2
        s_lshr_b32 s42, s41, 2
        s_and_b32 s41, s41, 3
        s_mul_i32 s41, s41, 5
        s_lshl_b32 s43, s42, 2
        s_sub_u32 s41, s41, s43
        s_add_u32 s41, s41, 12
        s_lshl_b32 s42, s42, 1
        v_min_u32 v2, {NKB-1}, v1
        v_cmp_le_u32 s[46:47], 5, v2
        v_cndmask_b32 v3, 0, 1, s[46:47]
        v_mul_u32_u24 v4, 5, v3
        v_sub_u32 v4, v2, v4
        v_add_u32 v4, s41, v4
        v_add_u32 v3, s42, v3
        v_lshl_add_u32 v4, v4, 3, v3
        v_lshlrev_b32 v4, {FLAG_SH}, v4
        v_add_u32 v4, {WS_FLAG1}, v4
        """)
        poll(4, NKB)
    for i in range(NKB):
        a.I(f"buffer_load_dwordx4 {v(VR+4*i,4)}, v8, s[16:19], s40 offen{' sc1' if FUSED else ''}")
        if i < NKB - 1: a.I("s_add_u32 s40, s40, 3072")
    for i in range(1, NKB):
        a.I(f"s_waitcnt vmcnt({NKB-1-i})")
        for k in range(4): a.I(f"v_add_f32 v{VR+k}, v{VR+k}, v{VR+4*i+k}")
    a.I(f"v_cvt_pk_bf16_f32 v{VR}, v{VR}, v{VR+1}")
    a.I(f"v_cvt_pk_bf16_f32 v{VR+1}, v{VR+2}, v{VR+3}")
    a.I(f"""
    s_lshl_b32 s41, s82, 3
    s_add_u32 s41, s41, {LKV}
    v_add_u32 v14, s41, v8
    v_lshlrev_b32 v15, 3, v1
    v_add_u32 v15, {LKV + 1024}, v15
    s_cmp_eq_u32 s82, 2
    s_cselect_b64 s[46:47], -1, 0
    v_cndmask_b32 v14, v14, v15, s[46:47]
    """)
    a.I(f"ds_write_b64 v14, {v(VR,2)}")
    a.I(f"""
    s_lshl_b32 s41, s82, 2
    s_add_u32 s41, s41, {LKF}
    v_mov_b32 v14, s41
    v_mov_b32 v15, 1
    """)
    a.I("s_waitcnt lgkmcnt(0)")
    a.I("ds_write_b32 v14, v15")
    a.L(nokv)
    if LATE_PQ:
        lna = a.newlabel("k23_hna")
        a.I("s_cmp_lg_u32 s82, 3")
        a.I(f"s_cbranch_scc1 {lna}")
        a.I(f"""
        s_mul_i32 s40, s20, 20
        s_lshr_b32 s41, s40, 7
        s_add_u32 s40, s40, 19
        s_lshr_b32 s40, s40, 7
        v_mov_b32 v4, s41
        v_mov_b32 v5, s40
        v_cmp_eq_u32 s[46:47], 0, v1
        v_cndmask_b32 v4, v5, v4, s[46:47]
        v_cmp_le_u32 s[48:49], 3, v4
        v_cndmask_b32 v5, 0, 1, s[48:49]
        v_mul_u32_u24 v3, 3, v5
        v_sub_u32 v3, v4, v3
        s_and_b32 s42, s21, 3
        s_lshr_b32 s43, s21, 2
        v_lshlrev_b32 v3, 2, v3
        v_add_u32 v3, s42, v3
        v_lshlrev_b32 v5, 1, v5
        v_add_u32 v5, s43, v5
        v_lshl_add_u32 v3, v3, 3, v5
        v_lshlrev_b32 v3, {FLAG_SH}, v3
        v_add_u32 v3, {WS_FLAG1}, v3
        """)
        poll(3, 2)
        a.I(f"v_mov_b32 v14, {LKF + 16}")
        a.I("v_mov_b32 v15, 1")
        a.I("ds_write_b32 v14, v15")
        a.L(lna)
    pf.stamp("h_kv")
    a.I(f"""
    s_mul_i32 s76, s82, 51200
    s_mul_i32 s78, s82, 204800
    s_mul_i32 s79, s82, 5120
    s_add_u32 s79, s79, {LW}
    """)
    for g in range(5):
        for q in range(5):
            a.I(f"s_add_u32 m0, s79, {g*4*5120 + q*1024}")
            if g < 4:
                if q == 0 and g > 0: a.I(f"s_add_u32 s76, s76, {4*51200}")
                a.I(f"buffer_load_dwordx4 v{V_WM+q}, s[8:11], s76 offen lds")
            else:
                a.I(f"buffer_load_dwordx4 v{V_WM+5+q}, s[8:11], s78 offen lds")
    pf.stamp("h_wo")
    if SPLIT_FLAGS:
        lnf = a.newlabel("k23_hnf"); lp = a.newlabel("k23_hp"); lok = a.newlabel("k23_hok")
        a.I("s_cmp_lg_u32 s82, 3")
        a.I(f"s_cbranch_scc1 {lnf}")
        a.I(f"v_mov_b32 v14, {LKF + 12}")
        a.I("s_mov_b32 s24, 0")
        a.L(lp)
        a.I("ds_read_b32 v15, v14")
        a.I("s_add_u32 s24, s24, 1")
        a.I("s_waitcnt lgkmcnt(0)")
        a.I("v_cmp_ne_u32 s[46:47], 8, v15")
        a.I("s_cmp_eq_u64 s[46:47], 0")
        a.I(f"s_cbranch_scc1 {lok}")
        a.I("s_sleep 1")
        a.I("s_cmp_lt_u32 s24, 0x100000")
        a.I(f"s_cbranch_scc1 {lp}")
        a.L(lok)
        a.I(f"""
        s_lshl_b32 s23, s21, 5
        s_add_u32 s23, s23, s20
        s_add_u32 s23, s23, 256
        s_lshl_b32 s23, s23, {FLAG_SH}
        s_add_u32 s23, s23, {WS_FLAG}
        v_mov_b32 v14, s23
        v_mov_b32 v15, 1
        s_mov_b64 exec, 1
        """)
        a.I("buffer_store_dword v15, v14, s[16:19], 0 offen sc1")
        a.I("s_mov_b64 exec, -1")
        a.L(lnf)
    a.I("s_waitcnt vmcnt(0) lgkmcnt(0)")
    a.I("s_barrier")
    pf.finish(16, 22)
    a.I("s_endpgm")

def gen_k2(a, name, lph2=None):
    le = a.newlabel("k2_end")
    if FUSED:
        a.L(lph2)
        pf = Prof(a, 0); pf.n = int(os.environ.get('PROF_N0', '1'))
    else:
        a.raw(f".globl {name}\n.p2align 8\n.type {name},@function")
        a.L(name)
        a.I("s_cmp_ge_u32 s2, 256")
        a.I(f"s_cbranch_scc1 {le}")
        pf = Prof(a, 1); pf.start()
        a.I("s_load_dwordx2 s[28:29], s[0:1], 64")
        a.I("s_load_dwordx4 s[4:7], s[0:1], 40")
        a.I("s_load_dwordx2 s[12:13], s[0:1], 16")
    a.I("""
    s_and_b32 s3, s2, 7
    s_lshr_b32 s30, s2, 3
    s_lshr_b32 s62, s3, 2
    s_and_b32 s63, s3, 3
    s_lshl_b32 s63, s63, 2
    s_and_b32 s23, s30, 3
    s_add_u32 s63, s63, s23
    s_lshr_b32 s72, s30, 2
    """)
    a.I("""
    s_mov_b32 s3, s2
    s_and_b32 s20, s3, 7
    s_lshr_b32 s23, s3, 6
    s_lshl_b32 s23, s23, 3
    s_add_u32 s20, s20, s23
    s_lshr_b32 s21, s3, 3
    s_and_b32 s21, s21, 7
    """)
    if not FUSED:
        a.I("v_lshrrev_b32 v12, 6, v0")
        a.I("v_and_b32 v1, 63, v0")
        a.I("v_readfirstlane_b32 s22, v12")
    a.I("""
    s_lshl_b32 s24, s20, 6
    s_lshl_b32 s23, s21, 3
    s_add_u32 s24, s24, s23
    s_cmp_eq_u32 s21, 0
    s_cselect_b32 s23, 0, 8
    s_sub_u32 s25, s24, s23
    s_add_u32 s26, s24, s22
    v_lshlrev_b32 v8, 4, v1
    v_lshrrev_b32 v11, 5, v1
    v_and_b32 v12, 31, v1
    s_mul_i32 s36, s26, 1280
    """)
    q_addr4(a, 10, 9)
    a.I("s_waitcnt lgkmcnt(0)")
    pf.stamp('kernarg')
    if FUSED:
        a.I("s_cmp_eq_u32 s62, 0")
        a.I("s_cselect_b32 s4, s86, s88")
        a.I("s_cselect_b32 s5, s87, s89")
        srd(a, 8, 4, 5, 819200)
        srd(a, 12, 90, 91, 5242880)
    else:
        srd(a, 16, 28, 29, WS_REC, WS0)
        a.I("s_cmp_eq_u32 s62, 0")
        a.I("s_cselect_b32 s4, s12, s4")
        a.I("s_cselect_b32 s5, s13, s5")
        srd(a, 8, 4, 5, 819200)
        srd(a, 12, 6, 7, 5242880)
    a.I("s_mul_i32 s73, s72, 160")
    lh = a.newlabel("k23_attn")
    n0 = (pf.n, list(pf.names))
    a.I("s_cmp_lt_u32 s22, 8")
    a.I(f"s_cbranch_scc1 {lh}")
    helper_wave(a, pf)
    pf.n, pf.names = n0[0], list(n0[1])
    a.L(lh)
    def q_loads():
        sc = " sc1" if FUSED else ""
        a.I(f"v_mov_b32 v{VQT}, 0")
        a.I(f"v_mov_b32 v{VQT+1}, 0")
        a.I(f"buffer_load_dwordx4 {v(VQM,4)}, v10, s[16:19], 0 offen{sc}")
        a.I("s_mov_b32 exec_hi, 0")
        a.I(f"buffer_load_dwordx2 {v(VQT,2)}, v9, s[16:19], 0 offen offset:1024{sc}")
        a.I("s_mov_b32 exec_hi, -1")
    if not FUSED: q_loads()
    pf.stamp("issued")
    a.I("v_cmp_gt_u32 s[38:39], 32, v1")
    kappa_code(a, 12, 13, 14)
    a.I(f"""
    s_mul_i32 s41, s22, 1280
    v_and_b32 v14, 15, v13
    v_lshlrev_b32 v14, 4, v14
    v_lshrrev_b32 v15, 4, v13
    v_lshl_add_u32 v14, v15, 3, v14
    v_add_u32 v{VAKT}, s41, v14
    v_lshl_add_u32 v{VAKM}, v11, 8, v{VAKT}
    """)
    a.I(f"""
    v_mul_u32_u24 v15, 320, v11
    v_lshl_add_u32 v14, v12, 4, v15
    s_add_u32 s41, s41, {LV}
    v_add_u32 v{VAV}, s41, v14
    """)
    out_addr(a, "s26")
    for k in range(8): a.I(f"v_mov_b32 v{VV[0]+k}, 0x3f803f80")
    def make_mask(first):
        a.I(f"""
        v_lshlrev_b32 v14, 2, v11
        v_sub_u32 v14, v12, v14
        v_mov_b32 v15, {NEG_INF:#x}
        """)
        for r in range(16):
            pr = 46 + 2*(r & 1)
            a.I(f"v_cmp_gt_i32 s[{pr}:{pr+1}], {key_of_reg(r)}, v14")
            if first: a.I(f"v_cndmask_b32 v{VC+r}, v15, 0, s[{pr}:{pr+1}]")
            else:     a.I(f"v_cndmask_b32 v{VC+r}, 0, v15, s[{pr}:{pr+1}]")
    l0 = a.newlabel("k2_r0"); l1 = a.newlabel("k2_r1")
    a.I("s_mov_b32 s27, 0")
    a.I("s_cmp_lg_u32 s21, 0")
    a.I(f"s_cbranch_scc1 {l0}")
    a.I("s_sub_u32 s27, 8, s22")
    for r in range(16): a.I(f"v_mov_b32 v{VC+r}, {NEG_INF:#x}")
    a.I(f"s_branch {l1}")
    a.L(l0)
    make_mask(True)
    a.L(l1)
    pf.stamp("masks")
    if FUSED:
        a.I("s_barrier")
        q_loads()
    a.I("s_waitcnt vmcnt(0)")
    a.I("s_barrier")
    q_swap(a, VQM)
    def pq_loads():
        a.I(f"""
        s_and_b32 s44, s20, 1
        s_lshl_b32 s45, s44, 8
        s_add_u32 s45, s45, {WS_PQ}
        s_xor_b32 s46, s44, 1
        s_lshl_b32 s46, s46, 10
        s_add_u32 s46, s46, {WS_PQ}
        v_mov_b32 v{VPQT}, 0
        v_mov_b32 v{VPQT+1}, 0
        """)
        a.I(f"buffer_load_dwordx4 {v(VPQM,4)}, v10, s[16:19], s45 offen{' sc1' if FUSED else ''}")
        a.I("s_mov_b32 exec_hi, 0")
        a.I(f"buffer_load_dwordx2 {v(VPQT,2)}, v9, s[16:19], s46 offen{' sc1' if FUSED else ''}")
        a.I("s_mov_b32 exec_hi, -1")
    def pq_wait():
        lp = a.newlabel("k23_pqw"); lok = a.newlabel("k23_pqok")
        a.I(f"v_mov_b32 v14, {LKF + 16}")
        a.I("s_mov_b32 s24, 0")
        a.L(lp)
        a.I("ds_read_b32 v15, v14")
        a.I("s_add_u32 s24, s24, 1")
        a.I("s_waitcnt lgkmcnt(0)")
        a.I("v_cmp_ne_u32 s[46:47], 1, v15")
        a.I("s_cmp_eq_u64 s[46:47], 0")
        a.I(f"s_cbranch_scc1 {lok}")
        a.I("s_cmp_lt_u32 s24, 0x100000")
        a.I(f"s_cbranch_scc1 {lp}")
        a.L(lok)
    if not LATE_PQ: pq_loads()
    pf.stamp("first")
    def rdK(i):
        a.I(f"ds_read_b64 {v(VKM[i&1],2)}, v{VAKM} offset:{LK + i*1280}")
        a.I(f"ds_read_b64 {v(VKM[i&1]+2,2)}, v{VAKM} offset:{LK + i*1280 + 512}")
        a.I(f"ds_read_b64 {v(VKT[i&1],2)}, v{VAKT} offset:{LK + i*1280 + 1024}")
    def rdV(i):
        a.I(f"s_mov_b32 exec_lo, {MASK20[0]:#x}")
        a.I(f"s_mov_b32 exec_hi, {MASK20[1]:#x}")
        a.I(f"ds_read_b128 {v(VV[0],4)}, v{VAV} offset:{i*1280}")
        a.I(f"ds_read_b128 {v(VV[1],4)}, v{VAV} offset:{i*1280 + 640}")
        a.I("s_mov_b64 exec, -1")
    def qk1(i, wn=0):
        S = VS[i & 1]
        a.I(f"s_waitcnt lgkmcnt({wn})")
        if i == 0 or i == 8:
            a.I(f"v_mfma_f32_32x32x16_bf16 {v(S,16)}, {v(VKM[i&1],4)}, {v(VQM,4)}, {v(VC,16)}")
        else:
            ln = a.newlabel("k2_neg"); lj = a.newlabel("k2_join")
            a.I(f"s_cmp_gt_u32 s27, {i}")
            a.I(f"s_cbranch_scc1 {ln}")
            a.I(f"v_mfma_f32_32x32x16_bf16 {v(S,16)}, {v(VKM[i&1],4)}, {v(VQM,4)}, 0")
            a.I(f"s_branch {lj}")
            a.L(ln)
            a.I(f"v_mfma_f32_32x32x16_bf16 {v(S,16)}, {v(VKM[i&1],4)}, {v(VQM,4)}, {v(VC,16)}")
            a.L(lj)
    def qk2(i):
        S = VS[i & 1]
        a.I(f"v_mfma_f32_32x32x8bf16_1k {v(S,16)}, {v(VKT[i&1],2)}, {v(VQT,2)}, {v(S,16)}")
    def qk(i, wn=0):
        qk1(i, wn); qk2(i)
    PR = os.environ.get("K2_PRIO", "")
    if PR == "a": a.I("s_setprio 1")
    if PR == "y":
        lpz = a.newlabel("k23_prio")
        a.I("s_cmp_lt_u32 s22, 4")
        a.I(f"s_cbranch_scc1 {lpz}")
        a.I("s_setprio 1")
        a.L(lpz)
    rdK(0); rdK(1); rdV(0)
    qk(0, 5)
    def a_apply():
        AO = VR
        a.I("s_waitcnt vmcnt(0)")
        q_swap(a, VPQM)
        lp = a.newlabel("k23_kvw"); lok = a.newlabel("k23_kvok")
        a.I(f"v_mov_b32 v14, {LKF}")
        a.I("s_mov_b32 s24, 0")
        a.L(lp)
        a.I(f"ds_read_b128 {v(AO,4)}, v14")
        a.I("s_add_u32 s24, s24, 1")
        a.I("s_waitcnt lgkmcnt(0)")
        a.I(f"v_and_b32 v{AO}, v{AO}, v{AO+1}")
        a.I(f"v_and_b32 v{AO}, v{AO}, v{AO+2}")
        a.I(f"v_cmp_ne_u32 s[46:47], 1, v{AO}")
        a.I("s_cmp_eq_u64 s[46:47], 0")
        a.I(f"s_cbranch_scc1 {lok}")
        a.I("s_cmp_lt_u32 s24, 0x100000")
        a.I(f"s_cbranch_scc1 {lp}")
        a.L(lok)
        a.I(f"v_lshlrev_b32 v14, 4, v1")
        a.I(f"v_lshlrev_b32 v15, 3, v1")
        a.I(f"ds_read_b128 {v(VKVM,4)}, v14 offset:{LKV}")
        a.I(f"ds_read_b64 {v(VKVT,2)}, v15 offset:{LKV+1024}")
        a.I(f"s_mov_b32 s43, {f2u(1e-6):#x}")
        a.I(f"s_mov_b32 s61, {WS_OA}")
        a.I("s_waitcnt lgkmcnt(0)")
        a.I(f"v_mfma_f32_32x32x16_bf16 {v(AO,16)}, {v(VKVM,4)}, {v(VPQM,4)}, 0")
        a.I(f"v_mfma_f32_32x32x8bf16_1k {v(AO,16)}, {v(VKVT,2)}, {v(VPQT,2)}, {v(AO,16)}")
    def a_store():
        normalize_store(a, VR, VR + 16, True, "s61")
    SPREAD = os.environ.get("K2_SPREAD", "0") == "1"
    for i in range(9):
        S = VS[i & 1]
        if i == 7:
            if os.environ.get("K2_XORMASK", "1") == "1":
                lr0 = a.newlabel("k2_m0"); lr1 = a.newlabel("k2_m1")
                a.I("s_cmp_eq_u32 s21, 0")
                a.I(f"s_cbranch_scc1 {lr0}")
                for r in range(16): a.I(f"v_xor_b32 v{VC+r}, {NEG_INF:#x}, v{VC+r}")
                a.I(f"s_branch {lr1}")
                a.L(lr0)
                make_mask(False)
                a.L(lr1)
            else:
                make_mask(False)
        if i == AI: a_apply()
        if i < 8 and not SPREAD:
            qk(i+1, 2)
            if i + 2 <= 8: rdK(i+2)
        if i == AI: a_store()
        for hfs in range(2):
            for k in range(8): a.I(f"v_exp_f32 v{S+8*hfs+k}, v{S+8*hfs+k}")
            if SPREAD and i < 8:
                if hfs == 0: qk1(i+1, 2)
                else:
                    qk2(i+1)
                    if i + 2 <= 8: rdK(i+2)
            for k in range(4): a.I(f"v_cvt_pk_bf16_f32 v{VP+4*hfs+k}, v{S+8*hfs+2*k}, v{S+8*hfs+2*k+1}")
            if hfs == 0: a.I(f"s_waitcnt lgkmcnt({(0 if SPREAD else 3) if i + 2 <= 8 else 0})")
            c = "0" if (i == 0 and hfs == 0) else v(VO,16)
            a.I(f"v_mfma_f32_32x32x16_bf16 {v(VO,16)}, {v(VV[hfs],4)}, {v(VP+4*hfs,4)}, {c}")
        if i < 8: rdV(i+1)
        if LATE_PQ and i == AI - 3:
            pq_wait(); pq_loads()
        if SPLIT_FLAGS and i == 8:
            a.I("s_waitcnt vmcnt(0)")
            a.I(f"v_mov_b32 v14, {LKF + 12}")
            a.I("v_mov_b32 v15, 1")
            a.I("s_mov_b64 exec, 1")
            a.I("ds_add_u32 v14, v15")
            a.I("s_mov_b64 exec, -1")
            a.I("s_waitcnt lgkmcnt(0)")
    pf.stamp("mainend")
    slow = a.newlabel("k2_slow"); fin = a.newlabel("k2_fin")
    def check():
        a.I(f"v_mov_b32 v9, 0")
        for i in range(12): a.I(f"v_fma_f32 v9, v{VO+i}, 0, v9")
        a.I(f"s_mov_b32 s50, {f2u(2.0**-64):#x}")
        a.I(f"s_mov_b32 s51, {f2u(2.0**64):#x}")
        a.I(f"v_cmp_nge_f32 s[52:53], v{VL}, s50")
        a.I(f"v_cmp_nle_f32 s[54:55], v{VL}, s51")
        a.I(f"v_cmp_u_f32 s[56:57], v9, v9")
        a.I("s_or_b64 s[52:53], s[52:53], s[54:55]")
        a.I("s_or_b64 s[52:53], s[52:53], s[56:57]")
        a.I("s_cmp_lg_u64 s[52:53], 0")
        if os.environ.get("FORCE_SLOW") == "1": a.I("s_cmp_eq_u32 s22, s22")
        a.I(f"s_cbranch_scc1 {slow}")
        a.L(fin)
    a.I(f"s_mov_b32 s60, {WS_OB}")
    normalize_store(a, VO, VP, False, "s60", 0, check)
    pf.stamp("bstore")
    projection_setup(a)
    a.I("s_waitcnt vmcnt(0)")
    a.I("s_barrier")
    lrest = a.newlabel("k23_rest"); lgo = a.newlabel("k23_go"); lto = a.newlabel("k23_touch")
    a.I("s_cmp_ge_u32 s22, 4")
    a.I(f"s_cbranch_scc1 {lrest}")
    lnp = a.newlabel("k23_noflag")
    a.I("s_cmp_lg_u32 s22, 0")
    a.I(f"s_cbranch_scc1 {lnp}")
    a.I(f"""
    s_lshl_b32 s23, s21, 5
    s_add_u32 s23, s23, s20
    s_lshl_b32 s23, s23, {FLAG_SH}
    s_add_u32 s23, s23, {WS_FLAG}
    v_mov_b32 v8, s23
    v_mov_b32 v9, 1
    s_mov_b64 exec, 1
    """)
    a.I("buffer_store_dword v9, v8, s[16:19], 0 offen sc1")
    a.I("s_mov_b64 exec, -1")
    a.L(lnp)
    if not POLL_ALL:
        lnq = a.newlabel("k23_nopoll")
        a.I("s_cmp_lg_u32 s22, 0")
        a.I(f"s_cbranch_scc1 {lnq}")
    a.I(f"""
    s_lshr_b32 s23, s63, 1
    s_xor_b32 s24, s62, 1
    s_mul_i32 s24, s24, {8 if SPLIT_FLAGS else 0}
    s_add_u32 s23, s23, s24
    s_lshl_b32 s23, s23, {5 + FLAG_SH}
    s_add_u32 s23, s23, {WS_FLAG}
    v_and_b32 v8, 31, v1
    v_lshlrev_b32 v8, {FLAG_SH}, v8
    v_add_u32 v8, s23, v8
    s_mov_b32 s24, 0
    """)
    lp = a.newlabel("k23_poll"); lok = a.newlabel("k23_ok")
    a.L(lp)
    a.I("buffer_load_dword v9, v8, s[16:19], 0 offen sc1")
    a.I("s_add_u32 s24, s24, 1")
    a.I("s_waitcnt vmcnt(0)")
    a.I("v_cmp_ne_u32 s[46:47], 1, v9")
    a.I("s_cmp_eq_u64 s[46:47], 0")
    a.I(f"s_cbranch_scc1 {lok}")
    a.I(f"s_sleep {POLL_SLEEP}")
    a.I("s_cmp_lt_u32 s24, 0x8000")
    a.I(f"s_cbranch_scc1 {lp}")
    a.L(lok)
    if not POLL_ALL:
        a.L(lnq)
        a.I("s_barrier")
    pf.stamp("synced")
    projection(a, pf)
    a.L(lrest)
    if PROFILE: a.I("s_waitcnt vmcnt(0)")
    pf.finish(16, 22)
    a.I("s_endpgm")
    a.L(slow)
    a.I("s_waitcnt vmcnt(0)")
    S = VS[0]
    def slow_scores():
        lm = a.newlabel("k2s_m"); lf = a.newlabel("k2s_f"); ll = a.newlabel("k2s_l"); ln = a.newlabel("k2s_n"); lj = a.newlabel("k2s_j")
        a.I(f"s_mul_i32 s59, s58, 1280")
        a.I(f"v_add_u32 v9, s59, v{VAKM}")
        a.I(f"v_add_u32 v10, s59, v{VAKT}")
        a.I(f"ds_read_b64 {v(VKM[0],2)}, v9 offset:{LK}")
        a.I(f"ds_read_b64 {v(VKM[0]+2,2)}, v9 offset:{LK+512}")
        a.I(f"ds_read_b64 {v(VKT[0],2)}, v10 offset:{LK+1024}")
        a.I("s_cmp_eq_u32 s58, 8")
        a.I(f"s_cbranch_scc1 {ll}")
        a.I("s_cmp_gt_u32 s27, s58")
        a.I(f"s_cbranch_scc1 {ln}")
        a.I("s_cmp_eq_u32 s58, 0")
        a.I(f"s_cbranch_scc1 {lf}")
        for r in range(16): a.I(f"v_mov_b32 v{VC+r}, 0")
        a.I(f"s_branch {lj}")
        a.L(ln)
        for r in range(16): a.I(f"v_mov_b32 v{VC+r}, {NEG_INF:#x}")
        a.I(f"s_branch {lj}")
        a.L(lf)
        make_mask(True)
        a.I(f"s_branch {lj}")
        a.L(ll)
        make_mask(False)
        a.L(lj)
        a.I("s_waitcnt lgkmcnt(0)")
        a.I("s_nop 1")
        a.I(f"v_mfma_f32_32x32x16_bf16 {v(S,16)}, {v(VKM[0],4)}, {v(VQM,4)}, {v(VC,16)}")
        a.I(f"v_mfma_f32_32x32x8bf16_1k {v(S,16)}, {v(VKT[0],2)}, {v(VQT,2)}, {v(S,16)}")
        a.I("s_nop 15")
    VM = 13
    a.I(f"v_mov_b32 v{VM}, {NEG_INF:#x}")
    a.I("s_mov_b32 s58, 0")
    lp1 = a.newlabel("k2s_p1")
    a.L(lp1)
    slow_scores()
    for r in range(16): a.I(f"v_max_f32 v{VM}, v{VM}, v{S+r}")
    a.I("s_add_u32 s58, s58, 1")
    a.I("s_cmp_le_u32 s58, 8")
    a.I(f"s_cbranch_scc1 {lp1}")
    a.I(f"v_mov_b32 v9, v{VM}")
    a.I("s_nop 1")
    a.I(f"v_permlane32_swap_b32 v9, v{VM}")
    a.I("s_nop 1")
    a.I(f"v_max_f32 v{VM}, v{VM}, v9")
    for r in range(16): a.I(f"v_mov_b32 v{VO+r}, 0")
    a.I("s_mov_b32 s58, 0")
    lp2 = a.newlabel("k2s_p2")
    a.L(lp2)
    slow_scores()
    a.I(f"s_mul_i32 s59, s58, 1280")
    a.I(f"v_add_u32 v9, s59, v{VAV}")
    a.I(f"s_mov_b32 exec_lo, {MASK20[0]:#x}")
    a.I(f"s_mov_b32 exec_hi, {MASK20[1]:#x}")
    a.I(f"ds_read_b128 {v(VV[0],4)}, v9")
    a.I(f"ds_read_b128 {v(VV[1],4)}, v9 offset:640")
    a.I("s_mov_b64 exec, -1")
    for r in range(16): a.I(f"v_sub_f32 v{S+r}, v{S+r}, v{VM}")
    for r in range(16): a.I(f"v_exp_f32 v{S+r}, v{S+r}")
    a.I("s_nop 0")
    for k in range(8): a.I(f"v_cvt_pk_bf16_f32 v{VP+k}, v{S+2*k}, v{S+2*k+1}")
    a.I("s_waitcnt lgkmcnt(0)")
    a.I("s_nop 1")
    for hfs in range(2):
        a.I(f"v_mfma_f32_32x32x16_bf16 {v(VO,16)}, {v(VV[hfs],4)}, {v(VP+4*hfs,4)}, {v(VO,16)}")
    a.I("s_nop 15")
    a.I("s_add_u32 s58, s58, 1")
    a.I("s_cmp_le_u32 s58, 8")
    a.I(f"s_cbranch_scc1 {lp2}")
    a.I(f"v_cndmask_b32 v{VL}, v{VO+8}, v{VO+12}, s[38:39]")
    a.I("s_nop 1")
    a.I(f"s_branch {fin}")
    a.L(le)
    a.I("s_endpgm")
    a.raw(kd(name, 168 if FUSED else K2_VGPRS))
```
